```python
import torch

def _softmax(x, axis=-1):
    return torch.softmax(x, dim=axis)
def _gelu(x):
    return torch.nn.functional.gelu(x, approximate="tanh")
def _silu(x):
    return torch.nn.functional.silu(x)
def _sigmoid(x):
    return torch.sigmoid(x)
def _layernorm(x, axis=-1, eps=1e-5):
    m = x.mean(dim=axis, keepdim=True)
    v = x.var(dim=axis, keepdim=True, unbiased=False)
    return (x - m) / torch.sqrt(v + eps)
def _scatter_add(tgt, idx, src, axis=0):
    return tgt.clone().index_add_(axis, idx, src)
def _segment_sum(src, seg, n):
    out = torch.zeros((n,) + src.shape[1:], dtype=src.dtype)
    return out.index_add_(0, seg, src)
def _pad(x, pw):
    flat = tuple(v for pair in reversed(pw) for v in pair)
    return torch.nn.functional.pad(x, flat)

kernel_name = 'interleave_layers__linear_kernel_hedgehog__mixer_s_mlp__prompt'

def setup_inputs():

    _w = (lambda a: (lambda t: t.to(torch.bfloat16) if t.is_floating_point() else t)(torch.as_tensor(a)))
    def _A_setup():
        B, S, D, H = 1, 2048, 512, 32
        Dh = D // H
        return {
            "x": _w((lambda *s: torch.randn(*s, dtype=torch.bfloat16) * 0.05)(B, S, D)),
            "wqkv": _w((lambda *s: torch.randn(*s, dtype=torch.bfloat16) * 0.2)(D, 3 * D)),
            "w_phi": _w((lambda *s: torch.randn(*s, dtype=torch.bfloat16) * 0.2)(H, Dh, Dh) * (Dh ** -0.5)),
            "wo": _w((lambda *s: torch.randn(*s, dtype=torch.bfloat16) * 0.05)(D, D)),
        }
    _A_in = _A_setup()

    def _B_setup():
        B, S, D, F = 1, 2048, 512, 1376
        return {
            "x":  _w((lambda *s: torch.randn(*s, dtype=torch.bfloat16) * 0.05)(B, S, D)),
            "w1": _w((lambda *s: torch.randn(*s, dtype=torch.bfloat16) * 3.2)(D, D) * (D ** -0.5)),
            "w2": _w((lambda *s: torch.randn(*s, dtype=torch.bfloat16) * 3.2)(D, D) * (D ** -0.5)),
            "w3": _w((lambda *s: torch.randn(*s, dtype=torch.bfloat16) * 3.2)(D, F) * (D ** -0.5)),
            "w4": _w((lambda *s: torch.randn(*s, dtype=torch.bfloat16) * 3.2)(F, D) * (F ** -0.5)),
        }
    _B_in = _B_setup()

    return {
        "A_x": _A_in["x"],
        "A_wqkv": _A_in["wqkv"],
        "A_w_phi": _A_in["w_phi"],
        "A_wo": _A_in["wo"],
        "B_x": _B_in["x"],
        "B_w1": _B_in["w1"],
        "B_w2": _B_in["w2"],
        "B_w3": _B_in["w3"],
        "B_w4": _B_in["w4"],
    }

def reference(A_x, A_wqkv, A_w_phi, A_wo, B_x, B_w1, B_w2, B_w3, B_w4):
    def _A_ref(x, wqkv, w_phi, wo):
        B, S, D = x.shape
        H = 32; Dh = D // H
        qkv = (lambda x, *d: x.permute(*d))((x @ wqkv).reshape(B, S, 3, H, Dh), 2, 0, 3, 1, 4)
        q, k, v = qkv[0], qkv[1], qkv[2]
        pq = torch.einsum("bhsd,hdf->bhsf", q, w_phi)
        pk = torch.einsum("bhsd,hdf->bhsf", k, w_phi)
        phi_q = torch.concatenate([_softmax(pq, axis=-1), _softmax(-pq, axis=-1)], axis=-1)
        phi_k = torch.concatenate([_softmax(pk, axis=-1), _softmax(-pk, axis=-1)], axis=-1)
        kv = torch.einsum("bhsf,bhsd->bhfd", phi_k, v)
        z  = torch.einsum("bhsf->bhf", phi_k)
        num = torch.einsum("bhqf,bhfd->bhqd", phi_q, kv)
        den = torch.einsum("bhqf,bhf->bhq", phi_q, z)[..., None] + 1e-6
        o = num / den
        return (lambda x, *d: x.permute(*d))(o, 0, 2, 1, 3).reshape(B, S, D) @ wo

    def _B_ref(x, w1, w2, w3, w4):
        B, S, D = x.shape
        h = _gelu(_layernorm(x, axis=-1) @ w1)
        c = D // 4
        g0 = _pad(h[:, :, 0*c:1*c], ((0, 0), (1, 0), (0, 0)))[:, :S, :]
        g1 = _pad(h[:, :, 1*c:2*c], ((0, 0), (0, 1), (0, 0)))[:, 1:, :]
        g2 = _pad(h[:, :, 2*c:3*c], ((0, 0), (2, 0), (0, 0)))[:, :S, :]
        g3 = _pad(h[:, :, 3*c:   ], ((0, 0), (0, 2), (0, 0)))[:, 2:, :]
        hs = torch.concatenate([g0, g1, g2, g3], axis=-1) @ w2
        x1 = x + hs
        h2 = _gelu(_layernorm(x1, axis=-1) @ w3) @ w4
        return x1 + h2

    x = A_x
    x = x + _A_ref(_layernorm(x, axis=-1), A_wqkv, A_w_phi, A_wo)
    x = x + _B_ref(_layernorm(x, axis=-1), B_w1, B_w2, B_w3, B_w4)
    x = x + _A_ref(_layernorm(x, axis=-1), A_wqkv, A_w_phi, A_wo)
    x = x + _B_ref(_layernorm(x, axis=-1), B_w1, B_w2, B_w3, B_w4)
    return x
```

```python
import re

REG_RE = re.compile(r'^(-|abs\()?\s*([vsa])(?:(\d+)|\[(\d+):(\d+)\])\)?$')

def parse_reg(tok):
    tok = tok.strip()
    if tok in ('vcc',): return [('s', 106), ('s', 107)]
    if tok == 'vcc_lo': return [('s', 106)]
    if tok == 'vcc_hi': return [('s', 107)]
    if tok == 'exec': return [('s', 126), ('s', 127)]
    if tok == 'm0': return [('s', 124)]
    m = REG_RE.match(tok)
    if not m: return []
    k = m.group(2)
    if m.group(3) is not None:
        return [(k, int(m.group(3)))]
    return [(k, i) for i in range(int(m.group(4)), int(m.group(5)) + 1)]

TRANS = ('v_exp_f32', 'v_log_f32', 'v_rcp_f32', 'v_rsq_f32', 'v_sqrt_f32', 'v_sin_f32', 'v_cos_f32')

class Ins:
    __slots__ = ('text', 'op', 'dst', 'src', 'cls', 'dpp', 'mfma_abc', 'states', 'wide_store')
    def __init__(self, text):
        self.text = text
        t = text.split(';')[0].strip()
        self.dst = []; self.src = []; self.cls = 'other'; self.dpp = False; self.mfma_abc = None
        self.states = 1; self.wide_store = False
        if not t or t.endswith(':') or t.startswith('.'):
            self.op = ''; self.cls = 'label' if t.endswith(':') else 'dir'; self.states = 0
            return
        parts = t.split(None, 1)
        op = parts[0]; self.op = op
        rest = parts[1] if len(parts) > 1 else ''
        rest_nm = re.sub(r'\b(op_sel|op_sel_hi|neg_lo|neg_hi|quad_perm):\[[^\]]*\]', '', rest)
        ops = [o.strip() for o in rest_nm.split(',')]
        mods = ''
        if ops:
            last = ops[-1].split()
            if last:
                ops[-1] = last[0]; mods = ' '.join(last[1:])
        if 'row_' in rest or 'quad_perm' in rest or op.endswith('_dpp'): self.dpp = True
        regs = [parse_reg(o) for o in ops]
        flat = lambda L: [r for x in L for r in x]
        if op == 's_nop':
            self.cls = 'salu'; self.states = int(ops[0], 0) + 1; return
        if op.startswith('v_mfma'):
            self.cls = 'mfma'; self.dst = regs[0]; self.src = flat(regs[1:]); self.mfma_abc = (regs[1], regs[2], regs[3])
        elif op.startswith('v_'):
            self.cls = 'trans' if op.replace('_e32', '').replace('_e64', '') in TRANS else 'valu'
            if op.startswith('v_permlane'):
                self.dst = regs[0] + regs[1]; self.src = regs[0] + regs[1]
            elif op.startswith('v_cmp'):
                self.dst = regs[0]; self.src = flat(regs[1:])
            elif '_co_' in op:
                self.dst = regs[0] + regs[1]; self.src = flat(regs[2:])
            else:
                self.dst = regs[0]; self.src = flat(regs[1:])
                if op.startswith(('v_fmac', 'v_dot2c', 'v_pk_fmac')): self.src += regs[0]
                if op.startswith('v_cndmask') and len(ops) == 3: self.src += parse_reg('vcc')
        elif op.startswith(('buffer_store', 'global_store', 'ds_write', 'buffer_atomic', 'global_atomic')):
            self.cls = 'vmem' if not op.startswith('ds_') else 'lds'
            self.src = flat(regs)
            if 'x4' in op or 'x3' in op or 'b128' in op or 'b96' in op:
                self.wide_store = not op.startswith('ds_')
        elif op.startswith(('buffer_load', 'global_load')):
            self.cls = 'vmem'
            if ' lds' in (' ' + mods) or op.startswith('global_load_lds'):
                self.src = flat(regs) + [('s', 124)]; self.cls = 'dma'
            else:
                self.dst = regs[0]; self.src = flat(regs[1:])
                if 'd16' in op: self.src += regs[0]
        elif op.startswith('ds_'):
            self.cls = 'lds'; self.dst = regs[0]; self.src = flat(regs[1:])
        elif op.startswith('s_'):
            self.cls = 'salu'
            if op.startswith(('s_cmp', 's_waitcnt', 's_barrier', 's_branch', 's_cbranch', 's_endpgm', 's_setprio', 's_sleep')):
                self.src = flat(regs)
            elif op.startswith(('s_load', 's_buffer_load')):
                self.cls = 'smem'; self.dst = regs[0]; self.src = flat(regs[1:])
            else:
                self.dst = regs[0]; self.src = flat(regs[1:])
                if 'saveexec' in op: self.dst = self.dst + parse_reg('exec')

def required_gap(p, c):
    need = 0
    pd = set(p.dst); cs = set(c.src); cd = set(c.dst)
    pv = {r for r in pd if r[0] in 'va'}
    ps = {r for r in pd if r[0] == 's'}
    if p.cls in ('valu', 'trans'):
        if c.cls == 'mfma' and pv & cs: need = max(need, 2)
        if p.cls == 'trans' and c.cls in ('valu', 'mfma', 'vmem', 'lds', 'dma') and pv & cs: need = max(need, 1)
        if c.cls in ('valu', 'trans') and c.dpp and pv & cs: need = max(need, 2)
        if c.op.startswith('v_permlane') and pv & cs: need = max(need, 2)
        if c.op.startswith(('v_readfirstlane', 'v_readlane')) and pv & cs: need = max(need, 1)
        if ps:
            if c.cls in ('valu', 'trans') and ps & cs: need = max(need, 2)
            if c.cls in ('vmem', 'dma') and ps & cs: need = max(need, 5)
            if c.op.startswith(('v_readlane', 'v_writelane')) and ps & cs: need = max(need, 4)
    if p.cls == 'mfma':
        big = '32x32' in p.op
        if c.cls == 'mfma':
            a, b, cc = c.mfma_abc
            if pd & (set(a) | set(b)): need = max(need, 12 if big else 8)
            if pd & set(cc):
                if set(cc) == pd and c.op == p.op: pass
                else: need = max(need, 10 if big else 6)
            elif pd & cd: need = max(need, 10 if big else 6)
        else:
            if pd & (cs | cd) and c.cls in ('valu', 'trans', 'vmem', 'lds', 'dma'): need = max(need, 12 if big else 8)
        if c.cls in ('valu', 'trans') and set(p.mfma_abc[2]) & cd: need = max(need, 7 if big else 3)
    if p.cls == 'salu' and ('s', 124) in pd and c.cls == 'dma': need = max(need, 1)
    if p.wide_store and c.cls in ('valu', 'trans', 'mfma') and set(p.src) & cd: need = max(need, 2)
    if p.wide_store and c.cls in ('vmem', 'lds') and set(p.src) & cd: need = max(need, 1)
    return need

class Asm:
    def __init__(self):
        self.ins = []
    def __call__(self, text):
        for line in text.strip('\n').split('\n'):
            line = line.strip()
            if line: self.ins.append(Ins(line))
    def label(self, name):
        self.ins.append(Ins(name + ':'))
    def finalize(self):
        out = []
        W = 20
        for c in self.ins:
            if c.cls in ('label', 'dir'):
                out.append(c); continue
            dist = 0; need = 0
            for p in reversed(out):
                if p.cls in ('label', 'dir'): continue
                g = required_gap(p, c)
                if g > dist: need = max(need, g - dist)
                dist += p.states
                if dist >= W: break
            while need > 0:
                n = min(need, 16)
                out.append(Ins('s_nop %d' % (n - 1))); need -= n
            out.append(c)
        return out
    def text(self):
        res = []
        for i in self.finalize():
            if i.cls == 'label': res.append(i.text)
            else: res.append('  ' + i.text)
        return '\n'.join(res) + '\n'

def vr(a, n=1):
    return 'v%d' % a if n == 1 else 'v[%d:%d]' % (a, a + n - 1)
def sr(a, n=1):
    return 's%d' % a if n == 1 else 's[%d:%d]' % (a, a + n - 1)
```

```python
import sys
from asmlib import Asm, vr, sr

NAME = "interleave_layers__linear_kernel_hedgehog__mixer_s_mlp__prompt"
S, D, F, H = 2048, 512, 1376, 32

WS_XA, WS_XB, WS_H, WS_X1, WS_XN, WS_H3, WS_PHIQ = 0x0, 0x200000, 0x400000, 0x600000, 0x800000, 0xA00000, 0x1000000
WS_KV = 0x1400000
KV_STRIDE = 0x20000
KVZ_OFF = 0x10000

P_X, P_WQKV, P_WPHI, P_WO, P_BX, P_W1, P_W2, P_W3, P_W4, P_OUT, P_DBG, P_WS = [16 + 2 * i for i in range(12)]
SRD_A, SRD_B, SRD_O, SRD_X1, SRD_X2, SRD_X3 = 40, 44, 48, 52, 56, 60
S_RT, S_CT, S_W, S_LAYER = 3, 4, 5, 15

LOG2E = 1.4426950408889634
import struct
def f2u(x): return struct.unpack('<I', struct.pack('<f', x))[0]
def lit(x): return '0x%08x' % f2u(x)

def prologue(a, nwg):
    a(f"""
    s_cmp_ge_u32 s2, {nwg}
    s_cbranch_scc1 L_end
    s_load_dwordx16 s[16:31], s[0:1], 0
    s_load_dwordx8 s[32:39], s[0:1], 64
    v_and_b32 v1, 63, v0
    v_lshrrev_b32 v4, 6, v0
    v_and_b32 v2, 15, v0
    v_readfirstlane_b32 s{S_W}, v4
    v_lshrrev_b32 v3, 4, v1
    s_waitcnt lgkmcnt(0)
    """)

def srd(a, dst, base, off, size):
    if off:
        a(f"s_add_u32 s{dst}, s{base}, {off}")
        a(f"s_addc_u32 s{dst+1}, s{base+1}, 0")
    else:
        a(f"s_mov_b32 s{dst}, s{base}")
        a(f"s_mov_b32 s{dst+1}, s{base+1}")
    a(f"s_mov_b32 s{dst+2}, {size}")
    a(f"s_mov_b32 s{dst+3}, 0x00020000")

def srd_sel(a, dst, base0, off0, base1, off1, size):
    a(f"s_add_u32 s6, s{base0}, {off0}")
    a(f"s_addc_u32 s7, s{base0+1}, 0")
    a(f"s_add_u32 s8, s{base1}, {off1}")
    a(f"s_addc_u32 s9, s{base1+1}, 0")
    a(f"s_cmp_eq_u32 s{S_LAYER}, 0")
    a(f"s_cselect_b32 s{dst}, s6, s8")
    a(f"s_cselect_b32 s{dst+1}, s7, s9")
    a(f"s_mov_b32 s{dst+2}, {size}")
    a(f"s_mov_b32 s{dst+3}, 0x00020000")

def decode_wg(a, rt_per_xcd):
    sh = {2: 1, 4: 2}[rt_per_xcd]
    a(f"""
    s_and_b32 s6, s2, 7
    s_lshr_b32 s7, s2, 3
    s_lshl_b32 s6, s6, {sh}
    s_and_b32 s8, s7, {rt_per_xcd - 1}
    s_add_u32 s{S_RT}, s6, s8
    s_lshr_b32 s{S_CT}, s7, {sh}
    """)

def dma128(a, vtmp, voff, nrows, rs, s_col_bytes, lds_base, swz, t0=0, nt=None, srdb=SRD_B, setup=True):
    if setup:
        a(f"v_lshrrev_b32 v{vtmp}, 3, v1")
        a(f"v_and_b32 v{voff}, 7, v1")
        if swz == 'std':
            a(f"v_and_b32 v{vtmp+1}, 2, v{vtmp}")
            a(f"s_and_b32 s6, s{S_W}, 1")
            a(f"s_lshl_b32 s6, s6, 2")
            a(f"v_or_b32 v{vtmp+1}, s6, v{vtmp+1}")
        else:
            a(f"v_and_b32 v{vtmp+1}, 6, v{vtmp}")
        a(f"v_xor_b32 v{voff}, v{voff}, v{vtmp+1}")
        a(f"v_lshlrev_b32 v{voff}, 4, v{voff}")
        a(f"s_mov_b32 s6, {rs}")
        a(f"v_mul_lo_u32 v{vtmp}, v{vtmp}, s6")
        a(f"v_add_u32 v{voff}, v{voff}, v{vtmp}")
    a(f"s_mul_i32 s10, s{S_W}, {8 * rs}")
    a(f"s_add_u32 s10, s10, s{s_col_bytes}")
    a(f"s_lshl_b32 s11, s{S_W}, 10")
    if t0:
        a(f"s_add_u32 s10, s10, {t0 * 8 * rs}")
    if lds_base: a(f"s_add_u32 s11, s11, {lds_base}")
    n = (nrows // 8) // 4 if nt is None else nt
    for i in range(n):
        a(f"s_mov_b32 m0, s11")
        if i: a(f"s_add_u32 s10, s10, {32 * rs}")
        else: a("s_nop 0")
        a(f"buffer_load_dwordx4 v{voff}, s[{srdb}:{srdb+3}], s10 offen lds")
        if i + 1 < n: a(f"s_add_u32 s11, s11, 4096")
    return n

def dma64(a, vtmp, voff, rs, col_sgprs, lds_base):
    a(f"v_lshrrev_b32 v{vtmp}, 2, v1")
    a(f"v_and_b32 v{voff}, 3, v1")
    a(f"v_lshrrev_b32 v{vtmp+1}, 5, v1")
    a(f"v_lshlrev_b32 v{vtmp+1}, 1, v{vtmp+1}")
    a(f"v_xor_b32 v{voff}, v{voff}, v{vtmp+1}")
    a(f"v_lshlrev_b32 v{voff}, 4, v{voff}")
    a(f"s_mov_b32 s6, {rs}")
    a(f"v_mul_lo_u32 v{vtmp}, v{vtmp}, s6")
    a(f"v_add_u32 v{voff}, v{voff}, v{vtmp}")
    cnt = 0
    for j in range(3):
        a(f"s_mul_i32 s10, s{S_W}, {16 * rs}")
        a(f"s_add_u32 s10, s10, s{col_sgprs[j]}")
        a(f"s_lshl_b32 s11, s{S_W}, 10")
        a(f"s_add_u32 s11, s11, {lds_base + j * 32768}")
        for i in range(8):
            a(f"s_mov_b32 m0, s11")
            if i: a(f"s_add_u32 s10, s10, {64 * rs}")
            else: a("s_nop 0")
            a(f"buffer_load_dwordx4 v{voff}, s[{SRD_B}:{SRD_B+3}], s10 offen lds")
            if i < 7: a(f"s_add_u32 s11, s11, 4096")
            cnt += 1
    return cnt

def tr_addrs128(a, dst, vt, swz):
    a(f"v_lshrrev_b32 v{vt}, 2, v2")
    a(f"v_and_b32 v{vt+1}, 3, v2")
    if swz == 'std':
        a(f"v_lshl_add_u32 v{vt+2}, v3, 3, v{vt}")
        a(f"v_and_b32 v{vt+3}, 2, v{vt}")
        a(f"v_and_b32 v{vt+4}, 1, v3")
        a(f"v_lshl_or_b32 v{vt+3}, v{vt+4}, 2, v{vt+3}")
    else:
        a(f"v_lshl_add_u32 v{vt+2}, v3, 2, v{vt}")
        a(f"v_and_b32 v{vt+3}, 6, v{vt+2}")
    a(f"v_lshlrev_b32 v{vt+2}, 7, v{vt+2}")
    a(f"v_and_b32 v{vt+4}, 1, v{vt+1}")
    a(f"v_lshl_add_u32 v{vt+2}, v{vt+4}, 3, v{vt+2}")
    a(f"v_lshrrev_b32 v{vt+1}, 1, v{vt+1}")
    for nt in range(4):
        a(f"v_or_b32 v{vt+4}, {2*nt}, v{vt+1}")
        a(f"v_xor_b32 v{vt+4}, v{vt+4}, v{vt+3}")
        a(f"v_lshl_add_u32 v{dst+nt}, v{vt+4}, 4, v{vt+2}")

def tr_addrs64(a, dst, vt):
    a(f"v_lshrrev_b32 v{vt}, 2, v2")
    a(f"v_and_b32 v{vt+1}, 3, v2")
    a(f"v_lshl_add_u32 v{vt+2}, v3, 3, v{vt}")
    a(f"v_and_b32 v{vt+3}, 1, v3")
    a(f"v_lshlrev_b32 v{vt+3}, 1, v{vt+3}")
    a(f"v_lshlrev_b32 v{vt+2}, 6, v{vt+2}")
    a(f"v_and_b32 v{vt+4}, 1, v{vt+1}")
    a(f"v_lshl_add_u32 v{vt+2}, v{vt+4}, 3, v{vt+2}")
    a(f"v_lshrrev_b32 v{vt+1}, 1, v{vt+1}")
    for n2 in range(2):
        a(f"v_or_b32 v{vt+4}, {2*n2}, v{vt+1}")
        a(f"v_xor_b32 v{vt+4}, v{vt+4}, v{vt+3}")
        a(f"v_lshl_add_u32 v{dst+n2}, v{vt+4}, 4, v{vt+2}")
    for j in (1, 2):
        for n2 in range(2):
            a(f"v_add_u32 v{dst+2*j+n2}, {j*32768}, v{dst+n2}")

def gemm(a, steps, nnt, nst, addr_of, xreg, acc, bbuf, orient, first_zero=True, pre_issue=None, hooks=None):
    def reads(i):
        ks = steps[i]; buf = bbuf + (i % 2) * nnt * 4
        for nt in range(nnt):
            for hh in range(2):
                r, imm = addr_of(ks, nt, hh)
                a(f"ds_read_b64_tr_b16 {vr(buf + nt*4 + hh*2, 2)}, v{r} offset:{imm}")
    reads(0)
    for i, ks in enumerate(steps):
        if hooks and i in hooks:
            hooks[i]()
        if i + 1 < len(steps) and not (hooks and (i + 1) in hooks and hooks.get('defer')):
            reads(i + 1)
            a(f"s_waitcnt lgkmcnt({2*nnt})")
        else:
            a("s_waitcnt lgkmcnt(0)")
        buf = bbuf + (i % 2) * nnt * 4
        for nt in range(nnt):
            for st in range(nst):
                c = vr(acc(st, nt), 4)
                cin = '0' if (first_zero and i == 0) else c
                w = vr(buf + nt * 4, 4); x = vr(xreg(ks, st), 4)
                if orient[nt] == 'T':
                    a(f"v_mfma_f32_16x16x32_bf16 {c}, {w}, {x}, {cin}")
                else:
                    a(f"v_mfma_f32_16x16x32_bf16 {c}, {x}, {w}, {cin}")

def setup_consts(a):
    for i in range(4): a(f"v_mov_b32 v{8+i}, 0x3f803f80")
    a("v_lshlrev_b32 v4, 2, v3")
    for r in range(4):
        a(f"v_add_u32 v5, {r}, v4")
        a(f"v_cmp_eq_u32 s[{64+2*r}:{65+2*r}], v5, v2")

def xlane_sum(a, v, t, op='v_add_f32'):
    a(f"v_mov_b32 v{t}, v{v}")
    a(f"v_permlane16_swap_b32 v{v}, v{t}")
    a(f"{op} v{v}, v{v}, v{t}")
    a(f"v_mov_b32 v{t}, v{v}")
    a(f"v_permlane32_swap_b32 v{v}, v{t}")
    a(f"{op} v{v}, v{v}, v{t}")

def bf16r(a, dst, src, t):
    a(f"v_cvt_pk_bf16_f32 v{t}, v{src}, v{src}")
    a(f"v_lshlrev_b32 v{dst}, 16, v{t}")

def layernorm(a, X, nk, rout, T, materialize):
    acc = T; G = T + 4; mean = T + 8; mb = T + 10; dl = T + 9; t0 = T + 12
    for j in range(nk):
        a(f"v_mfma_f32_16x16x32_bf16 {vr(acc,4)}, v[8:11], {vr(X+4*j,4)}, {'0' if j == 0 else vr(acc,4)}")
    a(f"v_mul_f32 v{mean}, {lit(1.0/512)}, v{acc}")
    bf16r(a, mb, mean, t0)
    a(f"v_mov_b32 v{mb+1}, v{mb}")
    a(f"v_sub_f32 v{dl}, v{mean}, v{mb}")
    for p in range(nk * 4):
        t = t0 + (p % 2) * 2
        a(f"v_lshlrev_b32 v{t}, 16, v{X+p}")
        a(f"v_and_b32 v{t+1}, 0xffff0000, v{X+p}")
        a(f"v_pk_add_f32 {vr(t,2)}, {vr(t,2)}, {vr(mb,2)} neg_lo:[0,1] neg_hi:[0,1]")
        a(f"v_cvt_pk_bf16_f32 v{X+p}, v{t}, v{t+1}")
    for j in range(nk):
        a(f"v_mfma_f32_16x16x32_bf16 {vr(G,4)}, {vr(X+4*j,4)}, {vr(X+4*j,4)}, {'0' if j == 0 else vr(G,4)}")
    g = mean
    a(f"v_cndmask_b32 v{g}, 0, v{G}, s[64:65]")
    for r in range(1, 4):
        a(f"v_cndmask_b32 v{g}, v{g}, v{G+r}, s[{64+2*r}:{65+2*r}]")
    xlane_sum(a, g, t0)
    a(f"v_mul_f32 v{g}, {lit(1.0/512)}, v{g}")
    a(f"v_fma_f32 v{g}, -v{dl}, v{dl}, v{g}")
    a(f"v_max_f32 v{g}, 0, v{g}")
    bf16r(a, g, g, t0)
    a(f"v_add_f32 v{g}, {lit(1e-5)}, v{g}")
    bf16r(a, g, g, t0)
    a(f"v_sqrt_f32 v{g}, v{g}")
    bf16r(a, g, g, t0)
    a(f"v_rcp_f32 v{rout}, v{g}")
    if materialize:
        a(f"v_mov_b32 v{mb}, v{rout}")
        a(f"v_mov_b32 v{mb+1}, v{rout}")
        for p in range(nk * 4):
            t = t0 + (p % 2) * 2
            a(f"v_lshlrev_b32 v{t}, 16, v{X+p}")
            a(f"v_and_b32 v{t+1}, 0xffff0000, v{X+p}")
            a(f"v_pk_mul_f32 {vr(t,2)}, {vr(t,2)}, {vr(mb,2)}")
            a(f"v_cvt_pk_bf16_f32 v{X+p}, v{t}, v{t+1}")

GELU_C0 = -2.0 * 0.7978845608028654 * LOG2E
GELU_C1 = GELU_C0 * 0.044715
def gelu(a, x, t, vc0):
    a(f"v_mul_f32 v{t}, v{x}, v{x}")
    a(f"v_fmamk_f32 v{t}, v{t}, {lit(GELU_C1)}, v{vc0}")
    a(f"v_mul_f32 v{t}, v{t}, v{x}")
    a(f"v_exp_f32 v{t}, v{t}")
    a(f"v_add_f32 v{t}, 1.0, v{t}")
    a(f"v_rcp_f32 v{t}, v{t}")
    a(f"v_mul_f32 v{x}, v{x}, v{t}")

def unpack2(a, lo, hi, p):
    a(f"v_lshlrev_b32 v{lo}, 16, v{p}")
    a(f"v_and_b32 v{hi}, 0xffff0000, v{p}")

def load_afrags(a, voff, srdx, X, nk, j0=0):
    for j in range(nk):
        a(f"buffer_load_dwordx4 {vr(X+4*j,4)}, v{voff}, s[{srdx}:{srdx+3}], 0 offen offset:{(j0+j)*64}")


def k0_zero(a):
    prologue(a, 34)
    srd(a, SRD_O, P_WS, WS_KV, 2 * KV_STRIDE)
    a(f"""
    s_cmp_ge_u32 s2, 17
    s_cselect_b32 s6, {KV_STRIDE - 17 * 4096}, 0
    s_lshl_b32 s7, s2, 12
    s_add_u32 s6, s6, s7
    v_lshlrev_b32 v4, 4, v0
    v_mov_b32 v8, 0
    v_mov_b32 v9, 0
    v_mov_b32 v10, 0
    v_mov_b32 v11, 0
    buffer_store_dwordx4 v[8:11], v4, s[{SRD_O}:{SRD_O+3}], s6 offen
    """)

def row_voff(a, dst, rows_per_wg, rows_per_wave, rs, extra_rows=0, with_g=16, st=0):
    a(f"s_mul_i32 s6, s{S_RT}, {rows_per_wg}")
    a(f"s_mul_i32 s7, s{S_W}, {rows_per_wave}")
    a(f"s_add_u32 s6, s6, s7")
    if st * 16 + extra_rows:
        a(f"s_add_u32 s6, s6, {(st * 16 + extra_rows) & 0xffffffff}")
    a(f"v_add_u32 v{dst}, s6, v2")
    a(f"s_mov_b32 s7, {rs}")
    a(f"v_mul_lo_u32 v{dst}, v{dst}, s7")
    sh = {16: 4, 8: 3}[with_g]
    a(f"v_lshl_add_u32 v{dst}, v3, {sh}, v{dst}")

def std_addr(ks, nt, hh): return (12 + nt, ks * 4096 + hh * 512)

def k3_ln_w1(a):
    prologue(a, 256); decode_wg(a, 4)
    srd(a, SRD_A, P_WS, WS_XA, 0x200000)
    srd(a, SRD_B, P_W1, 0, 512 * 1024)
    srd(a, SRD_O, P_WS, WS_H, 0x200000)
    srd(a, SRD_X1, P_WS, WS_XB, 0x200000)
    X = 80
    row_voff(a, 16, 64, 16, 1024)
    load_afrags(a, 16, SRD_A, X, 16)
    a(f"s_lshl_b32 s12, s{S_CT}, 7")
    dma128(a, 24, 17, 512, 1024, 12, 0, 'std')
    setup_consts(a); tr_addrs128(a, 12, 24, 'std')
    row_voff(a, 18, 64, 16, 1024, with_g=8)
    a(f"v_add_u32 v18, s12, v18")
    a(f"v_mov_b32 v20, {lit(GELU_C0)}")
    a("s_waitcnt vmcnt(16)")
    layernorm(a, X, 16, 19, 32, True)
    for c in range(8):
        a(f"s_cmp_lg_u32 s{S_CT}, {c}")
        a(f"s_cbranch_scc1 L_k3_xb{c}")
        for j in (2 * c, 2 * c + 1):
            a(f"buffer_store_dwordx4 {vr(X+4*j,4)}, v16, s[{SRD_X1}:{SRD_X1+3}], 0 offen offset:{j*64}")
        a.label(f"L_k3_xb{c}")
    layernorm(a, X, 16, 19, 32, False)
    a("s_waitcnt vmcnt(0)")
    a("s_barrier")
    gemm(a, list(range(16)), 4, 1, std_addr, lambda ks, st: X + 4 * ks, lambda st, nt: 32 + 4 * nt, 48, 'TTTT')
    for nt in range(4):
        c = 32 + 4 * nt
        for r in range(4): a(f"v_mul_f32 v{c+r}, v{c+r}, v19")
        a(f"v_cvt_pk_bf16_f32 v24, v{c}, v{c+1}")
        a(f"v_cvt_pk_bf16_f32 v25, v{c+2}, v{c+3}")
        unpack2(a, c, c + 1, 24); unpack2(a, c + 2, c + 3, 25)
        for r in range(4): gelu(a, c + r, 26 + r, 20)
        a(f"v_cvt_pk_bf16_f32 v{c}, v{c}, v{c+1}")
        a(f"v_cvt_pk_bf16_f32 v{c+1}, v{c+2}, v{c+3}")
        a(f"buffer_store_dwordx2 {vr(c,2)}, v18, s[{SRD_O}:{SRD_O+3}], 0 offen offset:{nt*32}")

def k4_shift_w2(a):
    prologue(a, 256); decode_wg(a, 4)
    srd(a, SRD_A, P_WS, WS_H, 0x200000)
    srd(a, SRD_B, P_W2, 0, 512 * 1024)
    srd(a, SRD_O, P_WS, WS_X1, 0x200000)
    srd(a, SRD_X1, P_WS, WS_XB, 0x200000)
    X = 80
    for q, sh in enumerate((-1, 1, -2, 2)):
        row_voff(a, 20 + q, 64, 16, 1024, extra_rows=sh)
    for j in range(16):
        a(f"buffer_load_dwordx4 {vr(X+4*j,4)}, v{20 + j//4}, s[{SRD_A}:{SRD_A+3}], 0 offen offset:{j*64}")
    a(f"s_lshl_b32 s12, s{S_CT}, 7")
    row_voff(a, 18, 64, 16, 1024, with_g=8)
    a(f"v_add_u32 v18, s12, v18")
    XB = 144
    for nt in range(4):
        a(f"buffer_load_dwordx2 {vr(XB+2*nt,2)}, v18, s[{SRD_X1}:{SRD_X1+3}], 0 offen offset:{nt*32}")
    dma128(a, 24, 17, 512, 1024, 12, 0, 'std')
    tr_addrs128(a, 12, 24, 'std')
    a("s_waitcnt vmcnt(0)")
    a("s_barrier")
    gemm(a, list(range(16)), 4, 1, std_addr, lambda ks, st: X + 4 * ks, lambda st, nt: 32 + 4 * nt, 48, 'TTTT')
    for nt in range(4):
        c = 32 + 4 * nt
        a(f"v_cvt_pk_bf16_f32 v24, v{c}, v{c+1}")
        a(f"v_cvt_pk_bf16_f32 v25, v{c+2}, v{c+3}")
        unpack2(a, c, c + 1, 24); unpack2(a, c + 2, c + 3, 25)
        unpack2(a, 26, 27, XB + 2 * nt); unpack2(a, 28, 29, XB + 2 * nt + 1)
        for r in range(4): a(f"v_add_f32 v{c+r}, v{c+r}, v{26+r}")
        a(f"v_cvt_pk_bf16_f32 v{c}, v{c}, v{c+1}")
        a(f"v_cvt_pk_bf16_f32 v{c+1}, v{c+2}, v{c+3}")
        a(f"buffer_store_dwordx2 {vr(c,2)}, v18, s[{SRD_O}:{SRD_O+3}], 0 offen offset:{nt*32}")

def sub_addr(ks, nt, hh): return (12 + nt, ks * 2048 + hh * 256)

def k5_ln_w3(a):
    prologue(a, 240); decode_wg(a, 2)
    srd(a, SRD_A, P_WS, WS_X1, 0x200000)
    srd(a, SRD_B, P_W3, 0, 512 * F * 2)
    srd(a, SRD_O, P_WS, WS_H3, S * F * 2)
    X = 128
    for st in range(2):
        row_voff(a, 18 + st, 128, 32, 1024, st=st)
        load_afrags(a, 18 + st, SRD_A, X + 64 * st, 16)
    a(f"s_mul_i32 s12, s{S_CT}, 192")
    a(f"s_add_u32 s13, s12, 64")
    a(f"s_add_u32 s14, s12, 128")
    dma64(a, 24, 20, F * 2, (12, 13, 14), 0)
    setup_consts(a); tr_addrs64(a, 12, 24)
    a(f"v_mov_b32 v23, {lit(GELU_C0)}")
    a("s_waitcnt vmcnt(40)")
    layernorm(a, X, 16, 21, 80, False)
    a("s_waitcnt vmcnt(24)")
    layernorm(a, X + 64, 16, 22, 80, False)
    for st in range(2):
        row_voff(a, 18 + st, 128, 32, F * 2, with_g=8, st=st)
        a(f"v_add_u32 v{18+st}, s12, v{18+st}")
    a("s_waitcnt vmcnt(0)")
    a("s_barrier")
    gemm(a, list(range(16)), 6, 2, sub_addr, lambda ks, st: X + 64 * st + 4 * ks, lambda st, nt: 32 + 24 * st + 4 * nt, 80, 'TTTTTT')
    for nt in range(6):
        if nt == 2:
            a(f"s_cmp_eq_u32 s{S_CT}, 14")
            a("s_cbranch_scc1 L_end")
        for st in range(2):
            c = 32 + 24 * st + 4 * nt
            for r in range(4): a(f"v_mul_f32 v{c+r}, v{c+r}, v{21+st}")
            a(f"v_cvt_pk_bf16_f32 v24, v{c}, v{c+1}")
            a(f"v_cvt_pk_bf16_f32 v25, v{c+2}, v{c+3}")
            unpack2(a, c, c + 1, 24); unpack2(a, c + 2, c + 3, 25)
            for r in range(4): gelu(a, c + r, 26 + r, 23)
            a(f"v_cvt_pk_bf16_f32 v{c}, v{c}, v{c+1}")
            a(f"v_cvt_pk_bf16_f32 v{c+1}, v{c+2}, v{c+3}")
            a(f"buffer_store_dwordx2 {vr(c,2)}, v{18+st}, s[{SRD_O}:{SRD_O+3}], 0 offen offset:{nt*32}")

def k6_w4(a):
    prologue(a, 256); decode_wg(a, 4)
    srd(a, SRD_A, P_WS, WS_H3, S * F * 2)
    srd(a, SRD_B, P_W4, 0, F * 1024)
    srd_sel(a, SRD_O, P_WS, WS_XN, P_OUT, 0, 0x200000)
    srd(a, SRD_X1, P_WS, WS_X1, 0x200000)
    srd(a, SRD_X2, P_WS, WS_XA, 0x200000)
    X = 80
    NK = 43
    row_voff(a, 16, 64, 16, F * 2)
    load_afrags(a, 16, SRD_A, X, NK)
    a(f"s_lshl_b32 s12, s{S_CT}, 7")
    dma128(a, 24, 17, 40 * 32, 1024, 12, 0, 'std')
    tr_addrs128(a, 12, 24, 'std')
    for nt in range(4):
        a(f"v_add_u32 v{20+nt}, 0x10000, v{12+nt}")
        a(f"v_add_u32 v{28+nt}, 0x20000, v{12+nt}")
    row_voff(a, 18, 64, 16, 1024, with_g=8)
    a(f"v_add_u32 v18, s12, v18")
    a("s_waitcnt vmcnt(0)")
    a("s_barrier")
    def addr(ks, nt, hh):
        slot = ks if ks < 40 else ks - 40
        base = (12, 20, 28)[slot // 16]
        return (base + nt, (slot % 16) * 4096 + hh * 512)
    acc = lambda st, nt: 32 + 4 * nt
    xr = lambda ks, st: X + 4 * ks
    gemm(a, [0, 1, 2], 4, 1, addr, xr, acc, 48, 'TTTT')
    a("s_barrier")
    dma128(a, 24, 17, 0, 1024, 12, 0, 'std', t0=160, nt=3, setup=False)
    gemm(a, list(range(3, 40)), 4, 1, addr, xr, acc, 48, 'TTTT', first_zero=False)
    R1, R2 = 80, 88
    for nt in range(4):
        a(f"buffer_load_dwordx2 {vr(R1+2*nt,2)}, v18, s[{SRD_X1}:{SRD_X1+3}], 0 offen offset:{nt*32}")
        a(f"buffer_load_dwordx2 {vr(R2+2*nt,2)}, v18, s[{SRD_X2}:{SRD_X2+3}], 0 offen offset:{nt*32}")
    a("s_waitcnt vmcnt(8)")
    a("s_barrier")
    gemm(a, [40, 41, 42], 4, 1, addr, xr, acc, 48, 'TTTT', first_zero=False)
    a("s_waitcnt vmcnt(0)")
    for nt in range(4):
        c = 32 + 4 * nt
        a(f"v_cvt_pk_bf16_f32 v24, v{c}, v{c+1}")
        a(f"v_cvt_pk_bf16_f32 v25, v{c+2}, v{c+3}")
        unpack2(a, c, c + 1, 24); unpack2(a, c + 2, c + 3, 25)
        unpack2(a, 4, 5, R1 + 2 * nt); unpack2(a, 6, 7, R1 + 2 * nt + 1)
        for r in range(4): a(f"v_add_f32 v{c+r}, v{c+r}, v{4+r}")
        a(f"v_cvt_pk_bf16_f32 v24, v{c}, v{c+1}")
        a(f"v_cvt_pk_bf16_f32 v25, v{c+2}, v{c+3}")
        unpack2(a, c, c + 1, 24); unpack2(a, c + 2, c + 3, 25)
        unpack2(a, 4, 5, R2 + 2 * nt); unpack2(a, 6, 7, R2 + 2 * nt + 1)
        for r in range(4): a(f"v_add_f32 v{c+r}, v{c+r}, v{4+r}")
        a(f"v_cvt_pk_bf16_f32 v{c}, v{c}, v{c+1}")
        a(f"v_cvt_pk_bf16_f32 v{c+1}, v{c+2}, v{c+3}")
        a(f"buffer_store_dwordx2 {vr(c,2)}, v18, s[{SRD_O}:{SRD_O+3}], 0 offen offset:{nt*32}")

def dpp_allreduce(a, regs, op):
    for sh in (8, 4, 2, 1):
        for r in regs:
            a(f"{op}_dpp v{r}, v{r}, v{r} row_ror:{sh} row_mask:0xf bank_mask:0xf")

def k1_qkv(a):
    prologue(a, 256); decode_wg(a, 2)
    srd_sel(a, SRD_A, P_X, 0, P_WS, WS_XN, 0x200000)
    srd(a, SRD_B, P_WQKV, 0, 512 * 1536 * 2)
    srd(a, SRD_O, P_WS, WS_PHIQ, 0x400000)
    srd(a, SRD_X1, P_WPHI, 0, 32 * 512)
    a(f"s_mul_i32 s6, s{S_LAYER}, {KV_STRIDE}")
    a(f"s_add_u32 s6, s6, {WS_KV}")
    a(f"s_add_u32 s{SRD_X2}, s{P_WS}, s6")
    a(f"s_addc_u32 s{SRD_X2+1}, s{P_WS+1}, 0")
    a(f"s_mov_b32 s{SRD_X2+2}, {KV_STRIDE}")
    a(f"s_mov_b32 s{SRD_X2+3}, 0x00020000")
    X = 128
    for st in range(2):
        row_voff(a, 18 + st, 128, 32, 1024, st=st)
        load_afrags(a, 18 + st, SRD_A, X + 64 * st, 16)
    a(f"v_lshlrev_b32 v4, 7, v3")
    a(f"v_lshl_add_u32 v4, v2, 1, v4")
    a(f"s_lshl_b32 s6, s{S_CT}, 10")
    for h in range(2):
        for jj in range(4):
            a(f"buffer_load_ushort v{32+4*h+jj}, v4, s[{SRD_X1}:{SRD_X1+3}], s6 offen offset:{h*512 + jj*32}")
    a(f"s_lshl_b32 s12, s{S_CT}, 6")
    a(f"s_add_u32 s13, s12, 1024")
    a(f"s_add_u32 s14, s12, 2048")
    dma64(a, 24, 20, 3072, (12, 13, 14), 0)
    setup_consts(a); tr_addrs64(a, 12, 23)
    a("s_waitcnt vmcnt(48)")
    layernorm(a, X, 16, 21, 80, False)
    a("s_waitcnt vmcnt(32)")
    layernorm(a, X + 64, 16, 22, 80, False)
    a("v_lshlrev_b32 v23, 4, v3")
    RR = (24, 4)
    for st in range(2):
        for r in range(4):
            a(f"v_add_u32 v{RR[st]+r}, {4*r}, v23")
        for r in range(4):
            a(f"ds_bpermute_b32 v{RR[st]+r}, v{RR[st]+r}, v{21+st}")
    for st in range(2):
        row_voff(a, 18 + st, 128, 32, 2048, with_g=8, st=st)
        a(f"s_lshl_b32 s6, s{S_CT}, 7")
        a(f"v_add_u32 v{18+st}, s6, v{18+st}")
    a("s_waitcnt vmcnt(0) lgkmcnt(0)")
    for h in range(2):
        for jj in range(2):
            a(f"v_lshl_or_b32 v{28+2*h+jj}, v{32+4*h+2*jj+1}, 16, v{32+4*h+2*jj}")
    a("s_barrier")
    accf = lambda st, nt: 32 + 24 * st + 4 * nt
    gemm(a, list(range(16)), 6, 2, sub_addr, lambda ks, st: X + 64 * st + 4 * ks, accf, 80, 'TTTTNN')
    KV = 128
    Z = 144
    T = 160
    L2E = lit(LOG2E)
    for st in range(2):
        rc = 21 + st
        for h in range(2):
            wph = vr(28 + 2 * h, 2)
            c = accf(st, h)
            for r in range(4): a(f"v_mul_f32 v{c+r}, v{c+r}, v{rc}")
            a(f"v_cvt_pk_bf16_f32 v{T}, v{c}, v{c+1}")
            a(f"v_cvt_pk_bf16_f32 v{T+1}, v{c+2}, v{c+3}")
            P = T + 4
            a(f"v_mfma_f32_16x16x16_bf16 {vr(P,4)}, {wph}, {vr(T,2)}, 0")
            ck = accf(st, 2 + h)
            for r in range(4): a(f"v_mul_f32 v{ck+r}, v{ck+r}, v{rc}")
            a(f"v_cvt_pk_bf16_f32 v{T+2}, v{ck}, v{ck+1}")
            a(f"v_cvt_pk_bf16_f32 v{T+3}, v{ck+2}, v{ck+3}")
            PK = T + 8
            a(f"v_mfma_f32_16x16x16_bf16 {vr(PK,4)}, {vr(T+2,2)}, {wph}, 0")
            cv = accf(st, 4 + h)
            for r in range(4): a(f"v_mul_f32 v{cv+r}, v{cv+r}, v{RR[st]+r}")
            VB = T + 12
            a(f"v_cvt_pk_bf16_f32 v{VB}, v{cv}, v{cv+1}")
            a(f"v_cvt_pk_bf16_f32 v{VB+1}, v{cv+2}, v{cv+3}")
            a(f"v_cvt_pk_bf16_f32 v{T}, v{P}, v{P+1}")
            a(f"v_cvt_pk_bf16_f32 v{T+1}, v{P+2}, v{P+3}")
            unpack2(a, P, P + 1, T); unpack2(a, P + 2, P + 3, T + 1)
            MX, MN, TT = T + 16, T + 17, T + 18
            a(f"v_max3_f32 v{MX}, v{P}, v{P+1}, v{P+2}")
            a(f"v_max_f32 v{MX}, v{MX}, v{P+3}")
            a(f"v_min3_f32 v{MN}, v{P}, v{P+1}, v{P+2}")
            a(f"v_min_f32 v{MN}, v{MN}, v{P+3}")
            xlane_sum(a, MX, TT, 'v_max_f32')
            xlane_sum(a, MN, TT, 'v_min_f32')
            EP, EN = T + 20, T + 24
            for r in range(4):
                a(f"v_sub_f32 v{EP+r}, v{P+r}, v{MX}")
                a(f"v_sub_f32 v{EN+r}, v{MN}, v{P+r}")
            for r in range(4):
                a(f"v_mul_f32 v{EP+r}, {L2E}, v{EP+r}")
                a(f"v_mul_f32 v{EN+r}, {L2E}, v{EN+r}")
            for r in range(4):
                a(f"v_exp_f32 v{EP+r}, v{EP+r}")
                a(f"v_exp_f32 v{EN+r}, v{EN+r}")
            a(f"v_add_f32 v{MX}, v{EP}, v{EP+1}")
            a(f"v_add_f32 v{MN}, v{EN}, v{EN+1}")
            a(f"v_add_f32 v{TT}, v{EP+2}, v{EP+3}")
            a(f"v_add_f32 v{TT+1}, v{EN+2}, v{EN+3}")
            a(f"v_add_f32 v{MX}, v{MX}, v{TT}")
            a(f"v_add_f32 v{MN}, v{MN}, v{TT+1}")
            xlane_sum(a, MX, TT)
            xlane_sum(a, MN, TT)
            a(f"v_rcp_f32 v{MX}, v{MX}")
            a(f"v_rcp_f32 v{MN}, v{MN}")
            for r in range(4):
                a(f"v_mul_f32 v{EP+r}, v{EP+r}, v{MX}")
                a(f"v_mul_f32 v{EN+r}, v{EN+r}, v{MN}")
            a(f"v_cvt_pk_bf16_f32 v{EP}, v{EP}, v{EP+1}")
            a(f"v_cvt_pk_bf16_f32 v{EP+1}, v{EP+2}, v{EP+3}")
            a(f"v_cvt_pk_bf16_f32 v{EN}, v{EN}, v{EN+1}")
            a(f"v_cvt_pk_bf16_f32 v{EN+1}, v{EN+2}, v{EN+3}")
            a(f"buffer_store_dwordx2 {vr(EP,2)}, v{18+st}, s[{SRD_O}:{SRD_O+3}], 0 offen offset:{h*64}")
            a(f"buffer_store_dwordx2 {vr(EN,2)}, v{18+st}, s[{SRD_O}:{SRD_O+3}], 0 offen offset:{h*64+32}")
            a(f"v_cvt_pk_bf16_f32 v{T}, v{PK}, v{PK+1}")
            a(f"v_cvt_pk_bf16_f32 v{T+1}, v{PK+2}, v{PK+3}")
            unpack2(a, PK, PK + 1, T); unpack2(a, PK + 2, PK + 3, T + 1)
            M4, N4 = T + 28, T + 32
            for r in range(4):
                a(f"v_mov_b32 v{M4+r}, v{PK+r}")
                a(f"v_mov_b32 v{N4+r}, v{PK+r}")
            dpp_allreduce(a, [M4 + r for r in range(4)], 'v_max_f32')
            dpp_allreduce(a, [N4 + r for r in range(4)], 'v_min_f32')
            EP, EN = T + 36, T + 40
            for r in range(4):
                a(f"v_sub_f32 v{EP+r}, v{PK+r}, v{M4+r}")
                a(f"v_sub_f32 v{EN+r}, v{N4+r}, v{PK+r}")
            for r in range(4):
                a(f"v_mul_f32 v{EP+r}, {L2E}, v{EP+r}")
                a(f"v_mul_f32 v{EN+r}, {L2E}, v{EN+r}")
            for r in range(4):
                a(f"v_exp_f32 v{EP+r}, v{EP+r}")
                a(f"v_exp_f32 v{EN+r}, v{EN+r}")
            for r in range(4):
                a(f"v_mov_b32 v{M4+r}, v{EP+r}")
                a(f"v_mov_b32 v{N4+r}, v{EN+r}")
            dpp_allreduce(a, [M4 + r for r in range(4)] + [N4 + r for r in range(4)], 'v_add_f32')
            for r in range(4):
                a(f"v_rcp_f32 v{M4+r}, v{M4+r}")
                a(f"v_rcp_f32 v{N4+r}, v{N4+r}")
            for r in range(4):
                a(f"v_mul_f32 v{EP+r}, v{EP+r}, v{M4+r}")
                a(f"v_mul_f32 v{EN+r}, v{EN+r}, v{N4+r}")
            a(f"v_cvt_pk_bf16_f32 v{EP}, v{EP}, v{EP+1}")
            a(f"v_cvt_pk_bf16_f32 v{EP+1}, v{EP+2}, v{EP+3}")
            a(f"v_cvt_pk_bf16_f32 v{EN}, v{EN}, v{EN+1}")
            a(f"v_cvt_pk_bf16_f32 v{EN+1}, v{EN+2}, v{EN+3}")
            for sg, ph in ((0, EP), (1, EN)):
                kv = KV + (h * 2 + sg) * 4; z = Z + (h * 2 + sg) * 4
                a(f"v_mfma_f32_16x16x16_bf16 {vr(kv,4)}, {vr(VB,2)}, {vr(ph,2)}, {'0' if st == 0 else vr(kv,4)}")
                a(f"v_mfma_f32_16x16x16_bf16 {vr(z,4)}, v[8:9], {vr(ph,2)}, {'0' if st == 0 else vr(z,4)}")
    RED = 98304; REDZ = RED + 16384
    a(f"s_lshl_b32 s6, s{S_W}, 12")
    a(f"v_lshlrev_b32 v4, 4, v1")
    a(f"v_add_u32 v4, s6, v4")
    a(f"s_lshl_b32 s6, s{S_W}, 10")
    a(f"v_lshlrev_b32 v5, 2, v1")
    a(f"v_add_u32 v5, s6, v5")
    a(f"v_add_u32 v4, {RED}, v4")
    a(f"v_add_u32 v5, {REDZ}, v5")
    for i in range(4):
        a(f"ds_write_b128 v4, {vr(KV+4*i,4)} offset:{i*1024}")
        a(f"ds_write_b32 v5, v{Z+4*i} offset:{i*256}")
    a("s_waitcnt lgkmcnt(0)")
    a("s_barrier")
    a(f"v_lshlrev_b32 v4, 4, v0")
    a(f"v_add_u32 v4, {RED}, v4")
    for w in range(4):
        a(f"ds_read_b128 {vr(T+4*w,4)}, v4 offset:{w*4096}")
    a(f"v_lshrrev_b32 v5, 4, v0")
    a(f"v_lshlrev_b32 v5, 8, v5")
    a(f"v_lshl_add_u32 v5, v2, 2, v5")
    a(f"v_add_u32 v5, {REDZ}, v5")
    for w in range(4):
        a(f"ds_read_b32 v{T+16+w}, v5 offset:{w*1024}")
    a(f"s_lshr_b32 s6, s{S_W}, 1")
    a(f"s_lshl_b32 s7, s{S_CT}, 1")
    a(f"s_add_u32 s6, s6, s7")
    a(f"s_lshl_b32 s6, s6, 11")
    a(f"s_and_b32 s7, s{S_W}, 1")
    a(f"s_lshl_b32 s7, s7, 6")
    a(f"s_add_u32 s6, s6, s7")
    a(f"v_lshlrev_b32 v6, 9, v3")
    a(f"v_lshl_add_u32 v6, v2, 2, v6")
    a(f"s_lshl_b32 s7, s{S_CT}, 8")
    a(f"s_add_u32 s7, s7, {KVZ_OFF}")
    a(f"v_lshlrev_b32 v7, 2, v0")
    a("s_waitcnt lgkmcnt(0)")
    for r in range(4):
        a(f"v_add_f32 v{T+r}, v{T+r}, v{T+4+r}")
        a(f"v_add_f32 v{T+8+r}, v{T+8+r}, v{T+12+r}")
    for r in range(4):
        a(f"v_add_f32 v{T+r}, v{T+r}, v{T+8+r}")
    a(f"v_add_f32 v{T+16}, v{T+16}, v{T+17}")
    a(f"v_add_f32 v{T+18}, v{T+18}, v{T+19}")
    a(f"v_add_f32 v{T+16}, v{T+16}, v{T+18}")
    for r in range(4):
        a(f"buffer_atomic_add_f32 v{T+r}, v6, s[{SRD_X2}:{SRD_X2+3}], s6 offen offset:{r*128}")
    a(f"s_cmp_lg_u32 s{S_W}, 0")
    a("s_cbranch_scc1 L_end")
    a(f"buffer_atomic_add_f32 v{T+16}, v7, s[{SRD_X2}:{SRD_X2+3}], s7 offen")

def k2_addr(ks, nt, hh): return (12 + nt, ks * 4096 + hh * 2048)

def k2_attn_wo(a):
    prologue(a, 256); decode_wg(a, 4)
    srd(a, SRD_A, P_WS, WS_PHIQ, 0x400000)
    srd(a, SRD_B, P_WO, 0, 512 * 1024)
    srd(a, SRD_O, P_WS, WS_XA, 0x200000)
    srd_sel(a, SRD_X1, P_X, 0, P_WS, WS_XN, 0x200000)
    a(f"s_mul_i32 s6, s{S_LAYER}, {KV_STRIDE}")
    a(f"s_add_u32 s6, s6, {WS_KV}")
    a(f"s_add_u32 s{SRD_X2}, s{P_WS}, s6")
    a(f"s_addc_u32 s{SRD_X2+1}, s{P_WS+1}, 0")
    a(f"s_mov_b32 s{SRD_X2+2}, {KV_STRIDE}")
    a(f"s_mov_b32 s{SRD_X2+3}, 0x00020000")
    KVL, ZL = 65536, 98304
    PH = 80
    kvreg = lambda i: (208 + 4 * i) if i < 12 else (48 + 4 * (i - 12))
    a("v_lshlrev_b32 v4, 4, v0")
    for i in range(16):
        a(f"buffer_load_dwordx4 {vr(kvreg(i),4)}, v4, s[{SRD_X2}:{SRD_X2+3}], 0 offen offset:{(i % 1) * 0}" if False else
          f"s_mov_b32 s6, {i*4096}")
        a(f"buffer_load_dwordx4 {vr(kvreg(i),4)}, v4, s[{SRD_X2}:{SRD_X2+3}], s6 offen")
    a(f"s_mov_b32 s6, {KVZ_OFF}")
    a(f"buffer_load_dwordx4 {vr(kvreg(16),4)}, v4, s[{SRD_X2}:{SRD_X2+3}], s6 offen")
    row_voff(a, 16, 64, 16, 2048)
    for h in range(32):
        a(f"buffer_load_dwordx4 {vr(PH+4*h,4)}, v16, s[{SRD_A}:{SRD_A+3}], 0 offen offset:{h*64}")
    a(f"s_lshl_b32 s12, s{S_CT}, 7")
    dma128(a, 24, 17, 512, 1024, 12, 0, 'k2')
    tr_addrs128(a, 12, 24, 'k2')
    row_voff(a, 18, 64, 16, 1024, with_g=8)
    a(f"v_add_u32 v18, s12, v18")
    a("v_lshlrev_b32 v5, 3, v0")
    a(f"v_add_u32 v5, {KVL}, v5")
    a("s_waitcnt vmcnt(48)")
    for i in range(17):
        q = kvreg(i)
        a(f"v_cvt_pk_bf16_f32 v{q}, v{q}, v{q+1}")
        a(f"v_cvt_pk_bf16_f32 v{q+1}, v{q+2}, v{q+3}")
        a(f"ds_write_b64 v5, {vr(q,2)} offset:{i*2048}")
    a("v_lshlrev_b32 v6, 6, v2")
    a("v_lshl_add_u32 v6, v3, 4, v6")
    a(f"v_add_u32 v6, {KVL}, v6")
    a("v_lshlrev_b32 v7, 4, v3")
    a(f"v_add_u32 v7, {ZL}, v7")
    a("s_waitcnt vmcnt(16) lgkmcnt(0)")
    a("s_barrier")
    KA = lambda h: 48 + 8 * (h % 2)
    NU = lambda h: 32 + 8 * (h % 2)
    def rd(h):
        a(f"ds_read_b128 {vr(KA(h),4)}, v6 offset:{h*1024}")
        a(f"ds_read_b128 {vr(KA(h)+4,4)}, v7 offset:{h*64}")
    def post(h):
        n = NU(h); t = 24
        a(f"v_cvt_pk_bf16_f32 v{t}, v{n}, v{n+1}")
        a(f"v_cvt_pk_bf16_f32 v{t+1}, v{n+2}, v{n+3}")
        bf16r(a, n + 4, n + 4, t + 2)
        a(f"v_add_f32 v{n+4}, {lit(1e-6)}, v{n+4}")
        bf16r(a, n + 4, n + 4, t + 2)
        a(f"v_rcp_f32 v{n+4}, v{n+4}")
        unpack2(a, n, n + 1, t); unpack2(a, n + 2, n + 3, t + 1)
        for r in range(4): a(f"v_mul_f32 v{n+r}, v{n+r}, v{n+4}")
        o = PH + 8 * (h // 2) + 2 * (h % 2)
        a(f"v_cvt_pk_bf16_f32 v{o}, v{n}, v{n+1}")
        a(f"v_cvt_pk_bf16_f32 v{o+1}, v{n+2}, v{n+3}")
    rd(0)
    for h in range(32):
        if h + 1 < 32:
            rd(h + 1); a("s_waitcnt lgkmcnt(2)")
        else:
            a("s_waitcnt lgkmcnt(0)")
        a(f"v_mfma_f32_16x16x32_bf16 {vr(NU(h),4)}, {vr(KA(h),4)}, {vr(PH+4*h,4)}, 0")
        a(f"v_mfma_f32_16x16x32_bf16 {vr(NU(h)+4,4)}, {vr(KA(h)+4,4)}, {vr(PH+4*h,4)}, 0")
        if h > 0: post(h - 1)
    post(31)
    RX = 208
    for nt in range(4):
        a(f"buffer_load_dwordx2 {vr(RX+2*nt,2)}, v18, s[{SRD_X1}:{SRD_X1+3}], 0 offen offset:{nt*32}")
    a("s_waitcnt vmcnt(4)")
    a("s_barrier")
    gemm(a, list(range(16)), 4, 1, k2_addr, lambda ks, st: PH + 8 * ks, lambda st, nt: 32 + 4 * nt, 48, 'TTTT')
    a("s_waitcnt vmcnt(0)")
    for nt in range(4):
        c = 32 + 4 * nt
        a(f"v_cvt_pk_bf16_f32 v24, v{c}, v{c+1}")
        a(f"v_cvt_pk_bf16_f32 v25, v{c+2}, v{c+3}")
        unpack2(a, c, c + 1, 24); unpack2(a, c + 2, c + 3, 25)
        unpack2(a, 26, 27, RX + 2 * nt); unpack2(a, 28, 29, RX + 2 * nt + 1)
        for r in range(4): a(f"v_add_f32 v{c+r}, v{c+r}, v{26+r}")
        a(f"v_cvt_pk_bf16_f32 v{c}, v{c}, v{c+1}")
        a(f"v_cvt_pk_bf16_f32 v{c+1}, v{c+2}, v{c+3}")
        a(f"buffer_store_dwordx2 {vr(c,2)}, v18, s[{SRD_O}:{SRD_O+3}], 0 offen offset:{nt*32}")

KERNELS = [
    ('k0', k0_zero, 34, 0, False),
    ('k1', k1_qkv, 256, 98304 + 16384 + 4096, True),
    ('k2', k2_attn_wo, 256, 98304 + 2048 + 2048, True),
    ('k3', k3_ln_w1, 256, 65536, False),
    ('k4', k4_shift_w2, 256, 65536, False),
    ('k5', k5_ln_w3, 240, 98304, False),
    ('k6', k6_w4, 256, 163840, True),
]

def build():
    header = open('cdna_kernels/' + NAME + '.s.ref').read().split('; Override launch')[0]
    launches = [('k0', None)]
    for L in range(2):
        for k in KERNELS[1:]:
            launches.append((k[0], L if k[4] else None))
    info = {k[0]: k for k in KERNELS}
    out = [header.rstrip('\n')]
    def lab(n, L): return f"hh_{n}{'' if L is None else '_l%d' % L}_kernel"
    for n, L in launches:
        k = info[n]
        out.append(f"; @launch kernel={lab(n, L)} grid=({k[2]},1,1) block=(256,1,1) lds={k[3]}")
    out.append('.amdgcn_target "amdgcn-amd-amdhsa--gfx950"')
    out.append('.text')
    descs = []
    for n, fn, nwg, lds, layered in KERNELS:
        a = Asm()
        fn(a)
        body = a.text().replace('L_', f'L{n}_')
        entries = [(lab(n, 0), 0), (lab(n, 1), 1)] if layered else [(lab(n, None), None)]
        if layered:
            for nm, L in entries:
                out.append(f".globl {nm}\n.p2align 8\n.type {nm},@function\n{nm}:")
                out.append(f"  s_mov_b32 s{S_LAYER}, {L}\n  s_branch L{n}_body")
            out.append(f".p2align 8\nL{n}_body:")
        else:
            nm = entries[0][0]
            out.append(f".globl {nm}\n.p2align 8\n.type {nm},@function\n{nm}:")
        out.append(body.rstrip('\n'))
        out.append(f"L{n}_end:\n  s_endpgm")
        for nm, L in entries: descs.append(nm)
    out.append('.section .rodata,"a"')
    for nm in descs:
        out.append(f""".p2align 6
.amdhsa_kernel {nm}
  .amdhsa_next_free_vgpr 256
  .amdhsa_next_free_sgpr 102
  .amdhsa_accum_offset 256
  .amdhsa_group_segment_fixed_size 0
  .amdhsa_kernarg_size 96
  .amdhsa_user_sgpr_count 2
  .amdhsa_user_sgpr_kernarg_segment_ptr 1
  .amdhsa_system_sgpr_workgroup_id_x 1
.end_amdhsa_kernel""")
    return '\n'.join(out) + '\n'

if __name__ == '__main__':
    txt = build()
    dst = sys.argv[1] if len(sys.argv) > 1 else 'cdna_kernels/' + NAME + '.s'
    open(dst, 'w').write(txt)
    print('wrote', dst, len(txt), 'bytes')
```

```python
import sys
from asmlib import Asm, vr, sr

NAME = "interleave_layers__linear_kernel_hedgehog__mixer_s_mlp__prompt"
S, D, F, H = 2048, 512, 1376, 32

WS_XA, WS_XB, WS_H, WS_X1, WS_XN, WS_H3, WS_PHIQ = 0x0, 0x200000, 0x400000, 0x600000, 0x800000, 0xA00000, 0x1000000
WS_KV = 0x1400000
KV_STRIDE = 0x20000
KVZ_OFF = 0x10000

P_X, P_WQKV, P_WPHI, P_WO, P_BX, P_W1, P_W2, P_W3, P_W4, P_OUT, P_DBG, P_WS = [16 + 2 * i for i in range(12)]
SRD_A, SRD_B, SRD_O, SRD_X1, SRD_X2, SRD_X3 = 40, 44, 48, 52, 56, 60
S_RT, S_CT, S_W, S_LAYER = 3, 4, 5, 15

LOG2E = 1.4426950408889634
import struct
def f2u(x): return struct.unpack('<I', struct.pack('<f', x))[0]
def lit(x): return '0x%08x' % f2u(x)

TIMING = False
WS_T = 0x1800000
class St: n = 0
def stamp(a, final=False):
    if not TIMING: return
    if St.n >= 11 and not final: return
    a(f"s_memtime s[{72+2*St.n}:{73+2*St.n}]")
    St.n += 1
def dump_stamps(a, kidx):
    if not TIMING: return
    stamp(a, True)
    a("s_waitcnt lgkmcnt(0)")
    srd(a, SRD_X3, P_WS, WS_T + kidx * 0x20000, 0x20000)
    a(f"s_lshl_b32 s6, s2, 8")
    a(f"s_lshl_b32 s7, s{S_W}, 6")
    a(f"s_add_u32 s6, s6, s7")
    a("v_mov_b32 v4, 0")
    for i in range(St.n):
        a(f"v_mov_b32 v5, s{72+2*i}")
        a(f"buffer_store_dword v5, v4, s[{SRD_X3}:{SRD_X3+3}], s6 offen offset:{4*i}")
    St.n = 0

def prologue(a, nwg):
    a(f"""
    s_cmp_ge_u32 s2, {nwg}
    s_cbranch_scc1 L_end
    """)
    stamp(a)
    a(f"""
    s_load_dwordx16 s[16:31], s[0:1], 0
    s_load_dwordx8 s[32:39], s[0:1], 64
    v_and_b32 v1, 63, v0
    v_lshrrev_b32 v4, 6, v0
    v_and_b32 v2, 15, v0
    v_readfirstlane_b32 s{S_W}, v4
    v_lshrrev_b32 v3, 4, v1
    s_waitcnt lgkmcnt(0)
    """)
    stamp(a)

def srd(a, dst, base, off, size):
    if off:
        a(f"s_add_u32 s{dst}, s{base}, {off}")
        a(f"s_addc_u32 s{dst+1}, s{base+1}, 0")
    else:
        a(f"s_mov_b32 s{dst}, s{base}")
        a(f"s_mov_b32 s{dst+1}, s{base+1}")
    a(f"s_mov_b32 s{dst+2}, {size}")
    a(f"s_mov_b32 s{dst+3}, 0x00020000")

def srd_sel(a, dst, base0, off0, base1, off1, size):
    a(f"s_add_u32 s6, s{base0}, {off0}")
    a(f"s_addc_u32 s7, s{base0+1}, 0")
    a(f"s_add_u32 s8, s{base1}, {off1}")
    a(f"s_addc_u32 s9, s{base1+1}, 0")
    a(f"s_cmp_eq_u32 s{S_LAYER}, 0")
    a(f"s_cselect_b32 s{dst}, s6, s8")
    a(f"s_cselect_b32 s{dst+1}, s7, s9")
    a(f"s_mov_b32 s{dst+2}, {size}")
    a(f"s_mov_b32 s{dst+3}, 0x00020000")

def decode_wg(a, rt_per_xcd):
    sh = {2: 1, 4: 2}[rt_per_xcd]
    a(f"""
    s_and_b32 s6, s2, 7
    s_lshr_b32 s7, s2, 3
    s_lshl_b32 s6, s6, {sh}
    s_and_b32 s8, s7, {rt_per_xcd - 1}
    s_add_u32 s{S_RT}, s6, s8
    s_lshr_b32 s{S_CT}, s7, {sh}
    """)

def dma128(a, vtmp, voff, nrows, rs, s_col_bytes, lds_base, swz, t0=0, nt=None, srdb=SRD_B, setup=True):
    if setup:
        a(f"v_lshrrev_b32 v{vtmp}, 3, v1")
        a(f"v_and_b32 v{voff}, 7, v1")
        if swz == 'std':
            a(f"v_and_b32 v{vtmp+1}, 2, v{vtmp}")
            a(f"s_and_b32 s6, s{S_W}, 1")
            a(f"s_lshl_b32 s6, s6, 2")
            a(f"v_or_b32 v{vtmp+1}, s6, v{vtmp+1}")
        else:
            a(f"v_and_b32 v{vtmp+1}, 6, v{vtmp}")
        a(f"v_xor_b32 v{voff}, v{voff}, v{vtmp+1}")
        a(f"v_lshlrev_b32 v{voff}, 4, v{voff}")
        a(f"s_mov_b32 s6, {rs}")
        a(f"v_mul_lo_u32 v{vtmp}, v{vtmp}, s6")
        a(f"v_add_u32 v{voff}, v{voff}, v{vtmp}")
    a(f"s_mul_i32 s10, s{S_W}, {8 * rs}")
    a(f"s_add_u32 s10, s10, s{s_col_bytes}")
    a(f"s_lshl_b32 s11, s{S_W}, 10")
    if t0:
        a(f"s_add_u32 s10, s10, {t0 * 8 * rs}")
    if lds_base: a(f"s_add_u32 s11, s11, {lds_base}")
    n = (nrows // 8) // 4 if nt is None else nt
    for i in range(n):
        a(f"s_mov_b32 m0, s11")
        if i: a(f"s_add_u32 s10, s10, {32 * rs}")
        else: a("s_nop 0")
        a(f"buffer_load_dwordx4 v{voff}, s[{srdb}:{srdb+3}], s10 offen lds")
        if i + 1 < n: a(f"s_add_u32 s11, s11, 4096")
    return n

def dma64(a, vtmp, voff, rs, col_sgprs, lds_base):
    a(f"v_lshrrev_b32 v{vtmp}, 2, v1")
    a(f"v_and_b32 v{voff}, 3, v1")
    a(f"v_lshrrev_b32 v{vtmp+1}, 5, v1")
    a(f"v_lshlrev_b32 v{vtmp+1}, 1, v{vtmp+1}")
    a(f"v_xor_b32 v{voff}, v{voff}, v{vtmp+1}")
    a(f"v_lshlrev_b32 v{voff}, 4, v{voff}")
    a(f"s_mov_b32 s6, {rs}")
    a(f"v_mul_lo_u32 v{vtmp}, v{vtmp}, s6")
    a(f"v_add_u32 v{voff}, v{voff}, v{vtmp}")
    cnt = 0
    for j in range(3):
        a(f"s_mul_i32 s10, s{S_W}, {16 * rs}")
        a(f"s_add_u32 s10, s10, s{col_sgprs[j]}")
        a(f"s_lshl_b32 s11, s{S_W}, 10")
        a(f"s_add_u32 s11, s11, {lds_base + j * 32768}")
        for i in range(8):
            a(f"s_mov_b32 m0, s11")
            if i: a(f"s_add_u32 s10, s10, {64 * rs}")
            else: a("s_nop 0")
            a(f"buffer_load_dwordx4 v{voff}, s[{SRD_B}:{SRD_B+3}], s10 offen lds")
            if i < 7: a(f"s_add_u32 s11, s11, 4096")
            cnt += 1
    return cnt

def tr_addrs128(a, dst, vt, swz):
    a(f"v_lshrrev_b32 v{vt}, 2, v2")
    a(f"v_and_b32 v{vt+1}, 3, v2")
    if swz == 'std':
        a(f"v_lshl_add_u32 v{vt+2}, v3, 3, v{vt}")
        a(f"v_and_b32 v{vt+3}, 2, v{vt}")
        a(f"v_and_b32 v{vt+4}, 1, v3")
        a(f"v_lshl_or_b32 v{vt+3}, v{vt+4}, 2, v{vt+3}")
    else:
        a(f"v_lshl_add_u32 v{vt+2}, v3, 2, v{vt}")
        a(f"v_and_b32 v{vt+3}, 6, v{vt+2}")
    a(f"v_lshlrev_b32 v{vt+2}, 7, v{vt+2}")
    a(f"v_and_b32 v{vt+4}, 1, v{vt+1}")
    a(f"v_lshl_add_u32 v{vt+2}, v{vt+4}, 3, v{vt+2}")
    a(f"v_lshrrev_b32 v{vt+1}, 1, v{vt+1}")
    for nt in range(4):
        a(f"v_or_b32 v{vt+4}, {2*nt}, v{vt+1}")
        a(f"v_xor_b32 v{vt+4}, v{vt+4}, v{vt+3}")
        a(f"v_lshl_add_u32 v{dst+nt}, v{vt+4}, 4, v{vt+2}")

def tr_addrs64(a, dst, vt):
    a(f"v_lshrrev_b32 v{vt}, 2, v2")
    a(f"v_and_b32 v{vt+1}, 3, v2")
    a(f"v_lshl_add_u32 v{vt+2}, v3, 3, v{vt}")
    a(f"v_and_b32 v{vt+3}, 1, v3")
    a(f"v_lshlrev_b32 v{vt+3}, 1, v{vt+3}")
    a(f"v_lshlrev_b32 v{vt+2}, 6, v{vt+2}")
    a(f"v_and_b32 v{vt+4}, 1, v{vt+1}")
    a(f"v_lshl_add_u32 v{vt+2}, v{vt+4}, 3, v{vt+2}")
    a(f"v_lshrrev_b32 v{vt+1}, 1, v{vt+1}")
    for n2 in range(2):
        a(f"v_or_b32 v{vt+4}, {2*n2}, v{vt+1}")
        a(f"v_xor_b32 v{vt+4}, v{vt+4}, v{vt+3}")
        a(f"v_lshl_add_u32 v{dst+n2}, v{vt+4}, 4, v{vt+2}")
    for j in (1, 2):
        for n2 in range(2):
            a(f"v_add_u32 v{dst+2*j+n2}, {j*32768}, v{dst+n2}")

def gemm(a, steps, nnt, nst, addr_of, xreg, acc, bbuf, orient, first_zero=True, pre_issue=None, hooks=None):
    def reads(i):
        ks = steps[i]; buf = bbuf + (i % 2) * nnt * 4
        for nt in range(nnt):
            for hh in range(2):
                r, imm = addr_of(ks, nt, hh)
                a(f"ds_read_b64_tr_b16 {vr(buf + nt*4 + hh*2, 2)}, v{r} offset:{imm}")
    reads(0)
    for i, ks in enumerate(steps):
        if hooks and i in hooks:
            hooks[i]()
        if i + 1 < len(steps) and not (hooks and (i + 1) in hooks and hooks.get('defer')):
            reads(i + 1)
            a(f"s_waitcnt lgkmcnt({2*nnt})")
        else:
            a("s_waitcnt lgkmcnt(0)")
        buf = bbuf + (i % 2) * nnt * 4
        for nt in range(nnt):
            for st in range(nst):
                c = vr(acc(st, nt), 4)
                cin = '0' if (first_zero and i == 0) else c
                w = vr(buf + nt * 4, 4); x = vr(xreg(ks, st), 4)
                if orient[nt] == 'T':
                    a(f"v_mfma_f32_16x16x32_bf16 {c}, {w}, {x}, {cin}")
                else:
                    a(f"v_mfma_f32_16x16x32_bf16 {c}, {x}, {w}, {cin}")
    stamp(a)

def setup_consts(a):
    for i in range(4): a(f"v_mov_b32 v{8+i}, 0x3f803f80")
    a("v_lshlrev_b32 v4, 2, v3")
    for r in range(4):
        a(f"v_add_u32 v5, {r}, v4")
        a(f"v_cmp_eq_u32 s[{64+2*r}:{65+2*r}], v5, v2")

def xlane_sum(a, v, t, op='v_add_f32'):
    a(f"v_mov_b32 v{t}, v{v}")
    a(f"v_permlane16_swap_b32 v{v}, v{t}")
    a(f"{op} v{v}, v{v}, v{t}")
    a(f"v_mov_b32 v{t}, v{v}")
    a(f"v_permlane32_swap_b32 v{v}, v{t}")
    a(f"{op} v{v}, v{v}, v{t}")

def bf16r(a, dst, src, t):
    a(f"v_cvt_pk_bf16_f32 v{t}, v{src}, v{src}")
    a(f"v_lshlrev_b32 v{dst}, 16, v{t}")

def layernorm(a, X, nk, rout, T, materialize):
    acc = T; G = T + 4; mean = T + 8; mb = T + 10; dl = T + 9; t0 = T + 12
    stamp(a)
    for j in range(nk):
        a(f"v_mfma_f32_16x16x32_bf16 {vr(acc,4)}, v[8:11], {vr(X+4*j,4)}, {'0' if j == 0 else vr(acc,4)}")
    a(f"v_mul_f32 v{mean}, {lit(1.0/512)}, v{acc}")
    bf16r(a, mb, mean, t0)
    a(f"v_mov_b32 v{mb+1}, v{mb}")
    a(f"v_sub_f32 v{dl}, v{mean}, v{mb}")
    for p in range(nk * 4):
        t = t0 + (p % 2) * 2
        a(f"v_lshlrev_b32 v{t}, 16, v{X+p}")
        a(f"v_and_b32 v{t+1}, 0xffff0000, v{X+p}")
        a(f"v_pk_add_f32 {vr(t,2)}, {vr(t,2)}, {vr(mb,2)} neg_lo:[0,1] neg_hi:[0,1]")
        a(f"v_cvt_pk_bf16_f32 v{X+p}, v{t}, v{t+1}")
    for j in range(nk):
        a(f"v_mfma_f32_16x16x32_bf16 {vr(G,4)}, {vr(X+4*j,4)}, {vr(X+4*j,4)}, {'0' if j == 0 else vr(G,4)}")
    g = mean
    a(f"v_cndmask_b32 v{g}, 0, v{G}, s[64:65]")
    for r in range(1, 4):
        a(f"v_cndmask_b32 v{g}, v{g}, v{G+r}, s[{64+2*r}:{65+2*r}]")
    xlane_sum(a, g, t0)
    a(f"v_mul_f32 v{g}, {lit(1.0/512)}, v{g}")
    a(f"v_fma_f32 v{g}, -v{dl}, v{dl}, v{g}")
    a(f"v_max_f32 v{g}, 0, v{g}")
    bf16r(a, g, g, t0)
    a(f"v_add_f32 v{g}, {lit(1e-5)}, v{g}")
    bf16r(a, g, g, t0)
    a(f"v_sqrt_f32 v{g}, v{g}")
    bf16r(a, g, g, t0)
    a(f"v_rcp_f32 v{rout}, v{g}")
    if materialize:
        a(f"v_mov_b32 v{mb}, v{rout}")
        a(f"v_mov_b32 v{mb+1}, v{rout}")
        for p in range(nk * 4):
            t = t0 + (p % 2) * 2
            a(f"v_lshlrev_b32 v{t}, 16, v{X+p}")
            a(f"v_and_b32 v{t+1}, 0xffff0000, v{X+p}")
            a(f"v_pk_mul_f32 {vr(t,2)}, {vr(t,2)}, {vr(mb,2)}")
            a(f"v_cvt_pk_bf16_f32 v{X+p}, v{t}, v{t+1}")

GELU_C0 = -2.0 * 0.7978845608028654 * LOG2E
GELU_C1 = GELU_C0 * 0.044715
def gelu(a, x, t, vc0):
    a(f"v_mul_f32 v{t}, v{x}, v{x}")
    a(f"v_fmamk_f32 v{t}, v{t}, {lit(GELU_C1)}, v{vc0}")
    a(f"v_mul_f32 v{t}, v{t}, v{x}")
    a(f"v_exp_f32 v{t}, v{t}")
    a(f"v_add_f32 v{t}, 1.0, v{t}")
    a(f"v_rcp_f32 v{t}, v{t}")
    a(f"v_mul_f32 v{x}, v{x}, v{t}")

def unpack2(a, lo, hi, p):
    a(f"v_lshlrev_b32 v{lo}, 16, v{p}")
    a(f"v_and_b32 v{hi}, 0xffff0000, v{p}")

def load_afrags(a, voff, srdx, X, nk, j0=0):
    for j in range(nk):
        a(f"buffer_load_dwordx4 {vr(X+4*j,4)}, v{voff}, s[{srdx}:{srdx+3}], 0 offen offset:{(j0+j)*64}")


def k0_zero(a):
    prologue(a, 34)
    srd(a, SRD_O, P_WS, WS_KV, 2 * KV_STRIDE)
    a(f"""
    s_cmp_ge_u32 s2, 17
    s_cselect_b32 s6, {KV_STRIDE - 17 * 4096}, 0
    s_lshl_b32 s7, s2, 12
    s_add_u32 s6, s6, s7
    v_lshlrev_b32 v4, 4, v0
    v_mov_b32 v8, 0
    v_mov_b32 v9, 0
    v_mov_b32 v10, 0
    v_mov_b32 v11, 0
    buffer_store_dwordx4 v[8:11], v4, s[{SRD_O}:{SRD_O+3}], s6 offen
    """)

def row_voff(a, dst, rows_per_wg, rows_per_wave, rs, extra_rows=0, with_g=16, st=0):
    a(f"s_mul_i32 s6, s{S_RT}, {rows_per_wg}")
    a(f"s_mul_i32 s7, s{S_W}, {rows_per_wave}")
    a(f"s_add_u32 s6, s6, s7")
    if st * 16 + extra_rows:
        a(f"s_add_u32 s6, s6, {(st * 16 + extra_rows) & 0xffffffff}")
    a(f"v_add_u32 v{dst}, s6, v2")
    a(f"s_mov_b32 s7, {rs}")
    a(f"v_mul_lo_u32 v{dst}, v{dst}, s7")
    sh = {16: 4, 8: 3}[with_g]
    a(f"v_lshl_add_u32 v{dst}, v3, {sh}, v{dst}")

def std_addr(ks, nt, hh): return (12 + nt, ks * 4096 + hh * 512)

def k3_ln_w1(a):
    prologue(a, 256); decode_wg(a, 4)
    srd(a, SRD_A, P_WS, WS_XA, 0x200000)
    srd(a, SRD_B, P_W1, 0, 512 * 1024)
    srd(a, SRD_O, P_WS, WS_H, 0x200000)
    srd(a, SRD_X1, P_WS, WS_XB, 0x200000)
    X = 80
    row_voff(a, 16, 64, 16, 1024)
    load_afrags(a, 16, SRD_A, X, 16)
    a(f"s_lshl_b32 s12, s{S_CT}, 7")
    dma128(a, 24, 17, 512, 1024, 12, 0, 'std')
    setup_consts(a); tr_addrs128(a, 12, 24, 'std')
    row_voff(a, 18, 64, 16, 1024, with_g=8)
    a(f"v_add_u32 v18, s12, v18")
    a(f"v_mov_b32 v20, {lit(GELU_C0)}")
    a("s_waitcnt vmcnt(16)")
    layernorm(a, X, 16, 19, 32, True)
    for c in range(8):
        a(f"s_cmp_lg_u32 s{S_CT}, {c}")
        a(f"s_cbranch_scc1 L_k3_xb{c}")
        for j in (2 * c, 2 * c + 1):
            a(f"buffer_store_dwordx4 {vr(X+4*j,4)}, v16, s[{SRD_X1}:{SRD_X1+3}], 0 offen offset:{j*64}")
        a.label(f"L_k3_xb{c}")
    layernorm(a, X, 16, 19, 32, False)
    a("s_waitcnt vmcnt(0)")
    stamp(a); a("s_barrier"); stamp(a)
    gemm(a, list(range(16)), 4, 1, std_addr, lambda ks, st: X + 4 * ks, lambda st, nt: 32 + 4 * nt, 48, 'TTTT')
    for nt in range(4):
        c = 32 + 4 * nt
        for r in range(4): a(f"v_mul_f32 v{c+r}, v{c+r}, v19")
        a(f"v_cvt_pk_bf16_f32 v24, v{c}, v{c+1}")
        a(f"v_cvt_pk_bf16_f32 v25, v{c+2}, v{c+3}")
        unpack2(a, c, c + 1, 24); unpack2(a, c + 2, c + 3, 25)
        for r in range(4): gelu(a, c + r, 26 + r, 20)
        a(f"v_cvt_pk_bf16_f32 v{c}, v{c}, v{c+1}")
        a(f"v_cvt_pk_bf16_f32 v{c+1}, v{c+2}, v{c+3}")
        a(f"buffer_store_dwordx2 {vr(c,2)}, v18, s[{SRD_O}:{SRD_O+3}], 0 offen offset:{nt*32}")

def k4_shift_w2(a):
    prologue(a, 256); decode_wg(a, 4)
    srd(a, SRD_A, P_WS, WS_H, 0x200000)
    srd(a, SRD_B, P_W2, 0, 512 * 1024)
    srd(a, SRD_O, P_WS, WS_X1, 0x200000)
    srd(a, SRD_X1, P_WS, WS_XB, 0x200000)
    X = 80
    for q, sh in enumerate((-1, 1, -2, 2)):
        row_voff(a, 20 + q, 64, 16, 1024, extra_rows=sh)
    for j in range(16):
        a(f"buffer_load_dwordx4 {vr(X+4*j,4)}, v{20 + j//4}, s[{SRD_A}:{SRD_A+3}], 0 offen offset:{j*64}")
    a(f"s_lshl_b32 s12, s{S_CT}, 7")
    row_voff(a, 18, 64, 16, 1024, with_g=8)
    a(f"v_add_u32 v18, s12, v18")
    XB = 144
    for nt in range(4):
        a(f"buffer_load_dwordx2 {vr(XB+2*nt,2)}, v18, s[{SRD_X1}:{SRD_X1+3}], 0 offen offset:{nt*32}")
    dma128(a, 24, 17, 512, 1024, 12, 0, 'std')
    tr_addrs128(a, 12, 24, 'std')
    a("s_waitcnt vmcnt(0)")
    stamp(a); a("s_barrier"); stamp(a)
    gemm(a, list(range(16)), 4, 1, std_addr, lambda ks, st: X + 4 * ks, lambda st, nt: 32 + 4 * nt, 48, 'TTTT')
    for nt in range(4):
        c = 32 + 4 * nt
        a(f"v_cvt_pk_bf16_f32 v24, v{c}, v{c+1}")
        a(f"v_cvt_pk_bf16_f32 v25, v{c+2}, v{c+3}")
        unpack2(a, c, c + 1, 24); unpack2(a, c + 2, c + 3, 25)
        unpack2(a, 26, 27, XB + 2 * nt); unpack2(a, 28, 29, XB + 2 * nt + 1)
        for r in range(4): a(f"v_add_f32 v{c+r}, v{c+r}, v{26+r}")
        a(f"v_cvt_pk_bf16_f32 v{c}, v{c}, v{c+1}")
        a(f"v_cvt_pk_bf16_f32 v{c+1}, v{c+2}, v{c+3}")
        a(f"buffer_store_dwordx2 {vr(c,2)}, v18, s[{SRD_O}:{SRD_O+3}], 0 offen offset:{nt*32}")

def sub_addr(ks, nt, hh): return (12 + nt, ks * 2048 + hh * 256)

def k5_ln_w3(a):
    prologue(a, 240); decode_wg(a, 2)
    srd(a, SRD_A, P_WS, WS_X1, 0x200000)
    srd(a, SRD_B, P_W3, 0, 512 * F * 2)
    srd(a, SRD_O, P_WS, WS_H3, S * F * 2)
    X = 128
    for st in range(2):
        row_voff(a, 18 + st, 128, 32, 1024, st=st)
        load_afrags(a, 18 + st, SRD_A, X + 64 * st, 16)
    a(f"s_mul_i32 s12, s{S_CT}, 192")
    a(f"s_add_u32 s13, s12, 64")
    a(f"s_add_u32 s14, s12, 128")
    dma64(a, 24, 20, F * 2, (12, 13, 14), 0)
    setup_consts(a); tr_addrs64(a, 12, 24)
    a(f"v_mov_b32 v23, {lit(GELU_C0)}")
    a("s_waitcnt vmcnt(40)")
    layernorm(a, X, 16, 21, 80, False)
    a("s_waitcnt vmcnt(24)")
    layernorm(a, X + 64, 16, 22, 80, False)
    for st in range(2):
        row_voff(a, 18 + st, 128, 32, F * 2, with_g=8, st=st)
        a(f"v_add_u32 v{18+st}, s12, v{18+st}")
    a("s_waitcnt vmcnt(0)")
    stamp(a); a("s_barrier"); stamp(a)
    gemm(a, list(range(16)), 6, 2, sub_addr, lambda ks, st: X + 64 * st + 4 * ks, lambda st, nt: 32 + 24 * st + 4 * nt, 80, 'TTTTTT')
    for nt in range(6):
        if nt == 2:
            a(f"s_cmp_eq_u32 s{S_CT}, 14")
            a("s_cbranch_scc1 L_fin")
        for st in range(2):
            c = 32 + 24 * st + 4 * nt
            for r in range(4): a(f"v_mul_f32 v{c+r}, v{c+r}, v{21+st}")
            a(f"v_cvt_pk_bf16_f32 v24, v{c}, v{c+1}")
            a(f"v_cvt_pk_bf16_f32 v25, v{c+2}, v{c+3}")
            unpack2(a, c, c + 1, 24); unpack2(a, c + 2, c + 3, 25)
            for r in range(4): gelu(a, c + r, 26 + r, 23)
            a(f"v_cvt_pk_bf16_f32 v{c}, v{c}, v{c+1}")
            a(f"v_cvt_pk_bf16_f32 v{c+1}, v{c+2}, v{c+3}")
            a(f"buffer_store_dwordx2 {vr(c,2)}, v{18+st}, s[{SRD_O}:{SRD_O+3}], 0 offen offset:{nt*32}")

def k6_w4(a):
    prologue(a, 256); decode_wg(a, 4)
    srd(a, SRD_A, P_WS, WS_H3, S * F * 2)
    srd(a, SRD_B, P_W4, 0, F * 1024)
    srd_sel(a, SRD_O, P_WS, WS_XN, P_OUT, 0, 0x200000)
    srd(a, SRD_X1, P_WS, WS_X1, 0x200000)
    srd(a, SRD_X2, P_WS, WS_XA, 0x200000)
    X = 80
    NK = 43
    row_voff(a, 16, 64, 16, F * 2)
    load_afrags(a, 16, SRD_A, X, NK)
    a(f"s_lshl_b32 s12, s{S_CT}, 7")
    dma128(a, 24, 17, 40 * 32, 1024, 12, 0, 'std')
    tr_addrs128(a, 12, 24, 'std')
    for nt in range(4):
        a(f"v_add_u32 v{20+nt}, 0x10000, v{12+nt}")
        a(f"v_add_u32 v{28+nt}, 0x20000, v{12+nt}")
    row_voff(a, 18, 64, 16, 1024, with_g=8)
    a(f"v_add_u32 v18, s12, v18")
    a("s_waitcnt vmcnt(0)")
    stamp(a); a("s_barrier"); stamp(a)
    def addr(ks, nt, hh):
        slot = ks if ks < 40 else ks - 40
        base = (12, 20, 28)[slot // 16]
        return (base + nt, (slot % 16) * 4096 + hh * 512)
    acc = lambda st, nt: 32 + 4 * nt
    xr = lambda ks, st: X + 4 * ks
    gemm(a, [0, 1, 2], 4, 1, addr, xr, acc, 48, 'TTTT')
    stamp(a); a("s_barrier"); stamp(a)
    dma128(a, 24, 17, 0, 1024, 12, 0, 'std', t0=160, nt=3, setup=False)
    gemm(a, list(range(3, 40)), 4, 1, addr, xr, acc, 48, 'TTTT', first_zero=False)
    R1, R2 = 80, 88
    for nt in range(4):
        a(f"buffer_load_dwordx2 {vr(R1+2*nt,2)}, v18, s[{SRD_X1}:{SRD_X1+3}], 0 offen offset:{nt*32}")
        a(f"buffer_load_dwordx2 {vr(R2+2*nt,2)}, v18, s[{SRD_X2}:{SRD_X2+3}], 0 offen offset:{nt*32}")
    a("s_waitcnt vmcnt(8)")
    stamp(a); a("s_barrier"); stamp(a)
    gemm(a, [40, 41, 42], 4, 1, addr, xr, acc, 48, 'TTTT', first_zero=False)
    a("s_waitcnt vmcnt(0)")
    for nt in range(4):
        c = 32 + 4 * nt
        a(f"v_cvt_pk_bf16_f32 v24, v{c}, v{c+1}")
        a(f"v_cvt_pk_bf16_f32 v25, v{c+2}, v{c+3}")
        unpack2(a, c, c + 1, 24); unpack2(a, c + 2, c + 3, 25)
        unpack2(a, 4, 5, R1 + 2 * nt); unpack2(a, 6, 7, R1 + 2 * nt + 1)
        for r in range(4): a(f"v_add_f32 v{c+r}, v{c+r}, v{4+r}")
        a(f"v_cvt_pk_bf16_f32 v24, v{c}, v{c+1}")
        a(f"v_cvt_pk_bf16_f32 v25, v{c+2}, v{c+3}")
        unpack2(a, c, c + 1, 24); unpack2(a, c + 2, c + 3, 25)
        unpack2(a, 4, 5, R2 + 2 * nt); unpack2(a, 6, 7, R2 + 2 * nt + 1)
        for r in range(4): a(f"v_add_f32 v{c+r}, v{c+r}, v{4+r}")
        a(f"v_cvt_pk_bf16_f32 v{c}, v{c}, v{c+1}")
        a(f"v_cvt_pk_bf16_f32 v{c+1}, v{c+2}, v{c+3}")
        a(f"buffer_store_dwordx2 {vr(c,2)}, v18, s[{SRD_O}:{SRD_O+3}], 0 offen offset:{nt*32}")

def dpp_allreduce(a, regs, op):
    for sh in (8, 4, 2, 1):
        for r in regs:
            a(f"{op}_dpp v{r}, v{r}, v{r} row_ror:{sh} row_mask:0xf bank_mask:0xf")

def k1_qkv(a):
    prologue(a, 256); decode_wg(a, 2)
    srd_sel(a, SRD_A, P_X, 0, P_WS, WS_XN, 0x200000)
    srd(a, SRD_B, P_WQKV, 0, 512 * 1536 * 2)
    srd(a, SRD_O, P_WS, WS_PHIQ, 0x400000)
    srd(a, SRD_X1, P_WPHI, 0, 32 * 512)
    a(f"s_mul_i32 s6, s{S_LAYER}, {KV_STRIDE}")
    a(f"s_add_u32 s6, s6, {WS_KV}")
    a(f"s_add_u32 s{SRD_X2}, s{P_WS}, s6")
    a(f"s_addc_u32 s{SRD_X2+1}, s{P_WS+1}, 0")
    a(f"s_mov_b32 s{SRD_X2+2}, {KV_STRIDE}")
    a(f"s_mov_b32 s{SRD_X2+3}, 0x00020000")
    X = 128
    for st in range(2):
        row_voff(a, 18 + st, 128, 32, 1024, st=st)
        load_afrags(a, 18 + st, SRD_A, X + 64 * st, 16)
    a(f"v_lshlrev_b32 v4, 7, v3")
    a(f"v_lshl_add_u32 v4, v2, 1, v4")
    a(f"s_lshl_b32 s6, s{S_CT}, 10")
    for h in range(2):
        for jj in range(4):
            a(f"buffer_load_ushort v{32+4*h+jj}, v4, s[{SRD_X1}:{SRD_X1+3}], s6 offen offset:{h*512 + jj*32}")
    a(f"s_lshl_b32 s12, s{S_CT}, 6")
    a(f"s_add_u32 s13, s12, 1024")
    a(f"s_add_u32 s14, s12, 2048")
    dma64(a, 24, 20, 3072, (12, 13, 14), 0)
    setup_consts(a); tr_addrs64(a, 12, 23)
    a("s_waitcnt vmcnt(48)")
    layernorm(a, X, 16, 21, 80, False)
    a("s_waitcnt vmcnt(32)")
    layernorm(a, X + 64, 16, 22, 80, False)
    a("v_lshlrev_b32 v23, 4, v3")
    RR = (24, 4)
    for st in range(2):
        for r in range(4):
            a(f"v_add_u32 v{RR[st]+r}, {4*r}, v23")
        for r in range(4):
            a(f"ds_bpermute_b32 v{RR[st]+r}, v{RR[st]+r}, v{21+st}")
    for st in range(2):
        row_voff(a, 18 + st, 128, 32, 2048, with_g=8, st=st)
        a(f"s_lshl_b32 s6, s{S_CT}, 7")
        a(f"v_add_u32 v{18+st}, s6, v{18+st}")
    a("s_waitcnt vmcnt(0) lgkmcnt(0)")
    for h in range(2):
        for jj in range(2):
            a(f"v_lshl_or_b32 v{28+2*h+jj}, v{32+4*h+2*jj+1}, 16, v{32+4*h+2*jj}")
    stamp(a); a("s_barrier"); stamp(a)
    accf = lambda st, nt: 32 + 24 * st + 4 * nt
    gemm(a, list(range(16)), 6, 2, sub_addr, lambda ks, st: X + 64 * st + 4 * ks, accf, 80, 'TTTTNN')
    KV = 128
    Z = 144
    T = 160
    L2E = lit(LOG2E)
    for st in range(2):
        rc = 21 + st
        for h in range(2):
            wph = vr(28 + 2 * h, 2)
            c = accf(st, h)
            for r in range(4): a(f"v_mul_f32 v{c+r}, v{c+r}, v{rc}")
            a(f"v_cvt_pk_bf16_f32 v{T}, v{c}, v{c+1}")
            a(f"v_cvt_pk_bf16_f32 v{T+1}, v{c+2}, v{c+3}")
            P = T + 4
            a(f"v_mfma_f32_16x16x16_bf16 {vr(P,4)}, {wph}, {vr(T,2)}, 0")
            ck = accf(st, 2 + h)
            for r in range(4): a(f"v_mul_f32 v{ck+r}, v{ck+r}, v{rc}")
            a(f"v_cvt_pk_bf16_f32 v{T+2}, v{ck}, v{ck+1}")
            a(f"v_cvt_pk_bf16_f32 v{T+3}, v{ck+2}, v{ck+3}")
            PK = T + 8
            a(f"v_mfma_f32_16x16x16_bf16 {vr(PK,4)}, {vr(T+2,2)}, {wph}, 0")
            cv = accf(st, 4 + h)
            for r in range(4): a(f"v_mul_f32 v{cv+r}, v{cv+r}, v{RR[st]+r}")
            VB = T + 12
            a(f"v_cvt_pk_bf16_f32 v{VB}, v{cv}, v{cv+1}")
            a(f"v_cvt_pk_bf16_f32 v{VB+1}, v{cv+2}, v{cv+3}")
            a(f"v_cvt_pk_bf16_f32 v{T}, v{P}, v{P+1}")
            a(f"v_cvt_pk_bf16_f32 v{T+1}, v{P+2}, v{P+3}")
            unpack2(a, P, P + 1, T); unpack2(a, P + 2, P + 3, T + 1)
            MX, MN, TT = T + 16, T + 17, T + 18
            a(f"v_max3_f32 v{MX}, v{P}, v{P+1}, v{P+2}")
            a(f"v_max_f32 v{MX}, v{MX}, v{P+3}")
            a(f"v_min3_f32 v{MN}, v{P}, v{P+1}, v{P+2}")
            a(f"v_min_f32 v{MN}, v{MN}, v{P+3}")
            xlane_sum(a, MX, TT, 'v_max_f32')
            xlane_sum(a, MN, TT, 'v_min_f32')
            EP, EN = T + 20, T + 24
            for r in range(4):
                a(f"v_sub_f32 v{EP+r}, v{P+r}, v{MX}")
                a(f"v_sub_f32 v{EN+r}, v{MN}, v{P+r}")
            for r in range(4):
                a(f"v_mul_f32 v{EP+r}, {L2E}, v{EP+r}")
                a(f"v_mul_f32 v{EN+r}, {L2E}, v{EN+r}")
            for r in range(4):
                a(f"v_exp_f32 v{EP+r}, v{EP+r}")
                a(f"v_exp_f32 v{EN+r}, v{EN+r}")
            a(f"v_add_f32 v{MX}, v{EP}, v{EP+1}")
            a(f"v_add_f32 v{MN}, v{EN}, v{EN+1}")
            a(f"v_add_f32 v{TT}, v{EP+2}, v{EP+3}")
            a(f"v_add_f32 v{TT+1}, v{EN+2}, v{EN+3}")
            a(f"v_add_f32 v{MX}, v{MX}, v{TT}")
            a(f"v_add_f32 v{MN}, v{MN}, v{TT+1}")
            xlane_sum(a, MX, TT)
            xlane_sum(a, MN, TT)
            a(f"v_rcp_f32 v{MX}, v{MX}")
            a(f"v_rcp_f32 v{MN}, v{MN}")
            for r in range(4):
                a(f"v_mul_f32 v{EP+r}, v{EP+r}, v{MX}")
                a(f"v_mul_f32 v{EN+r}, v{EN+r}, v{MN}")
            a(f"v_cvt_pk_bf16_f32 v{EP}, v{EP}, v{EP+1}")
            a(f"v_cvt_pk_bf16_f32 v{EP+1}, v{EP+2}, v{EP+3}")
            a(f"v_cvt_pk_bf16_f32 v{EN}, v{EN}, v{EN+1}")
            a(f"v_cvt_pk_bf16_f32 v{EN+1}, v{EN+2}, v{EN+3}")
            a(f"buffer_store_dwordx2 {vr(EP,2)}, v{18+st}, s[{SRD_O}:{SRD_O+3}], 0 offen offset:{h*64}")
            a(f"buffer_store_dwordx2 {vr(EN,2)}, v{18+st}, s[{SRD_O}:{SRD_O+3}], 0 offen offset:{h*64+32}")
            a(f"v_cvt_pk_bf16_f32 v{T}, v{PK}, v{PK+1}")
            a(f"v_cvt_pk_bf16_f32 v{T+1}, v{PK+2}, v{PK+3}")
            unpack2(a, PK, PK + 1, T); unpack2(a, PK + 2, PK + 3, T + 1)
            M4, N4 = T + 28, T + 32
            for r in range(4):
                a(f"v_mov_b32 v{M4+r}, v{PK+r}")
                a(f"v_mov_b32 v{N4+r}, v{PK+r}")
            dpp_allreduce(a, [M4 + r for r in range(4)], 'v_max_f32')
            dpp_allreduce(a, [N4 + r for r in range(4)], 'v_min_f32')
            EP, EN = T + 36, T + 40
            for r in range(4):
                a(f"v_sub_f32 v{EP+r}, v{PK+r}, v{M4+r}")
                a(f"v_sub_f32 v{EN+r}, v{N4+r}, v{PK+r}")
            for r in range(4):
                a(f"v_mul_f32 v{EP+r}, {L2E}, v{EP+r}")
                a(f"v_mul_f32 v{EN+r}, {L2E}, v{EN+r}")
            for r in range(4):
                a(f"v_exp_f32 v{EP+r}, v{EP+r}")
                a(f"v_exp_f32 v{EN+r}, v{EN+r}")
            for r in range(4):
                a(f"v_mov_b32 v{M4+r}, v{EP+r}")
                a(f"v_mov_b32 v{N4+r}, v{EN+r}")
            dpp_allreduce(a, [M4 + r for r in range(4)] + [N4 + r for r in range(4)], 'v_add_f32')
            for r in range(4):
                a(f"v_rcp_f32 v{M4+r}, v{M4+r}")
                a(f"v_rcp_f32 v{N4+r}, v{N4+r}")
            for r in range(4):
                a(f"v_mul_f32 v{EP+r}, v{EP+r}, v{M4+r}")
                a(f"v_mul_f32 v{EN+r}, v{EN+r}, v{N4+r}")
            a(f"v_cvt_pk_bf16_f32 v{EP}, v{EP}, v{EP+1}")
            a(f"v_cvt_pk_bf16_f32 v{EP+1}, v{EP+2}, v{EP+3}")
            a(f"v_cvt_pk_bf16_f32 v{EN}, v{EN}, v{EN+1}")
            a(f"v_cvt_pk_bf16_f32 v{EN+1}, v{EN+2}, v{EN+3}")
            for sg, ph in ((0, EP), (1, EN)):
                kv = KV + (h * 2 + sg) * 4; z = Z + (h * 2 + sg) * 4
                a(f"v_mfma_f32_16x16x16_bf16 {vr(kv,4)}, {vr(VB,2)}, {vr(ph,2)}, {'0' if st == 0 else vr(kv,4)}")
                a(f"v_mfma_f32_16x16x16_bf16 {vr(z,4)}, v[8:9], {vr(ph,2)}, {'0' if st == 0 else vr(z,4)}")
    RED = 98304; REDZ = RED + 16384
    a(f"s_lshl_b32 s6, s{S_W}, 12")
    a(f"v_lshlrev_b32 v4, 4, v1")
    a(f"v_add_u32 v4, s6, v4")
    a(f"s_lshl_b32 s6, s{S_W}, 10")
    a(f"v_lshlrev_b32 v5, 2, v1")
    a(f"v_add_u32 v5, s6, v5")
    a(f"v_add_u32 v4, {RED}, v4")
    a(f"v_add_u32 v5, {REDZ}, v5")
    for i in range(4):
        a(f"ds_write_b128 v4, {vr(KV+4*i,4)} offset:{i*1024}")
        a(f"ds_write_b32 v5, v{Z+4*i} offset:{i*256}")
    a("s_waitcnt lgkmcnt(0)")
    stamp(a); a("s_barrier"); stamp(a)
    a(f"v_lshlrev_b32 v4, 4, v0")
    a(f"v_add_u32 v4, {RED}, v4")
    for w in range(4):
        a(f"ds_read_b128 {vr(T+4*w,4)}, v4 offset:{w*4096}")
    a(f"v_lshrrev_b32 v5, 4, v0")
    a(f"v_lshlrev_b32 v5, 8, v5")
    a(f"v_lshl_add_u32 v5, v2, 2, v5")
    a(f"v_add_u32 v5, {REDZ}, v5")
    for w in range(4):
        a(f"ds_read_b32 v{T+16+w}, v5 offset:{w*1024}")
    a(f"s_lshr_b32 s6, s{S_W}, 1")
    a(f"s_lshl_b32 s7, s{S_CT}, 1")
    a(f"s_add_u32 s6, s6, s7")
    a(f"s_lshl_b32 s6, s6, 11")
    a(f"s_and_b32 s7, s{S_W}, 1")
    a(f"s_lshl_b32 s7, s7, 6")
    a(f"s_add_u32 s6, s6, s7")
    a(f"v_lshlrev_b32 v6, 9, v3")
    a(f"v_lshl_add_u32 v6, v2, 2, v6")
    a(f"s_lshl_b32 s7, s{S_CT}, 8")
    a(f"s_add_u32 s7, s7, {KVZ_OFF}")
    a(f"v_lshlrev_b32 v7, 2, v0")
    a("s_waitcnt lgkmcnt(0)")
    for r in range(4):
        a(f"v_add_f32 v{T+r}, v{T+r}, v{T+4+r}")
        a(f"v_add_f32 v{T+8+r}, v{T+8+r}, v{T+12+r}")
    for r in range(4):
        a(f"v_add_f32 v{T+r}, v{T+r}, v{T+8+r}")
    a(f"v_add_f32 v{T+16}, v{T+16}, v{T+17}")
    a(f"v_add_f32 v{T+18}, v{T+18}, v{T+19}")
    a(f"v_add_f32 v{T+16}, v{T+16}, v{T+18}")
    for r in range(4):
        a(f"buffer_atomic_add_f32 v{T+r}, v6, s[{SRD_X2}:{SRD_X2+3}], s6 offen offset:{r*128}")
    a(f"s_cmp_lg_u32 s{S_W}, 0")
    a("s_cbranch_scc1 L_fin")
    a(f"buffer_atomic_add_f32 v{T+16}, v7, s[{SRD_X2}:{SRD_X2+3}], s7 offen")

def k2_addr(ks, nt, hh): return (12 + nt, ks * 4096 + hh * 2048)

def k2_attn_wo(a):
    prologue(a, 256); decode_wg(a, 4)
    srd(a, SRD_A, P_WS, WS_PHIQ, 0x400000)
    srd(a, SRD_B, P_WO, 0, 512 * 1024)
    srd(a, SRD_O, P_WS, WS_XA, 0x200000)
    srd_sel(a, SRD_X1, P_X, 0, P_WS, WS_XN, 0x200000)
    a(f"s_mul_i32 s6, s{S_LAYER}, {KV_STRIDE}")
    a(f"s_add_u32 s6, s6, {WS_KV}")
    a(f"s_add_u32 s{SRD_X2}, s{P_WS}, s6")
    a(f"s_addc_u32 s{SRD_X2+1}, s{P_WS+1}, 0")
    a(f"s_mov_b32 s{SRD_X2+2}, {KV_STRIDE}")
    a(f"s_mov_b32 s{SRD_X2+3}, 0x00020000")
    KVL, ZL = 65536, 98304
    PH = 80
    kvreg = lambda i: (208 + 4 * i) if i < 12 else (48 + 4 * (i - 12))
    a("v_lshlrev_b32 v4, 4, v0")
    for i in range(16):
        a(f"buffer_load_dwordx4 {vr(kvreg(i),4)}, v4, s[{SRD_X2}:{SRD_X2+3}], 0 offen offset:{(i % 1) * 0}" if False else
          f"s_mov_b32 s6, {i*4096}")
        a(f"buffer_load_dwordx4 {vr(kvreg(i),4)}, v4, s[{SRD_X2}:{SRD_X2+3}], s6 offen")
    a(f"s_mov_b32 s6, {KVZ_OFF}")
    a(f"buffer_load_dwordx4 {vr(kvreg(16),4)}, v4, s[{SRD_X2}:{SRD_X2+3}], s6 offen")
    row_voff(a, 16, 64, 16, 2048)
    for h in range(32):
        a(f"buffer_load_dwordx4 {vr(PH+4*h,4)}, v16, s[{SRD_A}:{SRD_A+3}], 0 offen offset:{h*64}")
    a(f"s_lshl_b32 s12, s{S_CT}, 7")
    dma128(a, 24, 17, 512, 1024, 12, 0, 'k2')
    tr_addrs128(a, 12, 24, 'k2')
    row_voff(a, 18, 64, 16, 1024, with_g=8)
    a(f"v_add_u32 v18, s12, v18")
    a("v_lshlrev_b32 v5, 3, v0")
    a(f"v_add_u32 v5, {KVL}, v5")
    a("s_waitcnt vmcnt(48)")
    for i in range(17):
        q = kvreg(i)
        a(f"v_cvt_pk_bf16_f32 v{q}, v{q}, v{q+1}")
        a(f"v_cvt_pk_bf16_f32 v{q+1}, v{q+2}, v{q+3}")
        a(f"ds_write_b64 v5, {vr(q,2)} offset:{i*2048}")
    a("v_lshlrev_b32 v6, 6, v2")
    a("v_lshl_add_u32 v6, v3, 4, v6")
    a(f"v_add_u32 v6, {KVL}, v6")
    a("v_lshlrev_b32 v7, 4, v3")
    a(f"v_add_u32 v7, {ZL}, v7")
    a("s_waitcnt vmcnt(16) lgkmcnt(0)")
    stamp(a); a("s_barrier"); stamp(a)
    KA = lambda h: 48 + 8 * (h % 2)
    NU = lambda h: 32 + 8 * (h % 2)
    def rd(h):
        a(f"ds_read_b128 {vr(KA(h),4)}, v6 offset:{h*1024}")
        a(f"ds_read_b128 {vr(KA(h)+4,4)}, v7 offset:{h*64}")
    def post(h):
        n = NU(h); t = 24
        a(f"v_cvt_pk_bf16_f32 v{t}, v{n}, v{n+1}")
        a(f"v_cvt_pk_bf16_f32 v{t+1}, v{n+2}, v{n+3}")
        bf16r(a, n + 4, n + 4, t + 2)
        a(f"v_add_f32 v{n+4}, {lit(1e-6)}, v{n+4}")
        bf16r(a, n + 4, n + 4, t + 2)
        a(f"v_rcp_f32 v{n+4}, v{n+4}")
        unpack2(a, n, n + 1, t); unpack2(a, n + 2, n + 3, t + 1)
        for r in range(4): a(f"v_mul_f32 v{n+r}, v{n+r}, v{n+4}")
        o = PH + 8 * (h // 2) + 2 * (h % 2)
        a(f"v_cvt_pk_bf16_f32 v{o}, v{n}, v{n+1}")
        a(f"v_cvt_pk_bf16_f32 v{o+1}, v{n+2}, v{n+3}")
    rd(0)
    for h in range(32):
        if h + 1 < 32:
            rd(h + 1); a("s_waitcnt lgkmcnt(2)")
        else:
            a("s_waitcnt lgkmcnt(0)")
        a(f"v_mfma_f32_16x16x32_bf16 {vr(NU(h),4)}, {vr(KA(h),4)}, {vr(PH+4*h,4)}, 0")
        a(f"v_mfma_f32_16x16x32_bf16 {vr(NU(h)+4,4)}, {vr(KA(h)+4,4)}, {vr(PH+4*h,4)}, 0")
        if h > 0: post(h - 1)
    post(31)
    RX = 208
    for nt in range(4):
        a(f"buffer_load_dwordx2 {vr(RX+2*nt,2)}, v18, s[{SRD_X1}:{SRD_X1+3}], 0 offen offset:{nt*32}")
    a("s_waitcnt vmcnt(4)")
    stamp(a); a("s_barrier"); stamp(a)
    gemm(a, list(range(16)), 4, 1, k2_addr, lambda ks, st: PH + 8 * ks, lambda st, nt: 32 + 4 * nt, 48, 'TTTT')
    a("s_waitcnt vmcnt(0)")
    for nt in range(4):
        c = 32 + 4 * nt
        a(f"v_cvt_pk_bf16_f32 v24, v{c}, v{c+1}")
        a(f"v_cvt_pk_bf16_f32 v25, v{c+2}, v{c+3}")
        unpack2(a, c, c + 1, 24); unpack2(a, c + 2, c + 3, 25)
        unpack2(a, 26, 27, RX + 2 * nt); unpack2(a, 28, 29, RX + 2 * nt + 1)
        for r in range(4): a(f"v_add_f32 v{c+r}, v{c+r}, v{26+r}")
        a(f"v_cvt_pk_bf16_f32 v{c}, v{c}, v{c+1}")
        a(f"v_cvt_pk_bf16_f32 v{c+1}, v{c+2}, v{c+3}")
        a(f"buffer_store_dwordx2 {vr(c,2)}, v18, s[{SRD_O}:{SRD_O+3}], 0 offen offset:{nt*32}")

KERNELS = [
    ('k0', k0_zero, 34, 0, False),
    ('k1', k1_qkv, 256, 98304 + 16384 + 4096, True),
    ('k2', k2_attn_wo, 256, 98304 + 2048 + 2048, True),
    ('k3', k3_ln_w1, 256, 65536, False),
    ('k4', k4_shift_w2, 256, 65536, False),
    ('k5', k5_ln_w3, 240, 98304, False),
    ('k6', k6_w4, 256, 163840, True),
]

def build():
    header = open('cdna_kernels/' + NAME + '.s.ref').read().split('; Override launch')[0]
    launches = [('k0', None)]
    for L in range(2):
        for k in KERNELS[1:]:
            launches.append((k[0], L if k[4] else None))
    info = {k[0]: k for k in KERNELS}
    out = [header.rstrip('\n')]
    def lab(n, L): return f"hh_{n}{'' if L is None else '_l%d' % L}_kernel"
    for n, L in launches:
        k = info[n]
        out.append(f"; @launch kernel={lab(n, L)} grid=({k[2]},1,1) block=(256,1,1) lds={k[3]}")
    out.append('.amdgcn_target "amdgcn-amd-amdhsa--gfx950"')
    out.append('.text')
    descs = []
    for n, fn, nwg, lds, layered in KERNELS:
        a = Asm()
        fn(a)
        a.label("L_fin")
        dump_stamps(a, [k[0] for k in KERNELS].index(n))
        body = a.text().replace('L_', f'L{n}_')
        entries = [(lab(n, 0), 0), (lab(n, 1), 1)] if layered else [(lab(n, None), None)]
        if layered:
            for nm, L in entries:
                out.append(f".globl {nm}\n.p2align 8\n.type {nm},@function\n{nm}:")
                out.append(f"  s_mov_b32 s{S_LAYER}, {L}\n  s_branch L{n}_body")
            out.append(f".p2align 8\nL{n}_body:")
        else:
            nm = entries[0][0]
            out.append(f".globl {nm}\n.p2align 8\n.type {nm},@function\n{nm}:")
        out.append(body.rstrip('\n'))
        out.append(f"L{n}_end:\n  s_endpgm")
        for nm, L in entries: descs.append(nm)
    out.append('.section .rodata,"a"')
    for nm in descs:
        out.append(f""".p2align 6
.amdhsa_kernel {nm}
  .amdhsa_next_free_vgpr 256
  .amdhsa_next_free_sgpr 102
  .amdhsa_accum_offset 256
  .amdhsa_group_segment_fixed_size 0
  .amdhsa_kernarg_size 96
  .amdhsa_user_sgpr_count 2
  .amdhsa_user_sgpr_kernarg_segment_ptr 1
  .amdhsa_system_sgpr_workgroup_id_x 1
.end_amdhsa_kernel""")
    return '\n'.join(out) + '\n'

if __name__ == '__main__':
    if len(sys.argv) > 2 and sys.argv[2] == 'timing': TIMING = True
    txt = build()
    dst = sys.argv[1] if len(sys.argv) > 1 else 'cdna_kernels/' + NAME + '.s'
    open(dst, 'w').write(txt)
    print('wrote', dst, len(txt), 'bytes')
```

```python
import sys
import gen
from gen import (Asm, vr, sr, NAME, S, D, F, H, WS_XA, WS_XB, WS_H, WS_X1, WS_XN, WS_H3, WS_PHIQ, WS_KV,
                 KV_STRIDE, KVZ_OFF, P_X, P_WQKV, P_WPHI, P_WO, P_BX, P_W1, P_W2, P_W3, P_W4, P_OUT, P_DBG, P_WS,
                 SRD_A, SRD_B, SRD_O, SRD_X1, SRD_X2, SRD_X3, S_RT, S_CT, S_W, S_LAYER, LOG2E, lit, prologue, srd,
                 srd_sel, decode_wg, tr_addrs128, tr_addrs64, setup_consts, xlane_sum, bf16r, GELU_C0, GELU_C1,
                 unpack2, row_voff, dpp_allreduce, stamp, dump_stamps, St)

WS_CS = 0x1480000
CS_QKV, CS_W1, CS_W3 = 0x0, 0x2000, 0x3000
SRD_CS = 96

class VM:
    def __init__(self, a): self.a = a; self.q = []
    def issue(self, tag): self.q.append(tag)
    def wait(self, tag):
        idx = [i for i, t in enumerate(self.q) if t == tag]
        if not idx: return
        idx = idx[-1]
        n = len(self.q) - 1 - idx
        self.a(f"s_waitcnt vmcnt({min(n, 63)})")
        self.q = self.q[idx + 1:]
    def wait_all(self):
        self.a("s_waitcnt vmcnt(0)"); self.q = []

def prologue8(a, nwg):
    prologue(a, nwg)
    a(f"s_mov_b32 s101, s{S_W}")
    a(f"s_and_b32 s{S_W}, s{S_W}, 3")
def split(a):
    a("s_cmp_ge_u32 s101, 4")
    a("s_cbranch_scc1 L_loader")
def loader_begin(a):
    a("s_branch L_fin")
    a.label("L_loader")
def loader_end(a):
    a("s_branch L_end")

def barrier(a, st=True):
    if st: stamp(a)
    a("s_barrier")
    if st: stamp(a)

def a_voff256(a, dst, rs, rows_per_wg, rows_per_wave, t):
    a(f"s_mul_i32 s6, s{S_RT}, {rows_per_wg}")
    a(f"s_mul_i32 s7, s{S_W}, {rows_per_wave}")
    a(f"s_add_u32 s6, s6, s7")
    a(f"s_mov_b32 s7, {rs}")
    for t4 in range(4):
        a(f"v_add_u32 v{t}, {4*t4}, v3")
        a(f"v_xor_b32 v{t+1}, v{t}, v2")
        a(f"v_add_u32 v{t}, s6, v{t}")
        a(f"v_mul_lo_u32 v{t}, v{t}, s7")
        a(f"v_lshl_add_u32 v{dst+t4}, v{t+1}, 4, v{t}")

def a_voff128(a, dst, rs, rows_per_wg, rows_per_wave, t):
    a(f"s_mul_i32 s6, s{S_RT}, {rows_per_wg}")
    a(f"s_mul_i32 s7, s{S_W}, {rows_per_wave}")
    a(f"s_add_u32 s6, s6, s7")
    a(f"s_mov_b32 s7, {rs}")
    a(f"v_lshrrev_b32 v{t+2}, 3, v1")
    a(f"v_and_b32 v{t+3}, 7, v1")
    for t2 in range(2):
        a(f"v_add_u32 v{t}, {4*t2}, v3")
        a(f"v_xor_b32 v{t+1}, v{t}, v{t+3}")
        a(f"v_add_u32 v{t}, {8*t2}, v{t+2}")
        a(f"v_add_u32 v{t}, s6, v{t}")
        a(f"v_mul_lo_u32 v{t}, v{t}, s7")
        a(f"v_lshl_add_u32 v{dst+t2}, v{t+1}, 4, v{t}")

def a_rd256(a, dst, t, wave_bytes):
    a(f"v_xor_b32 v{t}, v3, v2")
    a(f"v_lshlrev_b32 v{t}, 4, v{t}")
    a(f"v_lshl_add_u32 v{t}, v2, 8, v{t}")
    a(f"s_mul_i32 s6, s{S_W}, {wave_bytes}")
    for j in range(4):
        a(f"v_xor_b32 v{dst+j}, {j << 6}, v{t}")
        a(f"v_add_u32 v{dst+j}, s6, v{dst+j}")

def a_rd128(a, dst, t, wave_bytes):
    a(f"v_lshrrev_b32 v{t}, 1, v2")
    a(f"v_xor_b32 v{t}, v3, v{t}")
    a(f"v_lshlrev_b32 v{t}, 4, v{t}")
    a(f"v_lshl_add_u32 v{t}, v2, 7, v{t}")
    a(f"s_mul_i32 s6, s{S_W}, {wave_bytes}")
    for j in range(2):
        a(f"v_xor_b32 v{dst+j}, {j << 6}, v{t}")
        a(f"v_add_u32 v{dst+j}, s6, v{dst+j}")

def dma(a, vm, tag, voff, srdx, soff, imm, m0_sgpr_expr):
    sg, c = m0_sgpr_expr
    a(f"s_add_u32 m0, s{sg}, {c}")
    if imm:
        if soff == 0: a(f"s_mov_b32 s7, {imm}")
        else: a(f"s_add_u32 s7, {soff}, {imm}")
        soff = 's7'
    else:
        a("s_nop 0")
    a(f"buffer_load_dwordx4 v{voff}, s[{srdx}:{srdx+3}], {soff} offen lds")
    vm.issue(tag)

def b_voff128(a, voff, t, rs, swz):
    a(f"v_lshrrev_b32 v{t}, 3, v1")
    a(f"v_and_b32 v{voff}, 7, v1")
    if swz == 'std':
        a(f"v_and_b32 v{t+1}, 2, v{t}")
        a(f"s_and_b32 s6, s{S_W}, 1")
        a(f"s_lshl_b32 s6, s6, 2")
        a(f"v_or_b32 v{t+1}, s6, v{t+1}")
    else:
        a(f"v_and_b32 v{t+1}, 6, v{t}")
    a(f"v_xor_b32 v{voff}, v{voff}, v{t+1}")
    a(f"v_lshlrev_b32 v{voff}, 4, v{voff}")
    a(f"s_mov_b32 s6, {rs}")
    a(f"v_mul_lo_u32 v{t}, v{t}, s6")
    a(f"v_add_u32 v{voff}, v{voff}, v{t}")

def b_voff64(a, voff, t, rs):
    a(f"v_lshrrev_b32 v{t}, 2, v1")
    a(f"v_and_b32 v{voff}, 3, v1")
    a(f"v_lshrrev_b32 v{t+1}, 5, v1")
    a(f"v_lshlrev_b32 v{t+1}, 1, v{t+1}")
    a(f"v_xor_b32 v{voff}, v{voff}, v{t+1}")
    a(f"v_lshlrev_b32 v{voff}, 4, v{voff}")
    a(f"s_mov_b32 s6, {rs}")
    a(f"v_mul_lo_u32 v{t}, v{t}, s6")
    a(f"v_add_u32 v{voff}, v{voff}, v{t}")

def tr_addrs64s(a, dst, vt, sub_bytes):
    a(f"v_lshrrev_b32 v{vt}, 2, v2")
    a(f"v_and_b32 v{vt+1}, 3, v2")
    a(f"v_lshl_add_u32 v{vt+2}, v3, 3, v{vt}")
    a(f"v_and_b32 v{vt+3}, 1, v3")
    a(f"v_lshlrev_b32 v{vt+3}, 1, v{vt+3}")
    a(f"v_lshlrev_b32 v{vt+2}, 6, v{vt+2}")
    a(f"v_and_b32 v{vt+4}, 1, v{vt+1}")
    a(f"v_lshl_add_u32 v{vt+2}, v{vt+4}, 3, v{vt+2}")
    a(f"v_lshrrev_b32 v{vt+1}, 1, v{vt+1}")
    for n2 in range(2):
        a(f"v_or_b32 v{vt+4}, {2*n2}, v{vt+1}")
        a(f"v_xor_b32 v{vt+4}, v{vt+4}, v{vt+3}")
        a(f"v_lshl_add_u32 v{dst+n2}, v{vt+4}, 4, v{vt+2}")
    for j in (1, 2):
        for n2 in range(2):
            a(f"v_add_u32 v{dst+2*j+n2}, {j*sub_bytes}, v{dst+n2}")

def ln_finish(a, SUM, G, mb, rs, t):
    g = t; t0 = t + 1; mean = t + 3
    a(f"v_cndmask_b32 v{g}, 0, v{G}, s[64:65]")
    for r in range(1, 4):
        a(f"v_cndmask_b32 v{g}, v{g}, v{G+r}, s[{64+2*r}:{65+2*r}]")
    a(f"v_mul_f32 v{mean}, {lit(1.0/512)}, v{SUM}")
    xlane_sum(a, g, t0)
    bf16r(a, mb, mean, t0)
    a(f"v_mul_f32 v{g}, {lit(1.0/512)}, v{g}")
    a(f"v_fma_f32 v{g}, -v{mean}, v{mean}, v{g}")
    a(f"v_max_f32 v{g}, 0, v{g}")
    bf16r(a, g, g, t0)
    a(f"v_add_f32 v{g}, {lit(1e-5)}, v{g}")
    bf16r(a, g, g, t0)
    a(f"v_sqrt_f32 v{g}, v{g}")
    bf16r(a, g, g, t0)
    a(f"v_rcp_f32 v{rs}, v{g}")

def gelu4(a, c, t, vc0):
    for p in (0, 2):
        a(f"v_pk_mul_f32 {vr(t+p,2)}, {vr(c+p,2)}, {vr(c+p,2)}")
    for p in (0, 2):
        a(f"v_pk_fma_f32 {vr(t+p,2)}, {vr(t+p,2)}, {vr(vc0+2,2)}, {vr(vc0,2)}")
    for p in (0, 2):
        a(f"v_pk_mul_f32 {vr(t+p,2)}, {vr(t+p,2)}, {vr(c+p,2)}")
    for r in range(4): a(f"v_exp_f32 v{t+r}, v{t+r}")
    for p in (0, 2):
        a(f"v_pk_add_f32 {vr(t+p,2)}, {vr(t+p,2)}, 1.0 op_sel_hi:[1,0]")
    for r in range(4): a(f"v_rcp_f32 v{t+r}, v{t+r}")
    for p in (0, 2):
        a(f"v_pk_mul_f32 {vr(c+p,2)}, {vr(c+p,2)}, {vr(t+p,2)}")

def fold4(a, c, cs, nmb2, rs2):
    for p in (0, 2):
        a(f"v_pk_fma_f32 {vr(c+p,2)}, {vr(cs+p,2)}, {vr(nmb2,2)}, {vr(c+p,2)}")
    for p in (0, 2):
        a(f"v_pk_mul_f32 {vr(c+p,2)}, {vr(c+p,2)}, {vr(rs2,2)}")

def round4(a, c, t):
    a(f"v_cvt_pk_bf16_f32 v{t}, v{c}, v{c+1}")
    a(f"v_cvt_pk_bf16_f32 v{t+1}, v{c+2}, v{c+3}")
    unpack2(a, c, c + 1, t); unpack2(a, c + 2, c + 3, t + 1)

def pack4(a, dst, c):
    a(f"v_cvt_pk_bf16_f32 v{dst}, v{c}, v{c+1}")
    a(f"v_cvt_pk_bf16_f32 v{dst+1}, v{c+2}, v{c+3}")

def k0_init(a):
    prologue(a, 54)
    srd(a, SRD_O, P_WS, WS_KV, 2 * KV_STRIDE)
    srd(a, SRD_CS, P_WS, WS_CS, 0x5000)
    a(f"""
    s_cmp_ge_u32 s2, 34
    s_cbranch_scc1 L_nozero
    s_cmp_ge_u32 s2, 17
    s_cselect_b32 s6, {KV_STRIDE - 17 * 4096}, 0
    s_lshl_b32 s7, s2, 12
    s_add_u32 s6, s6, s7
    v_lshlrev_b32 v4, 4, v0
    v_mov_b32 v8, 0
    v_mov_b32 v9, 0
    v_mov_b32 v10, 0
    v_mov_b32 v11, 0
    buffer_store_dwordx4 v[8:11], v4, s[{SRD_O}:{SRD_O+3}], s6 offen
    """)
    a.label("L_nozero")
    a(f"""
    s_mov_b32 s{SRD_B}, s{P_WQKV}
    s_mov_b32 s{SRD_B+1}, s{P_WQKV+1}
    s_mov_b32 s{SRD_B+2}, {512*3072}
    s_mov_b32 s{SRD_B+3}, 0x00020000
    s_mov_b32 s8, 3072
    s_mov_b32 s9, s2
    s_mov_b32 s10, {CS_QKV}
    s_cmp_lt_u32 s2, 24
    s_cbranch_scc1 L_sel
    s_mov_b32 s{SRD_B}, s{P_W1}
    s_mov_b32 s{SRD_B+1}, s{P_W1+1}
    s_mov_b32 s{SRD_B+2}, {512*1024}
    s_mov_b32 s8, 1024
    s_sub_u32 s9, s2, 24
    s_mov_b32 s10, {CS_W1}
    s_cmp_lt_u32 s2, 32
    s_cbranch_scc1 L_sel
    s_mov_b32 s{SRD_B}, s{P_W3}
    s_mov_b32 s{SRD_B+1}, s{P_W3+1}
    s_mov_b32 s{SRD_B+2}, {512*F*2}
    s_mov_b32 s8, {F*2}
    s_sub_u32 s9, s2, 32
    s_mov_b32 s10, {CS_W3}
    """)
    a.label("L_sel")
    a(f"""
    v_lshrrev_b32 v4, 3, v0
    v_and_b32 v5, 7, v0
    s_lshl_b32 s11, s8, 4
    v_mul_lo_u32 v4, v4, s11
    v_lshl_add_u32 v4, v5, 4, v4
    s_lshl_b32 s12, s9, 7
    """)
    for i in range(16):
        a(f"buffer_load_dwordx4 {vr(32+4*i,4)}, v4, s[{SRD_B}:{SRD_B+3}], s12 offen")
        if i < 15: a("s_add_u32 s12, s12, s8")
    for r in range(8): a(f"v_mov_b32 v{16+r}, 0")
    for i in range(16):
        a(f"s_waitcnt vmcnt({15-i})")
        for p in range(4):
            unpack2(a, 24, 25, 32 + 4 * i + p)
            a(f"v_pk_add_f32 {vr(16+2*p,2)}, {vr(16+2*p,2)}, v[24:25]")
    a("v_lshlrev_b32 v6, 5, v0")
    a("ds_write_b128 v6, v[16:19]")
    a("ds_write_b128 v6, v[20:23] offset:16")
    a("s_waitcnt lgkmcnt(0)")
    a("s_barrier")
    a(f"s_cmp_lg_u32 s{S_W}, 0")
    a("s_cbranch_scc1 L_fin")
    a("v_lshlrev_b32 v6, 2, v1")
    for i in range(32):
        a(f"ds_read_b32 v{32+i}, v6 offset:{i*256}")
    a("s_waitcnt lgkmcnt(0)")
    for st in (16, 8, 4, 2, 1):
        for i in range(st):
            a(f"v_add_f32 v{32+i}, v{32+i}, v{32+st+i}")
    a("s_lshl_b32 s12, s9, 8")
    a("s_add_u32 s12, s12, s10")
    a(f"buffer_store_dword v32, v6, s[{SRD_CS}:{SRD_CS+3}], s12 offen")

def gemm64_chunk(a, steps, ard, brd, aslot, bslot, acc, abuf, bbuf, first, xreg=None, stats=None):
    def lds_off(base_reg, off):
        return base_reg, off
    def reads(j):
        if xreg is None:
            a(f"ds_read_b128 {vr(abuf + (j % 2) * 4, 4)}, v{ard + j} offset:{aslot}")
        for nt in range(4):
            for hh in range(2):
                a(f"ds_read_b64_tr_b16 {vr(bbuf + (j % 2) * 16 + nt * 4 + hh * 2, 2)}, v{brd + nt} offset:{bslot + j * 4096 + hh * 512}")
    per = 8 + (1 if xreg is None else 0)
    reads(0)
    for j in range(steps):
        if j + 1 < steps:
            reads(j + 1); a(f"s_waitcnt lgkmcnt({per})")
        else:
            a("s_waitcnt lgkmcnt(0)")
        x = vr(abuf + (j % 2) * 4, 4) if xreg is None else vr(xreg(j), 4)
        z = first and j == 0
        for nt in range(4):
            c = vr(acc + 4 * nt, 4)
            a(f"v_mfma_f32_16x16x32_bf16 {c}, {vr(bbuf + (j % 2) * 16 + nt * 4, 4)}, {x}, {'0' if z else c}")
        if stats is not None:
            SU, G = stats
            a(f"v_mfma_f32_16x16x32_bf16 {vr(SU,4)}, v[8:11], {x}, {'0' if z else vr(SU,4)}")
            a(f"v_mfma_f32_16x16x32_bf16 {vr(G,4)}, {x}, {x}, {'0' if z else vr(G,4)}")

class Banked:
    def __init__(self, a, base, n, extra):
        self.sets = [base] + extra
        for k, e in enumerate(extra):
            for i in range(n):
                a(f"v_add_u32 v{e+i}, {(k+1) << 16}, v{base+i}")
    def get(self, off):
        return self.sets[off >> 16], off & 0xffff

def k4_shift_w2(a):
    vm = VM(a)
    prologue8(a, 256); decode_wg(a, 4)
    srd(a, SRD_A, P_WS, WS_H, 0x200000)
    srd(a, SRD_B, P_W2, 0, 512 * 1024)
    srd(a, SRD_O, P_WS, WS_X1, 0x200000)
    srd(a, SRD_X1, P_WS, WS_XB, 0x200000)
    a(f"s_lshl_b32 s12, s{S_CT}, 7")
    split(a)
    row_voff(a, 21, 64, 16, 1024, with_g=8)
    a(f"v_add_u32 v21, s12, v21")
    XB = 80
    for nt in range(4):
        a(f"buffer_load_dwordx2 {vr(XB+2*nt,2)}, v21, s[{SRD_X1}:{SRD_X1+3}], 0 offen offset:{nt*32}")
    a_rd256(a, 4, 24, 4096)
    tr_addrs128(a, 12, 24, 'std')
    for nt in range(4): a(f"v_add_u32 v{12+nt}, 0x10000, v{12+nt}")
    for c in range(4):
        barrier(a)
        gemm64_chunk(a, 4, 4, 12, c * 16384, c * 16384, 32, 24, 48, c == 0)
    a("s_waitcnt vmcnt(0)")
    for nt in range(4):
        c = 32 + 4 * nt
        round4(a, c, 24)
        unpack2(a, 26, 27, XB + 2 * nt); unpack2(a, 28, 29, XB + 2 * nt + 1)
        for p in (0, 2): a(f"v_pk_add_f32 {vr(c+p,2)}, {vr(c+p,2)}, {vr(26+p,2)}")
        pack4(a, c, c)
        a(f"buffer_store_dwordx2 {vr(c,2)}, v21, s[{SRD_O}:{SRD_O+3}], 0 offen offset:{nt*32}")
    loader_begin(a)
    AV, BV = 16, 20
    a_voff256(a, AV, 1024, 64, 16, 24)
    b_voff128(a, BV, 24, 1024, 'std')
    a(f"s_lshl_b32 s13, s{S_W}, 12")
    a(f"s_lshl_b32 s14, s{S_W}, 10")
    a(f"s_mul_i32 s10, s{S_W}, {8*1024}")
    a(f"s_add_u32 s10, s10, s12")
    def issue(c):
        sh = (-1, 1, -2, 2)[c]
        for t4 in range(4):
            a(f"v_add_u32 v{88+t4}, {(sh * 1024 + c * 256) & 0xffffffff}, v{AV+t4}")
        for t4 in range(4):
            dma(a, vm, ('ch', c), 88 + t4, SRD_A, 0, 0, (13, c * 16384 + t4 * 1024))
        for i in range(4):
            dma(a, vm, ('ch', c), BV, SRD_B, 's10', 0, (14, 65536 + c * 16384 + i * 4096))
            a(f"s_add_u32 s10, s10, {32*1024}")
    issue(0); issue(1)
    for c in range(4):
        vm.wait(('ch', c)); a("s_barrier")
        if c + 2 < 4: issue(c + 2)
    loader_end(a)

def k3_ln_w1(a):
    vm = VM(a)
    prologue8(a, 256); decode_wg(a, 4)
    srd(a, SRD_A, P_WS, WS_XA, 0x200000)
    srd(a, SRD_B, P_W1, 0, 512 * 1024)
    srd(a, SRD_O, P_WS, WS_H, 0x200000)
    srd(a, SRD_X1, P_WS, WS_XB, 0x200000)
    srd(a, SRD_CS, P_WS, WS_CS, 0x5000)
    a(f"s_lshl_b32 s12, s{S_CT}, 7")
    split(a)
    CSR = 144
    a("v_lshlrev_b32 v24, 4, v3")
    a(f"s_lshl_b32 s6, s{S_CT}, 8")
    a(f"s_add_u32 s6, s6, {CS_W1}")
    for nt in range(4):
        a(f"buffer_load_dwordx4 {vr(CSR+4*nt,4)}, v24, s[{SRD_CS}:{SRD_CS+3}], s6 offen offset:{nt*64}")
    setup_consts(a)
    a_rd256(a, 4, 24, 4096)
    tr_addrs128(a, 12, 24, 'std')
    for nt in range(4): a(f"v_add_u32 v{12+nt}, 0x10000, v{12+nt}")
    row_voff(a, 21, 64, 16, 1024, with_g=8)
    a(f"v_add_u32 v21, s12, v21")
    row_voff(a, 22, 64, 16, 1024)
    X = 80
    SU, G = 160, 164
    barrier(a)
    for c in range(4):
        for j in range(4):
            a(f"ds_read_b128 {vr(X+16*c+4*j,4)}, v{4+j} offset:{c*16384}")
    for k in range(16):
        a(f"s_waitcnt lgkmcnt({15-k})")
        x = vr(X + 4 * k, 4)
        a(f"v_mfma_f32_16x16x32_bf16 {vr(SU,4)}, v[8:11], {x}, {'0' if k == 0 else vr(SU,4)}")
        a(f"v_mfma_f32_16x16x32_bf16 {vr(G,4)}, {x}, {x}, {'0' if k == 0 else vr(G,4)}")
    stamp(a)
    MB, RS = 168, 170
    ln_finish(a, SU, G, MB, RS, 24)
    a(f"v_mov_b32 v{RS+1}, v{RS}")
    a(f"v_mul_f32 v{MB}, v{MB}, v{RS}")
    a(f"v_sub_f32 v{MB}, 0, v{MB}")
    a(f"v_mov_b32 v{MB+1}, v{MB}")
    for p in range(64):
        t = 24 + (p % 4) * 2
        unpack2(a, t, t + 1, X + p)
        a(f"v_pk_fma_f32 {vr(t,2)}, {vr(t,2)}, {vr(RS,2)}, {vr(MB,2)}")
        a(f"v_cvt_pk_bf16_f32 v{X+p}, v{t}, v{t+1}")
    for c in range(8):
        a(f"s_cmp_lg_u32 s{S_CT}, {c}")
        a(f"s_cbranch_scc1 L_xb{c}")
        for j in (2 * c, 2 * c + 1):
            a(f"buffer_store_dwordx4 {vr(X+4*j,4)}, v22, s[{SRD_X1}:{SRD_X1+3}], 0 offen offset:{j*64}")
        a.label(f"L_xb{c}")
    barrier(a)
    for c in range(4):
        gemm64_chunk(a, 4, None, 12, 0, c * 16384, 32, None, 48, c == 0, xreg=lambda j, c=c: X + 16 * c + 4 * j, stats=(SU, G))
    stamp(a)
    ln_finish(a, SU, G, MB, RS, 24)
    a(f"v_mov_b32 v{RS+1}, v{RS}")
    a(f"v_sub_f32 v{MB}, 0, v{MB}")
    a(f"v_mov_b32 v{MB+1}, v{MB}")
    GC = 172
    a(f"v_mov_b32 v{GC}, {lit(GELU_C0)}"); a(f"v_mov_b32 v{GC+1}, {lit(GELU_C0)}")
    a(f"v_mov_b32 v{GC+2}, {lit(GELU_C1)}"); a(f"v_mov_b32 v{GC+3}, {lit(GELU_C1)}")
    a("s_waitcnt vmcnt(2)")
    for nt in range(4):
        c = 32 + 4 * nt
        fold4(a, c, CSR + 4 * nt, MB, RS)
        round4(a, c, 24)
        gelu4(a, c, 28, GC)
        pack4(a, c, c)
        a(f"buffer_store_dwordx2 {vr(c,2)}, v21, s[{SRD_O}:{SRD_O+3}], 0 offen offset:{nt*32}")
    loader_begin(a)
    AV, BV = 16, 20
    a_voff256(a, AV, 1024, 64, 16, 24)
    b_voff128(a, BV, 24, 1024, 'std')
    a(f"s_lshl_b32 s13, s{S_W}, 12")
    a(f"s_lshl_b32 s14, s{S_W}, 10")
    a(f"s_mul_i32 s10, s{S_W}, {8*1024}")
    a(f"s_add_u32 s10, s10, s12")
    for c in range(4):
        for t4 in range(4):
            dma(a, vm, 'a', AV + t4, SRD_A, 0, c * 256, (13, c * 16384 + t4 * 1024))
    def issue_b(c):
        for i in range(4):
            dma(a, vm, 'b', BV, SRD_B, 's10', 0, (14, 65536 + c * 16384 + i * 4096))
            a(f"s_add_u32 s10, s10, {32*1024}")
    issue_b(0)
    vm.wait('a'); a("s_barrier")
    issue_b(1); issue_b(2); issue_b(3)
    vm.wait('b'); a("s_barrier")
    loader_end(a)

def k6_w4(a):
    vm = VM(a)
    prologue8(a, 256); decode_wg(a, 4)
    srd(a, SRD_A, P_WS, WS_H3, S * F * 2)
    srd(a, SRD_B, P_W4, 0, F * 1024)
    srd_sel(a, SRD_O, P_WS, WS_XN, P_OUT, 0, 0x200000)
    srd(a, SRD_X1, P_WS, WS_X1, 0x200000)
    srd(a, SRD_X2, P_WS, WS_XA, 0x200000)
    NS, NCH, NI = 5, 11, 2
    a(f"s_lshl_b32 s12, s{S_CT}, 7")
    split(a)
    row_voff(a, 21, 64, 16, 1024, with_g=8)
    a(f"v_add_u32 v21, s12, v21")
    R1, R2 = 96, 104
    for nt in range(4):
        a(f"buffer_load_dwordx2 {vr(R1+2*nt,2)}, v21, s[{SRD_X1}:{SRD_X1+3}], 0 offen offset:{nt*32}")
        a(f"buffer_load_dwordx2 {vr(R2+2*nt,2)}, v21, s[{SRD_X2}:{SRD_X2+3}], 0 offen offset:{nt*32}")
    a_rd256(a, 4, 24, 4096)
    tr_addrs128(a, 12, 24, 'std')
    AB = Banked(a, 4, 4, [80, 84])
    BB = Banked(a, 12, 4, [88, 92])
    for c in range(NCH):
        barrier(a, c in (0, NCH - 1))
        slot = (c % NS) * 32768
        ar, ao = AB.get(slot); br, bo = BB.get(slot + 16384)
        gemm64_chunk(a, 4 if c < 10 else 3, ar, br, ao, bo, 32, 24, 48, c == 0)
    a("s_waitcnt vmcnt(0)")
    for nt in range(4):
        c = 32 + 4 * nt
        round4(a, c, 24)
        unpack2(a, 26, 27, R1 + 2 * nt); unpack2(a, 28, 29, R1 + 2 * nt + 1)
        for p in (0, 2): a(f"v_pk_add_f32 {vr(c+p,2)}, {vr(c+p,2)}, {vr(26+p,2)}")
        round4(a, c, 24)
        unpack2(a, 26, 27, R2 + 2 * nt); unpack2(a, 28, 29, R2 + 2 * nt + 1)
        for p in (0, 2): a(f"v_pk_add_f32 {vr(c+p,2)}, {vr(c+p,2)}, {vr(26+p,2)}")
        pack4(a, c, c)
        a(f"buffer_store_dwordx2 {vr(c,2)}, v21, s[{SRD_O}:{SRD_O+3}], 0 offen offset:{nt*32}")
    loader_begin(a)
    AV, BV = 16, 20
    a_voff256(a, AV, F * 2, 64, 16, 24)
    b_voff128(a, BV, 24, 1024, 'std')
    a(f"s_lshl_b32 s13, s{S_W}, 12")
    a(f"s_lshl_b32 s14, s{S_W}, 10")
    a(f"s_mul_i32 s10, s{S_W}, {8*1024}")
    a(f"s_add_u32 s10, s10, s12")
    def issue(c):
        slot = (c % NS) * 32768
        for t4 in range(4):
            dma(a, vm, ('ch', c), AV + t4, SRD_A, 0, c * 256, (13, slot + t4 * 1024))
        for i in range(4 if c < 10 else 3):
            dma(a, vm, ('ch', c), BV, SRD_B, 's10', 0, (14, slot + 16384 + i * 4096))
            a(f"s_add_u32 s10, s10, {32*1024}")
    loader_ring(a, vm, issue, NCH, NS, NI)
    loader_end(a)

def loader_ring(a, vm, issue, NCH, NS, NI):
    nxt = 0
    while nxt < min(NI, NCH): issue(nxt); nxt += 1
    for c in range(NCH):
        vm.wait(('ch', c)); a("s_barrier")
        k = 0
        while nxt < NCH and nxt <= c - 1 + NS and k < LOOKAHEAD_STEP:
            issue(nxt); nxt += 1; k += 1

LOOKAHEAD_STEP = 1

SLOT96 = 28672
def gemm96_compute(a, orient):
    NS, NCH = 5, 8
    setup_consts(a)
    a_rd128(a, 4, 24, 4096)
    tr_addrs64s(a, 160, 24, 4096)
    AB = Banked(a, 4, 2, [166, 168])
    BB = Banked(a, 160, 6, [170, 176])
    acc = lambda st, nt: 32 + 24 * st + 4 * nt
    for c in range(NCH):
        barrier(a, c in (0, NCH - 1))
        slot = (c % NS) * SLOT96
        def reads(j):
            for st in range(2):
                r, o = AB.get(slot + st * 2048)
                a(f"ds_read_b128 {vr(96 + j * 8 + st * 4, 4)}, v{r + j} offset:{o}")
            for nt in range(6):
                for hh in range(2):
                    r, o = BB.get(slot + 16384 + j * 2048 + hh * 256)
                    a(f"ds_read_b64_tr_b16 {vr(112 + j * 24 + nt * 4 + hh * 2, 2)}, v{r + nt} offset:{o}")
        reads(0); reads(1)
        for j in range(2):
            a(f"s_waitcnt lgkmcnt({14 if j == 0 else 0})")
            z = c == 0 and j == 0
            for nt in range(6):
                for st in range(2):
                    cc = vr(acc(st, nt), 4); w = vr(112 + j * 24 + nt * 4, 4); x = vr(96 + j * 8 + st * 4, 4)
                    if orient[nt] == 'T': a(f"v_mfma_f32_16x16x32_bf16 {cc}, {w}, {x}, {'0' if z else cc}")
                    else: a(f"v_mfma_f32_16x16x32_bf16 {cc}, {x}, {w}, {'0' if z else cc}")
            for st in range(2):
                x = vr(96 + j * 8 + st * 4, 4); SU = vr(80 + 8 * st, 4); G = vr(84 + 8 * st, 4)
                a(f"v_mfma_f32_16x16x32_bf16 {SU}, v[8:11], {x}, {'0' if z else SU}")
                a(f"v_mfma_f32_16x16x32_bf16 {G}, {x}, {x}, {'0' if z else G}")
    stamp(a)
    return acc

def gemm96_loader(a, rs_a, rs_b, col_sgprs):
    vm = VM(a)
    NS, NCH, NI = 5, 8, 2
    AV, BV = 16, 18
    a_voff128(a, AV, rs_a, 128, 32, 24)
    b_voff64(a, BV, 24, rs_b)
    a(f"s_lshl_b32 s13, s{S_W}, 12")
    a(f"s_lshl_b32 s14, s{S_W}, 10")
    a(f"s_mul_i32 s10, s{S_W}, {16*rs_b}")
    a(f"s_mov_b32 s11, {16*rs_a}")
    def issue(c):
        slot = (c % NS) * SLOT96
        for t in range(4):
            dma(a, vm, ('ch', c), AV + (t & 1), SRD_A, 's11' if t >= 2 else 0, c * 128, (13, slot + t * 1024))
        for j in range(3):
            a(f"s_add_u32 s6, s10, s{col_sgprs[j]}")
            dma(a, vm, ('ch', c), BV, SRD_B, 's6', 0, (14, slot + 16384 + j * 4096))
        a(f"s_add_u32 s10, s10, {64*rs_b}")
    loader_ring(a, vm, issue, NCH, NS, NI)

def k5_ln_w3(a):
    vm = VM(a)
    prologue8(a, 240); decode_wg(a, 2)
    srd(a, SRD_A, P_WS, WS_X1, 0x200000)
    srd(a, SRD_B, P_W3, 0, 512 * F * 2)
    srd(a, SRD_O, P_WS, WS_H3, S * F * 2)
    srd(a, SRD_CS, P_WS, WS_CS, 0x5000)
    a(f"s_mul_i32 s12, s{S_CT}, 192")
    a(f"s_add_u32 s8, s12, 64")
    a(f"s_add_u32 s9, s12, 128")
    CSR = 184
    def after():
        a("v_lshlrev_b32 v24, 4, v3")
        a(f"s_mul_i32 s6, s{S_CT}, 384")
        a(f"s_add_u32 s6, s6, {CS_W3}")
        for nt in range(6):
            a(f"buffer_load_dwordx4 {vr(CSR+4*nt,4)}, v24, s[{SRD_CS}:{SRD_CS+3}], s6 offen offset:{nt*64}")
            vm.issue('cs')
        for st in range(2):
            row_voff(a, 20 + st, 128, 32, F * 2, with_g=8, st=st)
            a(f"v_add_u32 v{20+st}, s12, v{20+st}")
    split(a)
    after()
    acc = gemm96_compute(a, 'TTTTTT')
    MB = (96, 100); RS = (98, 102)
    for st in range(2):
        ln_finish(a, 80 + 8 * st, 84 + 8 * st, MB[st], RS[st], 24)
        a(f"v_mov_b32 v{RS[st]+1}, v{RS[st]}")
        a(f"v_sub_f32 v{MB[st]}, 0, v{MB[st]}")
        a(f"v_mov_b32 v{MB[st]+1}, v{MB[st]}")
    GC = 104
    a(f"v_mov_b32 v{GC}, {lit(GELU_C0)}"); a(f"v_mov_b32 v{GC+1}, {lit(GELU_C0)}")
    a(f"v_mov_b32 v{GC+2}, {lit(GELU_C1)}"); a(f"v_mov_b32 v{GC+3}, {lit(GELU_C1)}")
    vm.wait('cs')
    for nt in range(6):
        if nt == 2:
            a(f"s_cmp_eq_u32 s{S_CT}, 14")
            a("s_cbranch_scc1 L_fin")
        for st in range(2):
            c = acc(st, nt)
            fold4(a, c, CSR + 4 * nt, MB[st], RS[st])
            round4(a, c, 24 + 2 * st)
            gelu4(a, c, 108 + 4 * st, GC)
            pack4(a, c, c)
            a(f"buffer_store_dwordx2 {vr(c,2)}, v{20+st}, s[{SRD_O}:{SRD_O+3}], 0 offen offset:{nt*32}")
    loader_begin(a)
    gemm96_loader(a, 1024, F * 2, (12, 8, 9))
    loader_end(a)

def k1_qkv(a):
    vm = VM(a)
    prologue8(a, 256); decode_wg(a, 2)
    srd_sel(a, SRD_A, P_X, 0, P_WS, WS_XN, 0x200000)
    srd(a, SRD_B, P_WQKV, 0, 512 * 1536 * 2)
    srd(a, SRD_O, P_WS, WS_PHIQ, 0x400000)
    srd(a, SRD_X1, P_WPHI, 0, 32 * 512)
    srd(a, SRD_CS, P_WS, WS_CS, 0x5000)
    a(f"s_mul_i32 s6, s{S_LAYER}, {KV_STRIDE}")
    a(f"s_add_u32 s6, s6, {WS_KV}")
    a(f"s_add_u32 s{SRD_X2}, s{P_WS}, s6")
    a(f"s_addc_u32 s{SRD_X2+1}, s{P_WS+1}, 0")
    a(f"s_mov_b32 s{SRD_X2+2}, {KV_STRIDE}")
    a(f"s_mov_b32 s{SRD_X2+3}, 0x00020000")
    a(f"s_lshl_b32 s12, s{S_CT}, 6")
    a(f"s_add_u32 s8, s12, 1024")
    a(f"s_add_u32 s9, s12, 2048")
    CSQ = 184
    WP = 204
    def after():
        a(f"v_lshlrev_b32 v24, 7, v3")
        a(f"v_lshl_add_u32 v24, v2, 1, v24")
        a(f"s_lshl_b32 s6, s{S_CT}, 10")
        for h in range(2):
            for jj in range(4):
                a(f"buffer_load_ushort v{WP+4*h+jj}, v24, s[{SRD_X1}:{SRD_X1+3}], s6 offen offset:{h*512 + jj*32}")
                vm.issue('cs')
        a("v_lshlrev_b32 v24, 4, v3")
        a("v_lshlrev_b32 v25, 2, v2")
        a(f"s_lshl_b32 s6, s{S_CT}, 7")
        for nt in range(4):
            a(f"buffer_load_dwordx4 {vr(CSQ+4*nt,4)}, v24, s[{SRD_CS}:{SRD_CS+3}], s6 offen offset:{(nt//2)*2048 + (nt%2)*64}")
            vm.issue('cs')
        a(f"s_add_u32 s6, s6, 4096")
        for h in range(2):
            a(f"buffer_load_dword v{CSQ+16+h}, v25, s[{SRD_CS}:{SRD_CS+3}], s6 offen offset:{h*64}")
            vm.issue('cs')
        for st in range(2):
            row_voff(a, 20 + st, 128, 32, 2048, with_g=8, st=st)
            a(f"s_lshl_b32 s6, s{S_CT}, 7")
            a(f"v_add_u32 v{20+st}, s6, v{20+st}")
    split(a)
    after()
    accf = gemm96_compute(a, 'TTTTNN')
    MB = (96, 100); RS = (98, 102)
    for st in range(2):
        ln_finish(a, 80 + 8 * st, 84 + 8 * st, MB[st], RS[st], 24)
    RRS = (104, 112); RRM = (108, 116)
    a("v_lshlrev_b32 v23, 4, v3")
    for r in range(4): a(f"v_add_u32 v{24+r}, {4*r}, v23")
    for st in range(2):
        for r in range(4):
            a(f"ds_bpermute_b32 v{RRS[st]+r}, v{24+r}, v{RS[st]}")
            a(f"ds_bpermute_b32 v{RRM[st]+r}, v{24+r}, v{MB[st]}")
    for st in range(2):
        a(f"v_mov_b32 v{RS[st]+1}, v{RS[st]}")
        a(f"v_sub_f32 v{MB[st]}, 0, v{MB[st]}")
        a(f"v_mov_b32 v{MB[st]+1}, v{MB[st]}")
    vm.wait('cs')
    for h in range(2):
        for jj in range(2):
            a(f"v_lshl_or_b32 v{28+2*h+jj}, v{WP+4*h+2*jj+1}, 16, v{WP+4*h+2*jj}")
    a("s_waitcnt lgkmcnt(0)")
    KV = 120; Z = 136; T = 212 - 60
    T = 212
    L2E = lit(LOG2E)
    for st in range(2):
        for h in range(2):
            wph = vr(28 + 2 * h, 2)
            c = accf(st, h); ck = accf(st, 2 + h); cv = accf(st, 4 + h)
            fold4(a, c, CSQ + 4 * h, MB[st], RS[st])
            fold4(a, ck, CSQ + 8 + 4 * h, MB[st], RS[st])
            pack4(a, T, c); pack4(a, T + 2, ck)
            P = T + 4; PK = T + 8; VB = T + 12
            a(f"v_mfma_f32_16x16x16_bf16 {vr(P,4)}, {wph}, {vr(T,2)}, 0")
            a(f"v_mfma_f32_16x16x16_bf16 {vr(PK,4)}, {vr(T+2,2)}, {wph}, 0")
            for r in range(4):
                a(f"v_fma_f32 v{cv+r}, -v{RRM[st]+r}, v{CSQ+16+h}, v{cv+r}")
            for r in range(4):
                a(f"v_mul_f32 v{cv+r}, v{cv+r}, v{RRS[st]+r}")
            pack4(a, VB, cv)
            round4(a, P, T)
            MX, MN, TT = T + 16, T + 17, T + 18
            a(f"v_max3_f32 v{MX}, v{P}, v{P+1}, v{P+2}")
            a(f"v_max_f32 v{MX}, v{MX}, v{P+3}")
            a(f"v_min3_f32 v{MN}, v{P}, v{P+1}, v{P+2}")
            a(f"v_min_f32 v{MN}, v{MN}, v{P+3}")
            xlane_sum(a, MX, TT, 'v_max_f32')
            xlane_sum(a, MN, TT + 1, 'v_min_f32')
            EP, EN = T + 20, T + 24
            for r in range(4):
                a(f"v_sub_f32 v{EP+r}, v{P+r}, v{MX}")
                a(f"v_sub_f32 v{EN+r}, v{MN}, v{P+r}")
            for r in range(4):
                a(f"v_mul_f32 v{EP+r}, {L2E}, v{EP+r}")
                a(f"v_mul_f32 v{EN+r}, {L2E}, v{EN+r}")
            for r in range(4):
                a(f"v_exp_f32 v{EP+r}, v{EP+r}")
                a(f"v_exp_f32 v{EN+r}, v{EN+r}")
            a(f"v_add_f32 v{MX}, v{EP}, v{EP+1}")
            a(f"v_add_f32 v{MN}, v{EN}, v{EN+1}")
            a(f"v_add_f32 v{TT}, v{EP+2}, v{EP+3}")
            a(f"v_add_f32 v{TT+1}, v{EN+2}, v{EN+3}")
            a(f"v_add_f32 v{MX}, v{MX}, v{TT}")
            a(f"v_add_f32 v{MN}, v{MN}, v{TT+1}")
            xlane_sum(a, MX, TT)
            xlane_sum(a, MN, TT + 1)
            a(f"v_rcp_f32 v{MX}, v{MX}")
            a(f"v_rcp_f32 v{MN}, v{MN}")
            for r in range(4):
                a(f"v_mul_f32 v{EP+r}, v{EP+r}, v{MX}")
                a(f"v_mul_f32 v{EN+r}, v{EN+r}, v{MN}")
            pack4(a, EP, EP); pack4(a, EN, EN)
            a(f"buffer_store_dwordx2 {vr(EP,2)}, v{20+st}, s[{SRD_O}:{SRD_O+3}], 0 offen offset:{h*64}")
            a(f"buffer_store_dwordx2 {vr(EN,2)}, v{20+st}, s[{SRD_O}:{SRD_O+3}], 0 offen offset:{h*64+32}")
            round4(a, PK, T)
            M4, N4 = T + 28, T + 32
            for r in range(4):
                a(f"v_mov_b32 v{M4+r}, v{PK+r}")
                a(f"v_mov_b32 v{N4+r}, v{PK+r}")
            dpp_allreduce(a, [M4 + r for r in range(4)], 'v_max_f32')
            dpp_allreduce(a, [N4 + r for r in range(4)], 'v_min_f32')
            EP, EN = T + 36, T + 40
            for r in range(4):
                a(f"v_sub_f32 v{EP+r}, v{PK+r}, v{M4+r}")
                a(f"v_sub_f32 v{EN+r}, v{N4+r}, v{PK+r}")
            for r in range(4):
                a(f"v_mul_f32 v{EP+r}, {L2E}, v{EP+r}")
                a(f"v_mul_f32 v{EN+r}, {L2E}, v{EN+r}")
            for r in range(4):
                a(f"v_exp_f32 v{EP+r}, v{EP+r}")
                a(f"v_exp_f32 v{EN+r}, v{EN+r}")
            for r in range(4):
                a(f"v_mov_b32 v{M4+r}, v{EP+r}")
                a(f"v_mov_b32 v{N4+r}, v{EN+r}")
            dpp_allreduce(a, [M4 + r for r in range(4)] + [N4 + r for r in range(4)], 'v_add_f32')
            for r in range(4):
                a(f"v_rcp_f32 v{M4+r}, v{M4+r}")
                a(f"v_rcp_f32 v{N4+r}, v{N4+r}")
            for r in range(4):
                a(f"v_mul_f32 v{EP+r}, v{EP+r}, v{M4+r}")
                a(f"v_mul_f32 v{EN+r}, v{EN+r}, v{N4+r}")
            pack4(a, EP, EP); pack4(a, EN, EN)
            for sg, ph in ((0, EP), (1, EN)):
                kv = KV + (h * 2 + sg) * 4; z = Z + (h * 2 + sg) * 4
                a(f"v_mfma_f32_16x16x16_bf16 {vr(kv,4)}, {vr(VB,2)}, {vr(ph,2)}, {'0' if st == 0 else vr(kv,4)}")
                a(f"v_mfma_f32_16x16x16_bf16 {vr(z,4)}, v[8:9], {vr(ph,2)}, {'0' if st == 0 else vr(z,4)}")
    RED = 3 * SLOT96; REDZ = RED + 16384
    a(f"s_lshl_b32 s6, s{S_W}, 12")
    a(f"v_lshlrev_b32 v4, 4, v1")
    a(f"v_add_u32 v4, s6, v4")
    a(f"s_lshl_b32 s6, s{S_W}, 10")
    a(f"v_lshlrev_b32 v5, 2, v1")
    a(f"v_add_u32 v5, s6, v5")
    a(f"v_add_u32 v4, {RED}, v4")
    a(f"v_add_u32 v5, {REDZ}, v5")
    for i in range(4):
        a(f"ds_write_b128 v4, {vr(KV+4*i,4)} offset:{i*1024}")
        a(f"ds_write_b32 v5, v{Z+4*i} offset:{i*256}")
    a("s_waitcnt lgkmcnt(0)")
    barrier(a)
    a(f"v_lshlrev_b32 v4, 4, v0")
    a(f"v_add_u32 v4, {RED}, v4")
    for w in range(4):
        a(f"ds_read_b128 {vr(T+4*w,4)}, v4 offset:{w*4096}")
    a(f"v_lshrrev_b32 v5, 4, v0")
    a(f"v_lshlrev_b32 v5, 8, v5")
    a(f"v_lshl_add_u32 v5, v2, 2, v5")
    a(f"v_add_u32 v5, {REDZ}, v5")
    for w in range(4):
        a(f"ds_read_b32 v{T+16+w}, v5 offset:{w*1024}")
    a(f"s_lshr_b32 s6, s{S_W}, 1")
    a(f"s_lshl_b32 s7, s{S_CT}, 1")
    a(f"s_add_u32 s6, s6, s7")
    a(f"s_lshl_b32 s6, s6, 11")
    a(f"s_and_b32 s7, s{S_W}, 1")
    a(f"s_lshl_b32 s7, s7, 6")
    a(f"s_add_u32 s6, s6, s7")
    a(f"v_lshlrev_b32 v6, 9, v3")
    a(f"v_lshl_add_u32 v6, v2, 2, v6")
    a(f"s_lshl_b32 s7, s{S_CT}, 8")
    a(f"s_add_u32 s7, s7, {KVZ_OFF}")
    a(f"v_lshlrev_b32 v7, 2, v0")
    a("s_waitcnt lgkmcnt(0)")
    for r in range(4):
        a(f"v_add_f32 v{T+r}, v{T+r}, v{T+4+r}")
        a(f"v_add_f32 v{T+8+r}, v{T+8+r}, v{T+12+r}")
    for r in range(4):
        a(f"v_add_f32 v{T+r}, v{T+r}, v{T+8+r}")
    a(f"v_add_f32 v{T+16}, v{T+16}, v{T+17}")
    a(f"v_add_f32 v{T+18}, v{T+18}, v{T+19}")
    a(f"v_add_f32 v{T+16}, v{T+16}, v{T+18}")
    for r in range(4):
        a(f"buffer_atomic_add_f32 v{T+r}, v6, s[{SRD_X2}:{SRD_X2+3}], s6 offen offset:{r*128}")
    a(f"s_cmp_lg_u32 s{S_W}, 0")
    a("s_cbranch_scc1 L_fin")
    a(f"buffer_atomic_add_f32 v{T+16}, v7, s[{SRD_X2}:{SRD_X2+3}], s7 offen")
    loader_begin(a)
    gemm96_loader(a, 1024, 3072, (12, 8, 9))
    loader_end(a)

def k2_attn_wo(a):
    vm = VM(a)
    prologue8(a, 256); decode_wg(a, 4)
    srd(a, SRD_A, P_WS, WS_PHIQ, 0x400000)
    srd(a, SRD_B, P_WO, 0, 512 * 1024)
    srd(a, SRD_O, P_WS, WS_XA, 0x200000)
    srd_sel(a, SRD_X1, P_X, 0, P_WS, WS_XN, 0x200000)
    a(f"s_mul_i32 s6, s{S_LAYER}, {KV_STRIDE}")
    a(f"s_add_u32 s6, s6, {WS_KV}")
    a(f"s_add_u32 s{SRD_X2}, s{P_WS}, s6")
    a(f"s_addc_u32 s{SRD_X2+1}, s{P_WS+1}, 0")
    a(f"s_mov_b32 s{SRD_X2+2}, {KV_STRIDE}")
    a(f"s_mov_b32 s{SRD_X2+3}, 0x00020000")
    NS, NCH, SL, NI = 5, 8, 24576, 2
    KVL = NS * SL; ZL = KVL + 32768
    KR = 160
    a(f"s_lshl_b32 s12, s{S_CT}, 7")
    split(a)
    a("v_lshlrev_b32 v4, 4, v0")
    for i in range(17):
        a(f"s_mov_b32 s6, {i*4096 if i < 16 else KVZ_OFF}")
        a(f"buffer_load_dwordx4 {vr(KR+4*i,4)}, v4, s[{SRD_X2}:{SRD_X2+3}], s6 offen")
    row_voff(a, 21, 64, 16, 1024, with_g=8)
    a(f"v_add_u32 v21, s12, v21")
    RX = 240
    for nt in range(4):
        a(f"buffer_load_dwordx2 {vr(RX+2*nt,2)}, v21, s[{SRD_X1}:{SRD_X1+3}], 0 offen offset:{nt*32}")
    a_rd256(a, 4, 24, 4096)
    tr_addrs128(a, 12, 24, 'k2')
    AB = Banked(a, 4, 4, [232])
    BB = Banked(a, 12, 4, [236])
    a("v_lshlrev_b32 v22, 3, v0")
    a(f"v_add_u32 v22, {KVL}, v22")
    for i in range(17):
        q = KR + 4 * i
        a(f"s_waitcnt vmcnt({4 + 16 - i})")
        pack4(a, q, q)
        a(f"ds_write_b64 v22, {vr(q,2)} offset:{i*2048}")
    a("v_lshlrev_b32 v22, 6, v2")
    a("v_lshl_add_u32 v22, v3, 4, v22")
    a(f"v_add_u32 v22, {KVL}, v22")
    a("v_lshlrev_b32 v23, 4, v3")
    a(f"v_add_u32 v23, {ZL}, v23")
    a("s_waitcnt lgkmcnt(0)")
    PHB = 80
    KVB = 96
    NUB = 128
    OB = 64
    for c in range(NCH):
        slot = (c % NS) * SL
        barrier(a, c in (0, NCH - 1))
        ar, ao = AB.get(slot)
        br, bo = BB.get(slot + 16384)
        for hh in range(4):
            h = 4 * c + hh
            a(f"ds_read_b128 {vr(PHB+4*hh,4)}, v{ar+hh} offset:{ao}")
            a(f"ds_read_b128 {vr(KVB+8*hh,4)}, v22 offset:{h*1024}")
            a(f"ds_read_b128 {vr(KVB+8*hh+4,4)}, v23 offset:{h*64}")
        for hh in range(4):
            a(f"s_waitcnt lgkmcnt({9-3*hh})")
            n = NUB + 8 * hh
            a(f"v_mfma_f32_16x16x32_bf16 {vr(n,4)}, {vr(KVB+8*hh,4)}, {vr(PHB+4*hh,4)}, 0")
            a(f"v_mfma_f32_16x16x32_bf16 {vr(n+4,4)}, {vr(KVB+8*hh+4,4)}, {vr(PHB+4*hh,4)}, 0")
        for j in range(2):
            for nt in range(4):
                for hh in range(2):
                    a(f"ds_read_b64_tr_b16 {vr(176 + j*16 + nt*4 + hh*2, 2)}, v{br+nt} offset:{bo + j*4096 + hh*2048}")
        for hh in range(4):
            n = NUB + 8 * hh; t = 24 + 2 * hh
            round4(a, n, t)
            bf16r(a, n + 4, n + 4, t)
            a(f"v_add_f32 v{n+4}, {lit(1e-6)}, v{n+4}")
            bf16r(a, n + 4, n + 4, t)
            a(f"v_rcp_f32 v{n+4}, v{n+4}")
            a(f"v_mov_b32 v{n+5}, v{n+4}")
            for p in (0, 2): a(f"v_pk_mul_f32 {vr(n+p,2)}, {vr(n+p,2)}, {vr(n+4,2)}")
            pack4(a, OB + 2 * hh, n)
        for j in range(2):
            a(f"s_waitcnt lgkmcnt({8 if j == 0 else 0})")
            for nt in range(4):
                cc = vr(32 + 4 * nt, 4)
                a(f"v_mfma_f32_16x16x32_bf16 {cc}, {vr(176 + j*16 + nt*4, 4)}, {vr(OB+4*j,4)}, {'0' if c == 0 and j == 0 else cc}")
    a("s_waitcnt vmcnt(0)")
    for nt in range(4):
        c = 32 + 4 * nt
        round4(a, c, 24)
        unpack2(a, 26, 27, RX + 2 * nt); unpack2(a, 28, 29, RX + 2 * nt + 1)
        for p in (0, 2): a(f"v_pk_add_f32 {vr(c+p,2)}, {vr(c+p,2)}, {vr(26+p,2)}")
        pack4(a, c, c)
        a(f"buffer_store_dwordx2 {vr(c,2)}, v21, s[{SRD_O}:{SRD_O+3}], 0 offen offset:{nt*32}")
    loader_begin(a)
    AV, BV = 16, 20
    a_voff256(a, AV, 2048, 64, 16, 24)
    b_voff128(a, BV, 24, 1024, 'k2')
    a(f"s_lshl_b32 s13, s{S_W}, 12")
    a(f"s_lshl_b32 s14, s{S_W}, 10")
    a(f"s_mul_i32 s10, s{S_W}, {8*1024}")
    a(f"s_add_u32 s10, s10, s12")
    def issue(c):
        slot = (c % NS) * SL
        for t4 in range(4):
            dma(a, vm, ('ch', c), AV + t4, SRD_A, 0, c * 256, (13, slot + t4 * 1024))
        for i in range(2):
            dma(a, vm, ('ch', c), BV, SRD_B, 's10', 0, (14, slot + 16384 + i * 4096))
            a(f"s_add_u32 s10, s10, {32*1024}")
    loader_ring(a, vm, issue, NCH, NS, NI)
    loader_end(a)

KERNELS = [
    ('k0', k0_init, 54, 8192, False),
    ('k1', k1_qkv, 256, 5 * SLOT96, True),
    ('k2', k2_attn_wo, 256, 5 * 24576 + 32768 + 2048, True),
    ('k3', k3_ln_w1, 256, 131072, False),
    ('k4', k4_shift_w2, 256, 131072, False),
    ('k5', k5_ln_w3, 240, 5 * SLOT96, False),
    ('k6', k6_w4, 256, 163840, True),
]

def build():
    header = open('cdna_kernels/' + NAME + '.s.ref').read().split('; Override launch')[0]
    launches = [('k0', None)]
    for L in range(2):
        for k in KERNELS[1:]:
            launches.append((k[0], L if k[4] else None))
    info = {k[0]: k for k in KERNELS}
    out = [header.rstrip('\n')]
    def lab(n, L): return f"hh_{n}{'' if L is None else '_l%d' % L}_kernel"
    for n, L in launches:
        k = info[n]
        out.append(f"; @launch kernel={lab(n, L)} grid=({k[2]},1,1) block=({256 if n == 'k0' else 512},1,1) lds={k[3]}")
    out.append('.amdgcn_target "amdgcn-amd-amdhsa--gfx950"')
    out.append('.text')
    descs = []
    for n, fn, nwg, lds, layered in KERNELS:
        a = Asm(); St.n = 0
        fn(a)
        a.label("L_fin")
        dump_stamps(a, [k[0] for k in KERNELS].index(n))
        body = a.text().replace('L_', f'L{n}_')
        entries = [(lab(n, 0), 0), (lab(n, 1), 1)] if layered else [(lab(n, None), None)]
        if layered:
            for nm, L in entries:
                out.append(f".globl {nm}\n.p2align 8\n.type {nm},@function\n{nm}:")
                out.append(f"  s_mov_b32 s{S_LAYER}, {L}\n  s_branch L{n}_body")
            out.append(f".p2align 8\nL{n}_body:")
        else:
            nm = entries[0][0]
            out.append(f".globl {nm}\n.p2align 8\n.type {nm},@function\n{nm}:")
        out.append(body.rstrip('\n'))
        out.append(f"L{n}_end:\n  s_endpgm")
        for nm, L in entries: descs.append(nm)
    out.append('.section .rodata,"a"')
    for nm in descs:
        out.append(f""".p2align 6
.amdhsa_kernel {nm}
  .amdhsa_next_free_vgpr 256
  .amdhsa_next_free_sgpr 102
  .amdhsa_accum_offset 256
  .amdhsa_group_segment_fixed_size 0
  .amdhsa_kernarg_size 96
  .amdhsa_user_sgpr_count 2
  .amdhsa_user_sgpr_kernarg_segment_ptr 1
  .amdhsa_system_sgpr_workgroup_id_x 1
.end_amdhsa_kernel""")
    return '\n'.join(out) + '\n'

if __name__ == '__main__':
    if len(sys.argv) > 2 and sys.argv[2] == 'timing': gen.TIMING = True
    txt = build()
    dst = sys.argv[1] if len(sys.argv) > 1 else 'cdna_kernels/' + NAME + '.s'
    open(dst, 'w').write(txt)
    print('wrote', dst, len(txt), 'bytes')
```

```python
import sys
sys.path.insert(0,'gen')
from gen import NAME
def build(n, path):
    header = open('cdna_kernels/' + NAME + '.s.ref').read().split('; Override launch')[0]
    out=[header.rstrip('\n')]
    for i in range(n): out.append("; @launch kernel=nul_kernel grid=(256,1,1) block=(512,1,1) lds=131072")
    out.append('''.amdgcn_target "amdgcn-amd-amdhsa--gfx950"
.text
.globl nul_kernel
.p2align 8
.type nul_kernel,@function
nul_kernel:
  s_endpgm
.section .rodata,"a"
.p2align 6
.amdhsa_kernel nul_kernel
  .amdhsa_next_free_vgpr 256
  .amdhsa_next_free_sgpr 102
  .amdhsa_accum_offset 256
  .amdhsa_group_segment_fixed_size 0
  .amdhsa_kernarg_size 96
  .amdhsa_user_sgpr_count 2
  .amdhsa_user_sgpr_kernarg_segment_ptr 1
  .amdhsa_system_sgpr_workgroup_id_x 1
.end_amdhsa_kernel''')
    open(path,'w').write('\n'.join(out)+'\n')
for n in (2,7,13): build(n, f'null{n}.s')
```

```python
import sys
import gen
from gen import (Asm, vr, sr, NAME, S, D, F, H, WS_XA, WS_XB, WS_H, WS_X1, WS_XN, WS_H3, WS_PHIQ, WS_KV,
                 KV_STRIDE, KVZ_OFF, P_X, P_WQKV, P_WPHI, P_WO, P_BX, P_W1, P_W2, P_W3, P_W4, P_OUT, P_DBG, P_WS,
                 SRD_A, SRD_B, SRD_O, SRD_X1, SRD_X2, SRD_X3, S_RT, S_CT, S_W, S_LAYER, LOG2E, lit, prologue, srd,
                 srd_sel, decode_wg, tr_addrs128, tr_addrs64, setup_consts, xlane_sum, bf16r, GELU_C0, GELU_C1,
                 unpack2, row_voff, dpp_allreduce, stamp, dump_stamps, St)

WS_CS = 0x1480000
CS_QKV, CS_W1, CS_W3 = 0x0, 0x2000, 0x3000
SRD_CS = 96

class VM:
    def __init__(self, a): self.a = a; self.q = []
    def issue(self, tag): self.q.append(tag)
    def wait(self, tag):
        idx = [i for i, t in enumerate(self.q) if t == tag]
        if not idx: return
        idx = idx[-1]
        n = len(self.q) - 1 - idx
        self.a(f"s_waitcnt vmcnt({min(n, 63)})")
        self.q = self.q[idx + 1:]
    def wait_all(self):
        self.a("s_waitcnt vmcnt(0)"); self.q = []

def prologue8(a, nwg):
    prologue(a, nwg)
    a(f"s_mov_b32 s101, s{S_W}")
    a(f"s_and_b32 s{S_W}, s{S_W}, 3")
def split(a):
    a("s_cmp_ge_u32 s101, 4")
    a("s_cbranch_scc1 L_loader")
def loader_begin(a):
    a("s_branch L_fin")
    a.label("L_loader")
PREFETCH = False
def loader_end(a, pf=None):
    if pf and PREFETCH:
        ptr, nbytes, n = pf
        srd(a, SRD_X3, ptr, 0, nbytes)
        a("s_lshr_b32 s6, s2, 3")
        a(f"s_lshl_b32 s6, s6, 2")
        a(f"s_add_u32 s6, s6, s{S_W}")
        a(f"s_mul_i32 s6, s6, {n*1024}")
        a("v_lshlrev_b32 v4, 4, v1")
        for i in range(n):
            if i and i % 4 == 0: a("s_add_u32 s6, s6, 4096")
            a(f"buffer_load_dwordx4 {vr(32+4*i,4)}, v4, s[{SRD_X3}:{SRD_X3+3}], s6 offen offset:{(i%4)*1024}")
        a("s_waitcnt vmcnt(0)")
    a("s_branch L_end")

class Rec:
    def __init__(self): self.l = []
    def __call__(self, text):
        for line in text.strip('\n').split('\n'):
            line = line.strip()
            if line: self.l.append(line)
def interleave(a, recs):
    n = max(len(r.l) for r in recs)
    for i in range(n):
        for r in recs:
            if i < len(r.l): a(r.l[i])

def barrier(a, st=True):
    if st: stamp(a)
    a("s_barrier")
    if st: stamp(a)

def a_voff256(a, dst, rs, rows_per_wg, rows_per_wave, t):
    a(f"s_mul_i32 s6, s{S_RT}, {rows_per_wg}")
    a(f"s_mul_i32 s7, s{S_W}, {rows_per_wave}")
    a(f"s_add_u32 s6, s6, s7")
    a(f"s_mov_b32 s7, {rs}")
    for t4 in range(4):
        a(f"v_add_u32 v{t}, {4*t4}, v3")
        a(f"v_xor_b32 v{t+1}, v{t}, v2")
        a(f"v_add_u32 v{t}, s6, v{t}")
        a(f"v_mul_lo_u32 v{t}, v{t}, s7")
        a(f"v_lshl_add_u32 v{dst+t4}, v{t+1}, 4, v{t}")

def a_voff128(a, dst, rs, rows_per_wg, rows_per_wave, t):
    a(f"s_mul_i32 s6, s{S_RT}, {rows_per_wg}")
    a(f"s_mul_i32 s7, s{S_W}, {rows_per_wave}")
    a(f"s_add_u32 s6, s6, s7")
    a(f"s_mov_b32 s7, {rs}")
    a(f"v_lshrrev_b32 v{t+2}, 3, v1")
    a(f"v_and_b32 v{t+3}, 7, v1")
    for t2 in range(2):
        a(f"v_add_u32 v{t}, {4*t2}, v3")
        a(f"v_xor_b32 v{t+1}, v{t}, v{t+3}")
        a(f"v_add_u32 v{t}, {8*t2}, v{t+2}")
        a(f"v_add_u32 v{t}, s6, v{t}")
        a(f"v_mul_lo_u32 v{t}, v{t}, s7")
        a(f"v_lshl_add_u32 v{dst+t2}, v{t+1}, 4, v{t}")

def a_rd256(a, dst, t, wave_bytes):
    a(f"v_xor_b32 v{t}, v3, v2")
    a(f"v_lshlrev_b32 v{t}, 4, v{t}")
    a(f"v_lshl_add_u32 v{t}, v2, 8, v{t}")
    a(f"s_mul_i32 s6, s{S_W}, {wave_bytes}")
    for j in range(4):
        a(f"v_xor_b32 v{dst+j}, {j << 6}, v{t}")
        a(f"v_add_u32 v{dst+j}, s6, v{dst+j}")

def a_rd128(a, dst, t, wave_bytes):
    a(f"v_lshrrev_b32 v{t}, 1, v2")
    a(f"v_xor_b32 v{t}, v3, v{t}")
    a(f"v_lshlrev_b32 v{t}, 4, v{t}")
    a(f"v_lshl_add_u32 v{t}, v2, 7, v{t}")
    a(f"s_mul_i32 s6, s{S_W}, {wave_bytes}")
    for j in range(2):
        a(f"v_xor_b32 v{dst+j}, {j << 6}, v{t}")
        a(f"v_add_u32 v{dst+j}, s6, v{dst+j}")

def dma(a, vm, tag, voff, srdx, soff, imm, m0_sgpr_expr):
    sg, c = m0_sgpr_expr
    a(f"s_add_u32 m0, s{sg}, {c}")
    if imm:
        if soff == 0: a(f"s_mov_b32 s7, {imm}")
        else: a(f"s_add_u32 s7, {soff}, {imm}")
        soff = 's7'
    else:
        a("s_nop 0")
    a(f"buffer_load_dwordx4 v{voff}, s[{srdx}:{srdx+3}], {soff} offen lds")
    vm.issue(tag)

def b_voff128(a, voff, t, rs, swz):
    a(f"v_lshrrev_b32 v{t}, 3, v1")
    a(f"v_and_b32 v{voff}, 7, v1")
    if swz == 'std':
        a(f"v_and_b32 v{t+1}, 2, v{t}")
        a(f"s_and_b32 s6, s{S_W}, 1")
        a(f"s_lshl_b32 s6, s6, 2")
        a(f"v_or_b32 v{t+1}, s6, v{t+1}")
    else:
        a(f"v_and_b32 v{t+1}, 6, v{t}")
    a(f"v_xor_b32 v{voff}, v{voff}, v{t+1}")
    a(f"v_lshlrev_b32 v{voff}, 4, v{voff}")
    a(f"s_mov_b32 s6, {rs}")
    a(f"v_mul_lo_u32 v{t}, v{t}, s6")
    a(f"v_add_u32 v{voff}, v{voff}, v{t}")

def b_voff64(a, voff, t, rs):
    a(f"v_lshrrev_b32 v{t}, 2, v1")
    a(f"v_and_b32 v{voff}, 3, v1")
    a(f"v_lshrrev_b32 v{t+1}, 5, v1")
    a(f"v_lshlrev_b32 v{t+1}, 1, v{t+1}")
    a(f"v_xor_b32 v{voff}, v{voff}, v{t+1}")
    a(f"v_lshlrev_b32 v{voff}, 4, v{voff}")
    a(f"s_mov_b32 s6, {rs}")
    a(f"v_mul_lo_u32 v{t}, v{t}, s6")
    a(f"v_add_u32 v{voff}, v{voff}, v{t}")

def tr_addrs64s(a, dst, vt, sub_bytes):
    a(f"v_lshrrev_b32 v{vt}, 2, v2")
    a(f"v_and_b32 v{vt+1}, 3, v2")
    a(f"v_lshl_add_u32 v{vt+2}, v3, 3, v{vt}")
    a(f"v_and_b32 v{vt+3}, 1, v3")
    a(f"v_lshlrev_b32 v{vt+3}, 1, v{vt+3}")
    a(f"v_lshlrev_b32 v{vt+2}, 6, v{vt+2}")
    a(f"v_and_b32 v{vt+4}, 1, v{vt+1}")
    a(f"v_lshl_add_u32 v{vt+2}, v{vt+4}, 3, v{vt+2}")
    a(f"v_lshrrev_b32 v{vt+1}, 1, v{vt+1}")
    for n2 in range(2):
        a(f"v_or_b32 v{vt+4}, {2*n2}, v{vt+1}")
        a(f"v_xor_b32 v{vt+4}, v{vt+4}, v{vt+3}")
        a(f"v_lshl_add_u32 v{dst+n2}, v{vt+4}, 4, v{vt+2}")
    for j in (1, 2):
        for n2 in range(2):
            a(f"v_add_u32 v{dst+2*j+n2}, {j*sub_bytes}, v{dst+n2}")

def ln_finish(a, SUM, G, mb, rs, t):
    g = t; t0 = t + 1; mean = t + 3
    a(f"v_cndmask_b32 v{g}, 0, v{G}, s[64:65]")
    for r in range(1, 4):
        a(f"v_cndmask_b32 v{g}, v{g}, v{G+r}, s[{64+2*r}:{65+2*r}]")
    a(f"v_mul_f32 v{mean}, {lit(1.0/512)}, v{SUM}")
    xlane_sum(a, g, t0)
    bf16r(a, mb, mean, t0)
    a(f"v_mul_f32 v{g}, {lit(1.0/512)}, v{g}")
    a(f"v_fma_f32 v{g}, -v{mean}, v{mean}, v{g}")
    a(f"v_max_f32 v{g}, 0, v{g}")
    bf16r(a, g, g, t0)
    a(f"v_add_f32 v{g}, {lit(1e-5)}, v{g}")
    bf16r(a, g, g, t0)
    a(f"v_sqrt_f32 v{g}, v{g}")
    bf16r(a, g, g, t0)
    a(f"v_rcp_f32 v{rs}, v{g}")

def gelu4(a, c, t, vc0):
    for p in (0, 2):
        a(f"v_pk_mul_f32 {vr(t+p,2)}, {vr(c+p,2)}, {vr(c+p,2)}")
    for p in (0, 2):
        a(f"v_pk_fma_f32 {vr(t+p,2)}, {vr(t+p,2)}, {vr(vc0+2,2)}, {vr(vc0,2)}")
    for p in (0, 2):
        a(f"v_pk_mul_f32 {vr(t+p,2)}, {vr(t+p,2)}, {vr(c+p,2)}")
    for r in range(4): a(f"v_exp_f32 v{t+r}, v{t+r}")
    for p in (0, 2):
        a(f"v_pk_add_f32 {vr(t+p,2)}, {vr(t+p,2)}, 1.0 op_sel_hi:[1,0]")
    for r in range(4): a(f"v_rcp_f32 v{t+r}, v{t+r}")
    for p in (0, 2):
        a(f"v_pk_mul_f32 {vr(c+p,2)}, {vr(c+p,2)}, {vr(t+p,2)}")

def fold4(a, c, cs, nmb2, rs2):
    for p in (0, 2):
        a(f"v_pk_fma_f32 {vr(c+p,2)}, {vr(cs+p,2)}, {vr(nmb2,2)}, {vr(c+p,2)}")
    for p in (0, 2):
        a(f"v_pk_mul_f32 {vr(c+p,2)}, {vr(c+p,2)}, {vr(rs2,2)}")

def round4(a, c, t):
    a(f"v_cvt_pk_bf16_f32 v{t}, v{c}, v{c+1}")
    a(f"v_cvt_pk_bf16_f32 v{t+1}, v{c+2}, v{c+3}")
    unpack2(a, c, c + 1, t); unpack2(a, c + 2, c + 3, t + 1)

def pack4(a, dst, c):
    a(f"v_cvt_pk_bf16_f32 v{dst}, v{c}, v{c+1}")
    a(f"v_cvt_pk_bf16_f32 v{dst+1}, v{c+2}, v{c+3}")

WS_WQC, WS_W2C, WS_W4C = 0x1500000, 0x1680000, 0x1900000
W4C_STRIDE = 1536 * 128
K0_WGS = 86
def k0_init(a):
    prologue(a, K0_WGS)
    srd(a, SRD_O, P_WS, WS_KV, 2 * KV_STRIDE)
    srd(a, SRD_CS, P_WS, WS_CS, 0x5000)
    a(f"""
    s_cmp_ge_u32 s2, 34
    s_cbranch_scc1 L_nozero
    s_cmp_ge_u32 s2, 17
    s_cselect_b32 s6, {KV_STRIDE - 17 * 4096}, 0
    s_lshl_b32 s7, s2, 12
    s_add_u32 s6, s6, s7
    v_lshlrev_b32 v4, 4, v0
    v_mov_b32 v8, 0
    v_mov_b32 v9, 0
    v_mov_b32 v10, 0
    v_mov_b32 v11, 0
    buffer_store_dwordx4 v[8:11], v4, s[{SRD_O}:{SRD_O+3}], s6 offen
    """)
    a.label("L_nozero")
    a(f"""
    s_mov_b32 s{SRD_B}, s{P_WQKV}
    s_mov_b32 s{SRD_B+1}, s{P_WQKV+1}
    s_mov_b32 s{SRD_B+2}, {512*3072}
    s_mov_b32 s{SRD_B+3}, 0x00020000
    s_mov_b32 s8, 3072
    s_mov_b32 s9, s2
    s_mov_b32 s10, {CS_QKV}
    s_mov_b32 s13, 0
    s_lshl_b32 s14, s2, 16
    s_add_u32 s14, s14, {WS_WQC}
    s_mov_b32 s15, 1
    s_cmp_lt_u32 s2, 24
    s_cbranch_scc1 L_sel
    s_mov_b32 s15, 0
    s_mov_b32 s{SRD_B}, s{P_W1}
    s_mov_b32 s{SRD_B+1}, s{P_W1+1}
    s_mov_b32 s{SRD_B+2}, {512*1024}
    s_mov_b32 s8, 1024
    s_sub_u32 s9, s2, 24
    s_mov_b32 s10, {CS_W1}
    s_cmp_lt_u32 s2, 32
    s_cbranch_scc1 L_sel
    s_mov_b32 s{SRD_B}, s{P_W3}
    s_mov_b32 s{SRD_B+1}, s{P_W3+1}
    s_mov_b32 s{SRD_B+2}, {512*F*2}
    s_mov_b32 s8, {F*2}
    s_sub_u32 s9, s2, 32
    s_mov_b32 s10, {CS_W3}
    s_cmp_lt_u32 s2, 54
    s_cbranch_scc1 L_sel
    s_mov_b32 s15, 2
    s_mov_b32 s{SRD_B}, s{P_W2}
    s_mov_b32 s{SRD_B+1}, s{P_W2+1}
    s_mov_b32 s{SRD_B+2}, {512*1024}
    s_mov_b32 s8, 1024
    s_sub_u32 s9, s2, 54
    s_lshl_b32 s14, s9, 16
    s_add_u32 s14, s14, {WS_W2C}
    s_cmp_lt_u32 s2, 62
    s_cbranch_scc1 L_sel
    s_mov_b32 s{SRD_B}, s{P_W4}
    s_mov_b32 s{SRD_B+1}, s{P_W4+1}
    s_mov_b32 s{SRD_B+2}, {F*1024}
    s_sub_u32 s9, s2, 62
    s_lshr_b32 s6, s9, 3
    s_and_b32 s9, s9, 7
    s_lshl_b32 s13, s6, 19
    s_mul_i32 s14, s9, {W4C_STRIDE}
    s_lshl_b32 s6, s6, 16
    s_add_u32 s14, s14, s6
    s_add_u32 s14, s14, {WS_W4C}
    """)
    a.label("L_sel")
    a(f"""
    v_lshrrev_b32 v4, 3, v0
    v_and_b32 v5, 7, v0
    s_lshl_b32 s11, s8, 4
    v_mul_lo_u32 v6, v4, s11
    v_lshl_add_u32 v6, v5, 4, v6
    s_lshl_b32 s12, s9, 7
    s_add_u32 s12, s12, s13
    """)
    for i in range(16):
        a(f"buffer_load_dwordx4 {vr(32+4*i,4)}, v6, s[{SRD_B}:{SRD_B+3}], s12 offen")
        if i < 15: a("s_add_u32 s12, s12, s8")
    a(f"""
    s_add_u32 s{SRD_X1}, s{P_WS}, s14
    s_addc_u32 s{SRD_X1+1}, s{P_WS+1}, 0
    s_mov_b32 s{SRD_X1+2}, 0x10000
    s_mov_b32 s{SRD_X1+3}, 0x00020000
    v_lshlrev_b32 v7, 11, v4
    v_lshl_add_u32 v7, v5, 4, v7
    v_lshrrev_b32 v12, 2, v5
    v_lshlrev_b32 v12, 15, v12
    v_lshl_add_u32 v12, v4, 10, v12
    v_and_b32 v13, 3, v5
    v_lshl_add_u32 v12, v13, 4, v12
    s_cmp_lg_u32 s15, 2
    s_cbranch_scc1 L_sum
    """)
    for i in range(16):
        a(f"s_waitcnt vmcnt({15})")
        a(f"buffer_store_dwordx4 {vr(32+4*i,4)}, v7, s[{SRD_X1}:{SRD_X1+3}], 0 offen offset:{i*128}")
    a("s_branch L_fin")
    a.label("L_sum")
    for r in range(8): a(f"v_mov_b32 v{16+r}, 0")
    for i in range(16):
        a(f"s_waitcnt vmcnt({15-i})")
        for p in range(4):
            unpack2(a, 24, 25, 32 + 4 * i + p)
            a(f"v_pk_add_f32 {vr(16+2*p,2)}, {vr(16+2*p,2)}, v[24:25]")
    a("s_cmp_lg_u32 s15, 1")
    a("s_cbranch_scc1 L_nocopy")
    for i in range(16):
        a(f"buffer_store_dwordx4 {vr(32+4*i,4)}, v12, s[{SRD_X1}:{SRD_X1+3}], 0 offen offset:{i*64}")
    a.label("L_nocopy")
    a("v_lshlrev_b32 v6, 5, v0")
    a("ds_write_b128 v6, v[16:19]")
    a("ds_write_b128 v6, v[20:23] offset:16")
    a("s_waitcnt lgkmcnt(0)")
    a("s_barrier")
    a(f"s_cmp_lg_u32 s{S_W}, 0")
    a("s_cbranch_scc1 L_fin")
    a("v_lshlrev_b32 v6, 2, v1")
    for i in range(32):
        a(f"ds_read_b32 v{100+i}, v6 offset:{i*256}")
    a("s_waitcnt lgkmcnt(0)")
    for st in (16, 8, 4, 2, 1):
        for i in range(st):
            a(f"v_add_f32 v{100+i}, v{100+i}, v{100+st+i}")
    a("s_lshl_b32 s12, s9, 8")
    a("s_add_u32 s12, s12, s10")
    a(f"buffer_store_dword v100, v6, s[{SRD_CS}:{SRD_CS+3}], s12 offen")

def gemm64_chunk(a, steps, ard, brd, aslot, bslot, acc, abuf, bbuf, first, xreg=None, stats=None):
    def lds_off(base_reg, off):
        return base_reg, off
    def reads(j):
        if xreg is None:
            a(f"ds_read_b128 {vr(abuf + (j % 2) * 4, 4)}, v{ard + j} offset:{aslot}")
        for nt in range(4):
            for hh in range(2):
                a(f"ds_read_b64_tr_b16 {vr(bbuf + (j % 2) * 16 + nt * 4 + hh * 2, 2)}, v{brd + nt} offset:{bslot + j * 4096 + hh * 512}")
    per = 8 + (1 if xreg is None else 0)
    reads(0)
    for j in range(steps):
        if j + 1 < steps:
            reads(j + 1); a(f"s_waitcnt lgkmcnt({per})")
        else:
            a("s_waitcnt lgkmcnt(0)")
        x = vr(abuf + (j % 2) * 4, 4) if xreg is None else vr(xreg(j), 4)
        z = first and j == 0
        for nt in range(4):
            c = vr(acc + 4 * nt, 4)
            a(f"v_mfma_f32_16x16x32_bf16 {c}, {vr(bbuf + (j % 2) * 16 + nt * 4, 4)}, {x}, {'0' if z else c}")
        if stats is not None:
            SU, G = stats
            a(f"v_mfma_f32_16x16x32_bf16 {vr(SU,4)}, v[8:11], {x}, {'0' if z else vr(SU,4)}")
            a(f"v_mfma_f32_16x16x32_bf16 {vr(G,4)}, {x}, {x}, {'0' if z else vr(G,4)}")

class Banked:
    def __init__(self, a, base, n, extra):
        self.sets = [base] + extra
        for k, e in enumerate(extra):
            for i in range(n):
                a(f"v_add_u32 v{e+i}, {(k+1) << 16}, v{base+i}")
    def get(self, off):
        return self.sets[off >> 16], off & 0xffff

def k4_shift_w2(a):
    vm = VM(a)
    prologue8(a, 256); decode_wg(a, 4)
    srd(a, SRD_A, P_WS, WS_H, 0x200000)
    srd(a, SRD_B, P_WS, WS_W2C, 512 * 1024)
    srd(a, SRD_O, P_WS, WS_X1, 0x200000)
    srd(a, SRD_X1, P_WS, WS_XB, 0x200000)
    a(f"s_lshl_b32 s12, s{S_CT}, 7")
    split(a)
    row_voff(a, 21, 64, 16, 1024, with_g=8)
    a(f"v_add_u32 v21, s12, v21")
    XB = 80
    for nt in range(4):
        a(f"buffer_load_dwordx2 {vr(XB+2*nt,2)}, v21, s[{SRD_X1}:{SRD_X1+3}], 0 offen offset:{nt*32}")
    a_rd256(a, 4, 24, 4096)
    tr_addrs128(a, 12, 24, 'std')
    for nt in range(4): a(f"v_add_u32 v{12+nt}, 0x10000, v{12+nt}")
    for c in range(4):
        barrier(a)
        gemm64_chunk(a, 4, 4, 12, c * 16384, c * 16384, 32, 24, 48, c == 0)
    a("s_waitcnt vmcnt(0)")
    for nt in range(4):
        c = 32 + 4 * nt
        round4(a, c, 24)
        unpack2(a, 26, 27, XB + 2 * nt); unpack2(a, 28, 29, XB + 2 * nt + 1)
        for p in (0, 2): a(f"v_pk_add_f32 {vr(c+p,2)}, {vr(c+p,2)}, {vr(26+p,2)}")
        pack4(a, c, c)
        a(f"buffer_store_dwordx2 {vr(c,2)}, v21, s[{SRD_O}:{SRD_O+3}], 0 offen offset:{nt*32}")
    loader_begin(a)
    AV, BV = 16, 20
    a_voff256(a, AV, 1024, 64, 16, 24)
    b_voff128(a, BV, 24, 128, 'std')
    a(f"s_lshl_b32 s13, s{S_W}, 12")
    a(f"s_lshl_b32 s14, s{S_W}, 10")
    a(f"s_lshl_b32 s10, s{S_CT}, 16")
    a(f"s_add_u32 s10, s10, s14")
    def issue(c):
        sh = (-1, 1, -2, 2)[c]
        for t4 in range(4):
            a(f"v_add_u32 v{88+t4}, {(sh * 1024 + c * 256) & 0xffffffff}, v{AV+t4}")
        for t4 in range(4):
            dma(a, vm, ('ch', c), 88 + t4, SRD_A, 0, 0, (13, c * 16384 + t4 * 1024))
        for i in range(4):
            dma(a, vm, ('ch', c), BV, SRD_B, 's10', 0, (14, 65536 + c * 16384 + i * 4096))
            a(f"s_add_u32 s10, s10, {32*128}")
    issue(0); issue(1)
    for c in range(4):
        vm.wait(('ch', c)); a("s_barrier")
        if c + 2 < 4: issue(c + 2)
    loader_end(a, (P_W3, 512*F*2, 11))

def k3_ln_w1(a):
    vm = VM(a)
    prologue8(a, 256); decode_wg(a, 4)
    srd(a, SRD_A, P_WS, WS_XA, 0x200000)
    srd(a, SRD_B, P_W1, 0, 512 * 1024)
    srd(a, SRD_O, P_WS, WS_H, 0x200000)
    srd(a, SRD_X1, P_WS, WS_XB, 0x200000)
    srd(a, SRD_CS, P_WS, WS_CS, 0x5000)
    a(f"s_lshl_b32 s12, s{S_CT}, 7")
    split(a)
    CSR = 144
    a("v_lshlrev_b32 v24, 4, v3")
    a(f"s_lshl_b32 s6, s{S_CT}, 8")
    a(f"s_add_u32 s6, s6, {CS_W1}")
    for nt in range(4):
        a(f"buffer_load_dwordx4 {vr(CSR+4*nt,4)}, v24, s[{SRD_CS}:{SRD_CS+3}], s6 offen offset:{nt*64}")
    setup_consts(a)
    a_rd256(a, 4, 24, 4096)
    tr_addrs128(a, 12, 24, 'std')
    for nt in range(4): a(f"v_add_u32 v{12+nt}, 0x10000, v{12+nt}")
    row_voff(a, 21, 64, 16, 1024, with_g=8)
    a(f"v_add_u32 v21, s12, v21")
    row_voff(a, 22, 64, 16, 1024)
    X = 80
    SU, G = 160, 164
    barrier(a)
    for c in range(4):
        for j in range(4):
            a(f"ds_read_b128 {vr(X+16*c+4*j,4)}, v{4+j} offset:{c*16384}")
    for k in range(16):
        a(f"s_waitcnt lgkmcnt({15-k})")
        x = vr(X + 4 * k, 4)
        a(f"v_mfma_f32_16x16x32_bf16 {vr(SU,4)}, v[8:11], {x}, {'0' if k == 0 else vr(SU,4)}")
        a(f"v_mfma_f32_16x16x32_bf16 {vr(G,4)}, {x}, {x}, {'0' if k == 0 else vr(G,4)}")
    stamp(a)
    MB, RS = 168, 170
    ln_finish(a, SU, G, MB, RS, 24)
    a(f"v_mov_b32 v{RS+1}, v{RS}")
    a(f"v_mul_f32 v{MB}, v{MB}, v{RS}")
    a(f"v_sub_f32 v{MB}, 0, v{MB}")
    a(f"v_mov_b32 v{MB+1}, v{MB}")
    for p in range(64):
        t = 24 + (p % 4) * 2
        unpack2(a, t, t + 1, X + p)
        a(f"v_pk_fma_f32 {vr(t,2)}, {vr(t,2)}, {vr(RS,2)}, {vr(MB,2)}")
        a(f"v_cvt_pk_bf16_f32 v{X+p}, v{t}, v{t+1}")
    for c in range(8):
        a(f"s_cmp_lg_u32 s{S_CT}, {c}")
        a(f"s_cbranch_scc1 L_xb{c}")
        for j in (2 * c, 2 * c + 1):
            a(f"buffer_store_dwordx4 {vr(X+4*j,4)}, v22, s[{SRD_X1}:{SRD_X1+3}], 0 offen offset:{j*64}")
        a.label(f"L_xb{c}")
    barrier(a)
    for c in range(4):
        gemm64_chunk(a, 4, None, 12, 0, c * 16384, 32, None, 48, c == 0, xreg=lambda j, c=c: X + 16 * c + 4 * j, stats=(SU, G))
    stamp(a)
    ln_finish(a, SU, G, MB, RS, 24)
    a(f"v_mov_b32 v{RS+1}, v{RS}")
    a(f"v_sub_f32 v{MB}, 0, v{MB}")
    a(f"v_mov_b32 v{MB+1}, v{MB}")
    GC = 172
    a(f"v_mov_b32 v{GC}, {lit(GELU_C0)}"); a(f"v_mov_b32 v{GC+1}, {lit(GELU_C0)}")
    a(f"v_mov_b32 v{GC+2}, {lit(GELU_C1)}"); a(f"v_mov_b32 v{GC+3}, {lit(GELU_C1)}")
    a("s_waitcnt vmcnt(2)")
    for nt in range(4):
        c = 32 + 4 * nt
        fold4(a, c, CSR + 4 * nt, MB, RS)
        round4(a, c, 24)
        gelu4(a, c, 28, GC)
        pack4(a, c, c)
        a(f"buffer_store_dwordx2 {vr(c,2)}, v21, s[{SRD_O}:{SRD_O+3}], 0 offen offset:{nt*32}")
    loader_begin(a)
    AV, BV = 16, 20
    a_voff256(a, AV, 1024, 64, 16, 24)
    b_voff128(a, BV, 24, 1024, 'std')
    a(f"s_lshl_b32 s13, s{S_W}, 12")
    a(f"s_lshl_b32 s14, s{S_W}, 10")
    a(f"s_mul_i32 s10, s{S_W}, {8*1024}")
    a(f"s_add_u32 s10, s10, s12")
    for c in range(4):
        for t4 in range(4):
            dma(a, vm, 'a', AV + t4, SRD_A, 0, c * 256, (13, c * 16384 + t4 * 1024))
    def issue_b(c):
        for i in range(4):
            dma(a, vm, 'b', BV, SRD_B, 's10', 0, (14, 65536 + c * 16384 + i * 4096))
            a(f"s_add_u32 s10, s10, {32*1024}")
    issue_b(0)
    vm.wait('a'); a("s_barrier")
    issue_b(1); issue_b(2); issue_b(3)
    vm.wait('b'); a("s_barrier")
    loader_end(a, (P_W2, 512*1024, 4))

def k6_w4(a):
    vm = VM(a)
    prologue8(a, 256); decode_wg(a, 4)
    srd(a, SRD_A, P_WS, WS_H3, S * F * 2)
    srd(a, SRD_B, P_WS, WS_W4C, 8 * W4C_STRIDE)
    srd_sel(a, SRD_O, P_WS, WS_XN, P_OUT, 0, 0x200000)
    srd(a, SRD_X1, P_WS, WS_X1, 0x200000)
    srd(a, SRD_X2, P_WS, WS_XA, 0x200000)
    NS, NCH, NI = 5, 11, 2
    a(f"s_lshl_b32 s12, s{S_CT}, 7")
    split(a)
    row_voff(a, 21, 64, 16, 1024, with_g=8)
    a(f"v_add_u32 v21, s12, v21")
    R1, R2 = 96, 104
    for nt in range(4):
        a(f"buffer_load_dwordx2 {vr(R1+2*nt,2)}, v21, s[{SRD_X1}:{SRD_X1+3}], 0 offen offset:{nt*32}")
        a(f"buffer_load_dwordx2 {vr(R2+2*nt,2)}, v21, s[{SRD_X2}:{SRD_X2+3}], 0 offen offset:{nt*32}")
    a_rd256(a, 4, 24, 4096)
    tr_addrs128(a, 12, 24, 'std')
    AB = Banked(a, 4, 4, [80, 84])
    BB = Banked(a, 12, 4, [88, 92])
    for c in range(NCH):
        barrier(a, c in (0, NCH - 1))
        slot = (c % NS) * 32768
        ar, ao = AB.get(slot); br, bo = BB.get(slot + 16384)
        gemm64_chunk(a, 4 if c < 10 else 3, ar, br, ao, bo, 32, 24, 48, c == 0)
    a("s_waitcnt vmcnt(0)")
    for nt in range(4):
        c = 32 + 4 * nt
        round4(a, c, 24)
        unpack2(a, 26, 27, R1 + 2 * nt); unpack2(a, 28, 29, R1 + 2 * nt + 1)
        for p in (0, 2): a(f"v_pk_add_f32 {vr(c+p,2)}, {vr(c+p,2)}, {vr(26+p,2)}")
        round4(a, c, 24)
        unpack2(a, 26, 27, R2 + 2 * nt); unpack2(a, 28, 29, R2 + 2 * nt + 1)
        for p in (0, 2): a(f"v_pk_add_f32 {vr(c+p,2)}, {vr(c+p,2)}, {vr(26+p,2)}")
        pack4(a, c, c)
        a(f"buffer_store_dwordx2 {vr(c,2)}, v21, s[{SRD_O}:{SRD_O+3}], 0 offen offset:{nt*32}")
    loader_begin(a)
    AV, BV = 16, 20
    a_voff256(a, AV, F * 2, 64, 16, 24)
    b_voff128(a, BV, 24, 128, 'std')
    a(f"s_lshl_b32 s13, s{S_W}, 12")
    a(f"s_lshl_b32 s14, s{S_W}, 10")
    a(f"s_mul_i32 s10, s{S_CT}, {W4C_STRIDE}")
    a(f"s_add_u32 s10, s10, s14")
    def issue(c):
        slot = (c % NS) * 32768
        for t4 in range(4):
            dma(a, vm, ('ch', c), AV + t4, SRD_A, 0, c * 256, (13, slot + t4 * 1024))
        for i in range(4 if c < 10 else 3):
            dma(a, vm, ('ch', c), BV, SRD_B, 's10', 0, (14, slot + 16384 + i * 4096))
            a(f"s_add_u32 s10, s10, {32*128}")
    loader_ring(a, vm, issue, NCH, NS, NI)
    loader_end(a, (P_WQKV, 512*3072, 12))

def loader_ring(a, vm, issue, NCH, NS, NI):
    nxt = 0
    while nxt < min(NI, NCH): issue(nxt); nxt += 1
    for c in range(NCH):
        vm.wait(('ch', c)); a("s_barrier")
        k = 0
        while nxt < NCH and nxt <= c - 1 + NS and k < LOOKAHEAD_STEP:
            issue(nxt); nxt += 1; k += 1

LOOKAHEAD_STEP = 1

SLOT96 = 28672
def gemm96_compute(a, orient):
    NS, NCH = 5, 8
    setup_consts(a)
    a_rd128(a, 4, 24, 4096)
    tr_addrs64s(a, 160, 24, 4096)
    AB = Banked(a, 4, 2, [166, 168])
    BB = Banked(a, 160, 6, [170, 176])
    acc = lambda st, nt: 32 + 24 * st + 4 * nt
    for c in range(NCH):
        barrier(a, c in (0, NCH - 1))
        slot = (c % NS) * SLOT96
        def reads(j):
            for st in range(2):
                r, o = AB.get(slot + st * 2048)
                a(f"ds_read_b128 {vr(96 + j * 8 + st * 4, 4)}, v{r + j} offset:{o}")
            for nt in range(6):
                for hh in range(2):
                    r, o = BB.get(slot + 16384 + j * 2048 + hh * 256)
                    a(f"ds_read_b64_tr_b16 {vr(112 + j * 24 + nt * 4 + hh * 2, 2)}, v{r + nt} offset:{o}")
        reads(0); reads(1)
        for j in range(2):
            a(f"s_waitcnt lgkmcnt({14 if j == 0 else 0})")
            z = c == 0 and j == 0
            for nt in range(6):
                for st in range(2):
                    cc = vr(acc(st, nt), 4); w = vr(112 + j * 24 + nt * 4, 4); x = vr(96 + j * 8 + st * 4, 4)
                    if orient[nt] == 'T': a(f"v_mfma_f32_16x16x32_bf16 {cc}, {w}, {x}, {'0' if z else cc}")
                    else: a(f"v_mfma_f32_16x16x32_bf16 {cc}, {x}, {w}, {'0' if z else cc}")
            for st in range(2):
                x = vr(96 + j * 8 + st * 4, 4); SU = vr(80 + 8 * st, 4); G = vr(84 + 8 * st, 4)
                a(f"v_mfma_f32_16x16x32_bf16 {SU}, v[8:11], {x}, {'0' if z else SU}")
                a(f"v_mfma_f32_16x16x32_bf16 {G}, {x}, {x}, {'0' if z else G}")
    stamp(a)
    return acc

def gemm96_loader(a, rs_a, rs_b, col_sgprs):
    vm = VM(a)
    NS, NCH, NI = 5, 8, 2
    AV, BV = 16, 18
    a_voff128(a, AV, rs_a, 128, 32, 24)
    b_voff64(a, BV, 24, rs_b)
    a(f"s_lshl_b32 s13, s{S_W}, 12")
    a(f"s_lshl_b32 s14, s{S_W}, 10")
    a(f"s_mul_i32 s10, s{S_W}, {16*rs_b}")
    a(f"s_mov_b32 s11, {16*rs_a}")
    def issue(c):
        slot = (c % NS) * SLOT96
        for t in range(4):
            dma(a, vm, ('ch', c), AV + (t & 1), SRD_A, 's11' if t >= 2 else 0, c * 128, (13, slot + t * 1024))
        for j in range(3):
            a(f"s_add_u32 s6, s10, s{col_sgprs[j]}")
            dma(a, vm, ('ch', c), BV, SRD_B, 's6', 0, (14, slot + 16384 + j * 4096))
        a(f"s_add_u32 s10, s10, {64*rs_b}")
    loader_ring(a, vm, issue, NCH, NS, NI)

def k5_ln_w3(a):
    vm = VM(a)
    prologue8(a, 240); decode_wg(a, 2)
    srd(a, SRD_A, P_WS, WS_X1, 0x200000)
    srd(a, SRD_B, P_W3, 0, 512 * F * 2)
    srd(a, SRD_O, P_WS, WS_H3, S * F * 2)
    srd(a, SRD_CS, P_WS, WS_CS, 0x5000)
    a(f"s_mul_i32 s12, s{S_CT}, 192")
    a(f"s_add_u32 s8, s12, 64")
    a(f"s_add_u32 s9, s12, 128")
    CSR = 184
    def after():
        a("v_lshlrev_b32 v24, 4, v3")
        a(f"s_mul_i32 s6, s{S_CT}, 384")
        a(f"s_add_u32 s6, s6, {CS_W3}")
        for nt in range(6):
            a(f"buffer_load_dwordx4 {vr(CSR+4*nt,4)}, v24, s[{SRD_CS}:{SRD_CS+3}], s6 offen offset:{nt*64}")
            vm.issue('cs')
        for st in range(2):
            row_voff(a, 20 + st, 128, 32, F * 2, with_g=8, st=st)
            a(f"v_add_u32 v{20+st}, s12, v{20+st}")
    split(a)
    after()
    acc = gemm96_compute(a, 'TTTTTT')
    MB = (96, 100); RS = (98, 102)
    for st in range(2):
        ln_finish(a, 80 + 8 * st, 84 + 8 * st, MB[st], RS[st], 24)
        a(f"v_mov_b32 v{RS[st]+1}, v{RS[st]}")
        a(f"v_sub_f32 v{MB[st]}, 0, v{MB[st]}")
        a(f"v_mov_b32 v{MB[st]+1}, v{MB[st]}")
    GC = 104
    a(f"v_mov_b32 v{GC}, {lit(GELU_C0)}"); a(f"v_mov_b32 v{GC+1}, {lit(GELU_C0)}")
    a(f"v_mov_b32 v{GC+2}, {lit(GELU_C1)}"); a(f"v_mov_b32 v{GC+3}, {lit(GELU_C1)}")
    vm.wait('cs')
    for nt in range(6):
        if nt == 2:
            a(f"s_cmp_eq_u32 s{S_CT}, 14")
            a("s_cbranch_scc1 L_fin")
        for st in range(2):
            c = acc(st, nt)
            fold4(a, c, CSR + 4 * nt, MB[st], RS[st])
            round4(a, c, 24 + 2 * st)
            gelu4(a, c, 108 + 4 * st, GC)
            pack4(a, c, c)
            a(f"buffer_store_dwordx2 {vr(c,2)}, v{20+st}, s[{SRD_O}:{SRD_O+3}], 0 offen offset:{nt*32}")
    loader_begin(a)
    gemm96_loader(a, 1024, F * 2, (12, 8, 9))
    loader_end(a, (P_W4, F*1024, 12))

def k1_qkv(a):
    vm = VM(a)
    prologue8(a, 256); decode_wg(a, 2)
    srd_sel(a, SRD_A, P_X, 0, P_WS, WS_XN, 0x200000)
    srd(a, SRD_B, P_WS, WS_WQC, 512 * 1536 * 2)
    srd(a, SRD_O, P_WS, WS_PHIQ, 0x400000)
    srd(a, SRD_X1, P_WPHI, 0, 32 * 512)
    srd(a, SRD_CS, P_WS, WS_CS, 0x5000)
    a(f"s_mul_i32 s6, s{S_LAYER}, {KV_STRIDE}")
    a(f"s_add_u32 s6, s6, {WS_KV}")
    a(f"s_add_u32 s{SRD_X2}, s{P_WS}, s6")
    a(f"s_addc_u32 s{SRD_X2+1}, s{P_WS+1}, 0")
    a(f"s_mov_b32 s{SRD_X2+2}, {KV_STRIDE}")
    a(f"s_mov_b32 s{SRD_X2+3}, 0x00020000")
    a(f"s_lshl_b32 s12, s{S_CT}, 15")
    a(f"s_add_u32 s8, s12, {16*32768}")
    a(f"s_add_u32 s9, s12, {32*32768}")
    CSQ = 184
    WP = 204
    def after():
        a(f"v_lshlrev_b32 v24, 7, v3")
        a(f"v_lshl_add_u32 v24, v2, 1, v24")
        a(f"s_lshl_b32 s6, s{S_CT}, 10")
        for h in range(2):
            for jj in range(4):
                a(f"buffer_load_ushort v{WP+4*h+jj}, v24, s[{SRD_X1}:{SRD_X1+3}], s6 offen offset:{h*512 + jj*32}")
                vm.issue('cs')
        a("v_lshlrev_b32 v24, 4, v3")
        a("v_lshlrev_b32 v25, 2, v2")
        a(f"s_lshl_b32 s6, s{S_CT}, 7")
        for nt in range(4):
            a(f"buffer_load_dwordx4 {vr(CSQ+4*nt,4)}, v24, s[{SRD_CS}:{SRD_CS+3}], s6 offen offset:{(nt//2)*2048 + (nt%2)*64}")
            vm.issue('cs')
        a(f"s_add_u32 s6, s6, 4096")
        for h in range(2):
            a(f"buffer_load_dword v{CSQ+16+h}, v25, s[{SRD_CS}:{SRD_CS+3}], s6 offen offset:{h*64}")
            vm.issue('cs')
        for st in range(2):
            row_voff(a, 20 + st, 128, 32, 2048, with_g=8, st=st)
            a(f"s_lshl_b32 s6, s{S_CT}, 7")
            a(f"v_add_u32 v{20+st}, s6, v{20+st}")
    split(a)
    after()
    accf = gemm96_compute(a, 'TTTTNN')
    MB = (96, 100); RS = (98, 102)
    for st in range(2):
        ln_finish(a, 80 + 8 * st, 84 + 8 * st, MB[st], RS[st], 24)
    RRS = (104, 112); RRM = (108, 116)
    a("v_lshlrev_b32 v23, 4, v3")
    for r in range(4): a(f"v_add_u32 v{24+r}, {4*r}, v23")
    for st in range(2):
        for r in range(4):
            a(f"ds_bpermute_b32 v{RRS[st]+r}, v{24+r}, v{RS[st]}")
            a(f"ds_bpermute_b32 v{RRM[st]+r}, v{24+r}, v{MB[st]}")
    for st in range(2):
        a(f"v_mov_b32 v{RS[st]+1}, v{RS[st]}")
        a(f"v_sub_f32 v{MB[st]}, 0, v{MB[st]}")
        a(f"v_mov_b32 v{MB[st]+1}, v{MB[st]}")
    vm.wait('cs')
    for h in range(2):
        for jj in range(2):
            a(f"v_lshl_or_b32 v{28+2*h+jj}, v{WP+4*h+2*jj+1}, 16, v{WP+4*h+2*jj}")
    a("s_waitcnt lgkmcnt(0)")
    KV = 120; Z = 136
    T = 212
    L2P = 202
    IDN = 22
    a(f"v_mov_b32 v{L2P}, {lit(LOG2E)}"); a(f"v_mov_b32 v{L2P+1}, {lit(LOG2E)}")
    a("v_mov_b32 v24, 0x3f80"); a("v_mov_b32 v25, 0x3f800000")
    for p in range(2):
        a(f"v_cndmask_b32 v{IDN+p}, 0, v24, s[{64+4*p}:{65+4*p}]")
        a(f"v_cndmask_b32 v26, 0, v25, s[{66+4*p}:{67+4*p}]")
        a(f"v_or_b32 v{IDN+p}, v{IDN+p}, v26")
    def red4(r, A, B, C, D, op, mid):
        r(f"v_permlane16_swap_b32 v{A}, v{B}")
        r(f"v_permlane16_swap_b32 v{C}, v{D}")
        r(f"{op} v{A}, v{A}, v{B}")
        r(f"{op} v{C}, v{C}, v{D}")
        r(f"v_permlane32_swap_b32 v{A}, v{C}")
        r(f"{op} v{A}, v{A}, v{C}")
        r(mid)
        r(f"v_mov_b32 v{C}, v{A}")
        r(f"v_permlane32_swap_b32 v{A}, v{C}")
        r(f"v_mov_b32 v{B}, v{A}")
        r(f"v_mov_b32 v{D}, v{C}")
        r(f"v_permlane16_swap_b32 v{A}, v{B}")
        r(f"v_permlane16_swap_b32 v{C}, v{D}")
    def stream(st, h, Bq):
        r = Rec()
        wph = vr(28 + 2 * h, 2)
        c = accf(st, h); ck = accf(st, 2 + h); cv = accf(st, 4 + h)
        P, PK, ENQ, ENK, VB = Bq + 4, Bq + 8, Bq + 12, Bq + 16, Bq + 20
        A, B, C, D = Bq + 22, Bq + 24, Bq + 26, Bq + 28
        fold4(r, c, CSQ + 4 * h, MB[st], RS[st])
        fold4(r, ck, CSQ + 8 + 4 * h, MB[st], RS[st])
        pack4(r, Bq, c); pack4(r, Bq + 2, ck)
        r(f"v_mfma_f32_16x16x16_bf16 {vr(P,4)}, {wph}, {vr(Bq,2)}, 0")
        r(f"v_mfma_f32_16x16x16_bf16 {vr(PK,4)}, {wph}, {vr(Bq+2,2)}, 0")
        sel = "op_sel_hi:[1,0,1]" if h == 0 else "op_sel:[0,1,0] op_sel_hi:[1,1,1]"
        for p in (0, 2):
            r(f"v_pk_fma_f32 {vr(cv+p,2)}, {vr(RRM[st]+p,2)}, {vr(CSQ+16,2)}, {vr(cv+p,2)} {sel} neg_lo:[1,0,0] neg_hi:[1,0,0]")
        for p in (0, 2):
            r(f"v_pk_mul_f32 {vr(cv+p,2)}, {vr(cv+p,2)}, {vr(RRS[st]+p,2)}")
        pack4(r, VB, cv)
        round4(r, P, Bq); round4(r, PK, Bq + 2)
        for X, mx, mn in ((P, A, B), (PK, C, D)):
            r(f"v_max3_f32 v{mx}, v{X}, v{X+1}, v{X+2}")
            r(f"v_max3_f32 v{mn}, -v{X}, -v{X+1}, -v{X+2}")
            r(f"v_max_f32 v{mx}, v{mx}, v{X+3}")
            r(f"v_max_f32_e64 v{mn}, v{mn}, -v{X+3}")
        red4(r, A, B, C, D, 'v_max_f32', f"v_mul_f32 v{A}, {lit(-LOG2E)}, v{A}")
        for X, EN, mx, mn in ((P, ENQ, A, B), (PK, ENK, C, D)):
            for p in (0, 2):
                r(f"v_pk_fma_f32 {vr(EN+p,2)}, {vr(X+p,2)}, {vr(L2P,2)}, {vr(mn,2)} op_sel_hi:[1,1,0] neg_lo:[0,1,0] neg_hi:[0,1,0]")
            for p in (0, 2):
                r(f"v_pk_fma_f32 {vr(X+p,2)}, {vr(X+p,2)}, {vr(L2P,2)}, {vr(mx,2)} op_sel_hi:[1,1,0]")
        for X in (P, ENQ, PK, ENK):
            for q in range(4): r(f"v_exp_f32 v{X+q}, v{X+q}")
        for X, d in ((P, A), (ENQ, B), (PK, C), (ENK, D)):
            r(f"v_pk_add_f32 {vr(d,2)}, {vr(X,2)}, {vr(X+2,2)}")
        for d in (A, B, C, D):
            r(f"v_add_f32 v{d}, v{d}, v{d+1}")
        red4(r, A, B, C, D, 'v_add_f32', f"v_rcp_f32 v{A}, v{A}")
        for X, d in ((PK, C), (ENK, D), (P, A), (ENQ, B)):
            for p in (0, 2):
                r(f"v_pk_mul_f32 {vr(X+p,2)}, {vr(X+p,2)}, {vr(d,2)} op_sel_hi:[1,0]")
        pack4(r, PK, PK); pack4(r, ENK, ENK)
        r(f"v_mfma_f32_16x16x16_bf16 {vr(Bq,4)}, {vr(PK,2)}, {vr(IDN,2)}, 0")
        r(f"v_mfma_f32_16x16x16_bf16 {vr(Bq+24,4)}, {vr(ENK,2)}, {vr(IDN,2)}, 0")
        pack4(r, P, P); pack4(r, ENQ, ENQ)
        r(f"buffer_store_dwordx2 {vr(P,2)}, v{20+st}, s[{SRD_O}:{SRD_O+3}], 0 offen offset:{h*64}")
        r(f"buffer_store_dwordx2 {vr(ENQ,2)}, v{20+st}, s[{SRD_O}:{SRD_O+3}], 0 offen offset:{h*64+32}")
        pack4(r, Bq, Bq); pack4(r, Bq + 24, Bq + 24)
        for sg, ph in ((0, Bq), (1, Bq + 24)):
            kv = KV + (h * 2 + sg) * 4; z = Z + (h * 2 + sg) * 4
            r(f"v_mfma_f32_16x16x16_bf16 {vr(kv,4)}, {vr(VB,2)}, {vr(ph,2)}, {'0' if st == 0 else vr(kv,4)}")
            r(f"v_mfma_f32_16x16x16_bf16 {vr(z,4)}, v[8:9], {vr(ph,2)}, {'0' if st == 0 else vr(z,4)}")
        return r
    for st in range(2):
        interleave(a, [stream(st, 0, 212), stream(st, 1, 152)])
    RED = 3 * SLOT96; REDZ = RED + 16384
    a(f"s_lshl_b32 s6, s{S_W}, 12")
    a(f"v_lshlrev_b32 v4, 4, v1")
    a(f"v_add_u32 v4, s6, v4")
    a(f"s_lshl_b32 s6, s{S_W}, 10")
    a(f"v_lshlrev_b32 v5, 2, v1")
    a(f"v_add_u32 v5, s6, v5")
    a(f"v_add_u32 v4, {RED}, v4")
    a(f"v_add_u32 v5, {REDZ}, v5")
    for i in range(4):
        a(f"ds_write_b128 v4, {vr(KV+4*i,4)} offset:{i*1024}")
        a(f"ds_write_b32 v5, v{Z+4*i} offset:{i*256}")
    a("s_waitcnt lgkmcnt(0)")
    barrier(a)
    a(f"v_lshlrev_b32 v4, 4, v0")
    a(f"v_add_u32 v4, {RED}, v4")
    for w in range(4):
        a(f"ds_read_b128 {vr(T+4*w,4)}, v4 offset:{w*4096}")
    a(f"v_lshrrev_b32 v5, 4, v0")
    a(f"v_lshlrev_b32 v5, 8, v5")
    a(f"v_lshl_add_u32 v5, v2, 2, v5")
    a(f"v_add_u32 v5, {REDZ}, v5")
    for w in range(4):
        a(f"ds_read_b32 v{T+16+w}, v5 offset:{w*1024}")
    a(f"s_lshr_b32 s6, s{S_W}, 1")
    a(f"s_lshl_b32 s7, s{S_CT}, 1")
    a(f"s_add_u32 s6, s6, s7")
    a(f"s_lshl_b32 s6, s6, 11")
    a(f"s_and_b32 s7, s{S_W}, 1")
    a(f"s_lshl_b32 s7, s7, 6")
    a(f"s_add_u32 s6, s6, s7")
    a(f"v_lshlrev_b32 v6, 9, v3")
    a(f"v_lshl_add_u32 v6, v2, 2, v6")
    a(f"s_lshl_b32 s7, s{S_CT}, 8")
    a(f"s_add_u32 s7, s7, {KVZ_OFF}")
    a(f"v_lshlrev_b32 v7, 2, v0")
    a("s_waitcnt lgkmcnt(0)")
    for r in range(4):
        a(f"v_add_f32 v{T+r}, v{T+r}, v{T+4+r}")
        a(f"v_add_f32 v{T+8+r}, v{T+8+r}, v{T+12+r}")
    for r in range(4):
        a(f"v_add_f32 v{T+r}, v{T+r}, v{T+8+r}")
    a(f"v_add_f32 v{T+16}, v{T+16}, v{T+17}")
    a(f"v_add_f32 v{T+18}, v{T+18}, v{T+19}")
    a(f"v_add_f32 v{T+16}, v{T+16}, v{T+18}")
    for r in range(4):
        a(f"buffer_atomic_add_f32 v{T+r}, v6, s[{SRD_X2}:{SRD_X2+3}], s6 offen offset:{r*128}")
    a(f"s_cmp_lg_u32 s{S_W}, 0")
    a("s_cbranch_scc1 L_fin")
    a(f"buffer_atomic_add_f32 v{T+16}, v7, s[{SRD_X2}:{SRD_X2+3}], s7 offen")
    loader_begin(a)
    gemm96_loader(a, 1024, 64, (12, 8, 9))
    loader_end(a, (P_WO, 512*1024, 4))

def k2_attn_wo(a):
    vm = VM(a)
    prologue8(a, 256); decode_wg(a, 4)
    srd(a, SRD_A, P_WS, WS_PHIQ, 0x400000)
    srd(a, SRD_B, P_WO, 0, 512 * 1024)
    srd(a, SRD_O, P_WS, WS_XA, 0x200000)
    srd_sel(a, SRD_X1, P_X, 0, P_WS, WS_XN, 0x200000)
    a(f"s_mul_i32 s6, s{S_LAYER}, {KV_STRIDE}")
    a(f"s_add_u32 s6, s6, {WS_KV}")
    a(f"s_add_u32 s{SRD_X2}, s{P_WS}, s6")
    a(f"s_addc_u32 s{SRD_X2+1}, s{P_WS+1}, 0")
    a(f"s_mov_b32 s{SRD_X2+2}, {KV_STRIDE}")
    a(f"s_mov_b32 s{SRD_X2+3}, 0x00020000")
    NS, NCH, SL, NI = 5, 8, 24576, 2
    KVL = NS * SL; ZL = KVL + 32768
    KR = 160
    a(f"s_lshl_b32 s12, s{S_CT}, 7")
    split(a)
    a("v_lshlrev_b32 v4, 4, v0")
    for i in range(17):
        a(f"s_mov_b32 s6, {i*4096 if i < 16 else KVZ_OFF}")
        a(f"buffer_load_dwordx4 {vr(KR+4*i,4)}, v4, s[{SRD_X2}:{SRD_X2+3}], s6 offen")
    row_voff(a, 21, 64, 16, 1024, with_g=8)
    a(f"v_add_u32 v21, s12, v21")
    RX = 240
    for nt in range(4):
        a(f"buffer_load_dwordx2 {vr(RX+2*nt,2)}, v21, s[{SRD_X1}:{SRD_X1+3}], 0 offen offset:{nt*32}")
    a_rd256(a, 4, 24, 4096)
    tr_addrs128(a, 12, 24, 'k2')
    AB = Banked(a, 4, 4, [232])
    BB = Banked(a, 12, 4, [236])
    a("v_lshlrev_b32 v22, 3, v0")
    a(f"v_add_u32 v22, {KVL}, v22")
    for i in range(17):
        q = KR + 4 * i
        a(f"s_waitcnt vmcnt({4 + 16 - i})")
        pack4(a, q, q)
        a(f"ds_write_b64 v22, {vr(q,2)} offset:{i*2048}")
    a("v_lshlrev_b32 v22, 6, v2")
    a("v_lshl_add_u32 v22, v3, 4, v22")
    a(f"v_add_u32 v22, {KVL}, v22")
    a("v_lshlrev_b32 v23, 4, v3")
    a(f"v_add_u32 v23, {ZL}, v23")
    a("s_waitcnt lgkmcnt(0)")
    PHB = 80
    KVB = 96
    NUB = 128
    OB = 64
    for c in range(NCH):
        slot = (c % NS) * SL
        barrier(a, c in (0, NCH - 1))
        ar, ao = AB.get(slot)
        br, bo = BB.get(slot + 16384)
        for hh in range(4):
            h = 4 * c + hh
            a(f"ds_read_b128 {vr(PHB+4*hh,4)}, v{ar+hh} offset:{ao}")
            a(f"ds_read_b128 {vr(KVB+8*hh,4)}, v22 offset:{h*1024}")
            a(f"ds_read_b128 {vr(KVB+8*hh+4,4)}, v23 offset:{h*64}")
        for hh in range(4):
            a(f"s_waitcnt lgkmcnt({9-3*hh})")
            n = NUB + 8 * hh
            a(f"v_mfma_f32_16x16x32_bf16 {vr(n,4)}, {vr(KVB+8*hh,4)}, {vr(PHB+4*hh,4)}, 0")
            a(f"v_mfma_f32_16x16x32_bf16 {vr(n+4,4)}, {vr(KVB+8*hh+4,4)}, {vr(PHB+4*hh,4)}, 0")
        for j in range(2):
            for nt in range(4):
                for hh in range(2):
                    a(f"ds_read_b64_tr_b16 {vr(176 + j*16 + nt*4 + hh*2, 2)}, v{br+nt} offset:{bo + j*4096 + hh*2048}")
        for hh in range(4):
            n = NUB + 8 * hh; t = 24 + 2 * hh
            round4(a, n, t)
            bf16r(a, n + 4, n + 4, t)
            a(f"v_add_f32 v{n+4}, {lit(1e-6)}, v{n+4}")
            bf16r(a, n + 4, n + 4, t)
            a(f"v_rcp_f32 v{n+4}, v{n+4}")
            a(f"v_mov_b32 v{n+5}, v{n+4}")
            for p in (0, 2): a(f"v_pk_mul_f32 {vr(n+p,2)}, {vr(n+p,2)}, {vr(n+4,2)}")
            pack4(a, OB + 2 * hh, n)
        for j in range(2):
            a(f"s_waitcnt lgkmcnt({8 if j == 0 else 0})")
            for nt in range(4):
                cc = vr(32 + 4 * nt, 4)
                a(f"v_mfma_f32_16x16x32_bf16 {cc}, {vr(176 + j*16 + nt*4, 4)}, {vr(OB+4*j,4)}, {'0' if c == 0 and j == 0 else cc}")
    a("s_waitcnt vmcnt(0)")
    for nt in range(4):
        c = 32 + 4 * nt
        round4(a, c, 24)
        unpack2(a, 26, 27, RX + 2 * nt); unpack2(a, 28, 29, RX + 2 * nt + 1)
        for p in (0, 2): a(f"v_pk_add_f32 {vr(c+p,2)}, {vr(c+p,2)}, {vr(26+p,2)}")
        pack4(a, c, c)
        a(f"buffer_store_dwordx2 {vr(c,2)}, v21, s[{SRD_O}:{SRD_O+3}], 0 offen offset:{nt*32}")
    loader_begin(a)
    AV, BV = 16, 20
    a_voff256(a, AV, 2048, 64, 16, 24)
    b_voff128(a, BV, 24, 1024, 'k2')
    a(f"s_lshl_b32 s13, s{S_W}, 12")
    a(f"s_lshl_b32 s14, s{S_W}, 10")
    a(f"s_mul_i32 s10, s{S_W}, {8*1024}")
    a(f"s_add_u32 s10, s10, s12")
    def issue(c):
        slot = (c % NS) * SL
        for t4 in range(4):
            dma(a, vm, ('ch', c), AV + t4, SRD_A, 0, c * 256, (13, slot + t4 * 1024))
        for i in range(2):
            dma(a, vm, ('ch', c), BV, SRD_B, 's10', 0, (14, slot + 16384 + i * 4096))
            a(f"s_add_u32 s10, s10, {32*1024}")
    loader_ring(a, vm, issue, NCH, NS, NI)
    loader_end(a, (P_W1, 512*1024, 4))

KERNELS = [
    ('k0', k0_init, K0_WGS, 8192, False),
    ('k1', k1_qkv, 256, 5 * SLOT96, True),
    ('k2', k2_attn_wo, 256, 5 * 24576 + 32768 + 2048, True),
    ('k3', k3_ln_w1, 256, 131072, False),
    ('k4', k4_shift_w2, 256, 131072, False),
    ('k5', k5_ln_w3, 240, 5 * SLOT96, False),
    ('k6', k6_w4, 256, 163840, True),
]

def build():
    header = open('cdna_kernels/' + NAME + '.s.ref').read().split('; Override launch')[0]
    launches = [('k0', None)]
    for L in range(2):
        for k in KERNELS[1:]:
            launches.append((k[0], L if k[4] else None))
    info = {k[0]: k for k in KERNELS}
    out = [header.rstrip('\n')]
    def lab(n, L): return f"hh_{n}{'' if L is None else '_l%d' % L}_kernel"
    for n, L in launches:
        k = info[n]
        out.append(f"; @launch kernel={lab(n, L)} grid=({k[2]},1,1) block=({256 if n == 'k0' else 512},1,1) lds={k[3]}")
    out.append('.amdgcn_target "amdgcn-amd-amdhsa--gfx950"')
    out.append('.text')
    descs = []
    for n, fn, nwg, lds, layered in KERNELS:
        a = Asm(); St.n = 0
        fn(a)
        a.label("L_fin")
        dump_stamps(a, [k[0] for k in KERNELS].index(n))
        body = a.text().replace('L_', f'L{n}_')
        entries = [(lab(n, 0), 0), (lab(n, 1), 1)] if layered else [(lab(n, None), None)]
        if layered:
            for nm, L in entries:
                out.append(f".globl {nm}\n.p2align 8\n.type {nm},@function\n{nm}:")
                out.append(f"  s_mov_b32 s{S_LAYER}, {L}\n  s_branch L{n}_body")
            out.append(f".p2align 8\nL{n}_body:")
        else:
            nm = entries[0][0]
            out.append(f".globl {nm}\n.p2align 8\n.type {nm},@function\n{nm}:")
        out.append(body.rstrip('\n'))
        out.append(f"L{n}_end:\n  s_endpgm")
        for nm, L in entries: descs.append(nm)
    out.append('.section .rodata,"a"')
    for nm in descs:
        out.append(f""".p2align 6
.amdhsa_kernel {nm}
  .amdhsa_next_free_vgpr 256
  .amdhsa_next_free_sgpr 102
  .amdhsa_accum_offset 256
  .amdhsa_group_segment_fixed_size 0
  .amdhsa_kernarg_size 96
  .amdhsa_user_sgpr_count 2
  .amdhsa_user_sgpr_kernarg_segment_ptr 1
  .amdhsa_system_sgpr_workgroup_id_x 1
.end_amdhsa_kernel""")
    return '\n'.join(out) + '\n'

if __name__ == '__main__':
    if len(sys.argv) > 2 and sys.argv[2] == 'timing': gen.TIMING = True
    txt = build()
    dst = sys.argv[1] if len(sys.argv) > 1 else 'cdna_kernels/' + NAME + '.s'
    open(dst, 'w').write(txt)
    print('wrote', dst, len(txt), 'bytes')
```

```python
import sys
import gen
from gen import (Asm, vr, sr, NAME, S, D, F, H, WS_XA, WS_XB, WS_H, WS_X1, WS_XN, WS_H3, WS_PHIQ, WS_KV,
                 KV_STRIDE, KVZ_OFF, P_X, P_WQKV, P_WPHI, P_WO, P_BX, P_W1, P_W2, P_W3, P_W4, P_OUT, P_DBG, P_WS,
                 SRD_A, SRD_B, SRD_O, SRD_X1, SRD_X2, SRD_X3, S_RT, S_CT, S_W, S_LAYER, LOG2E, lit, prologue, srd,
                 srd_sel, decode_wg, tr_addrs128, tr_addrs64, setup_consts, xlane_sum, bf16r, GELU_C0, GELU_C1,
                 unpack2, row_voff, dpp_allreduce, stamp, dump_stamps, St)

WS_CS = 0x1480000
CS_QKV, CS_W1, CS_W3 = 0x0, 0x2000, 0x3000
SRD_CS = 96

class VM:
    def __init__(self, a): self.a = a; self.q = []
    def issue(self, tag): self.q.append(tag)
    def wait(self, tag):
        idx = [i for i, t in enumerate(self.q) if t == tag]
        if not idx: return
        idx = idx[-1]
        n = len(self.q) - 1 - idx
        self.a(f"s_waitcnt vmcnt({min(n, 63)})")
        self.q = self.q[idx + 1:]
    def wait_all(self):
        self.a("s_waitcnt vmcnt(0)"); self.q = []

def prologue8(a, nwg):
    prologue(a, nwg)
    a(f"s_mov_b32 s101, s{S_W}")
    a(f"s_and_b32 s{S_W}, s{S_W}, 3")
def split(a):
    a("s_cmp_ge_u32 s101, 4")
    a("s_cbranch_scc1 L_loader")
def loader_begin(a):
    a("s_branch L_fin")
    a.label("L_loader")
PREFETCH = False
EPI8 = False
def loader_end(a, pf=None):
    if pf and PREFETCH:
        ptr, nbytes, n = pf
        srd(a, SRD_X3, ptr, 0, nbytes)
        a("s_lshr_b32 s6, s2, 3")
        a(f"s_lshl_b32 s6, s6, 2")
        a(f"s_add_u32 s6, s6, s{S_W}")
        a(f"s_mul_i32 s6, s6, {n*1024}")
        a("v_lshlrev_b32 v4, 4, v1")
        for i in range(n):
            if i and i % 4 == 0: a("s_add_u32 s6, s6, 4096")
            a(f"buffer_load_dwordx4 {vr(32+4*i,4)}, v4, s[{SRD_X3}:{SRD_X3+3}], s6 offen offset:{(i%4)*1024}")
        a("s_waitcnt vmcnt(0)")
    a("s_branch L_end")

class Rec:
    def __init__(self): self.l = []
    def __call__(self, text):
        for line in text.strip('\n').split('\n'):
            line = line.strip()
            if line: self.l.append(line)
def interleave(a, recs):
    n = max(len(r.l) for r in recs)
    for i in range(n):
        for r in recs:
            if i < len(r.l): a(r.l[i])

def handover_put(a, regs):
    a(f"s_lshl_b32 s6, s{S_W}, 13")
    a("v_lshlrev_b32 v24, 4, v1")
    a("v_add_u32 v24, s6, v24")
    for i, r in enumerate(regs):
        a(f"ds_write_b128 v24, {vr(r,4)} offset:{i*1024}")
    a("s_waitcnt lgkmcnt(0)")
    a("s_barrier")
def handover_get(a, regs):
    a(f"s_lshl_b32 s6, s{S_W}, 13")
    a("v_lshlrev_b32 v24, 4, v1")
    a("v_add_u32 v24, s6, v24")
    a("s_barrier")
    for i, r in enumerate(regs):
        a(f"ds_read_b128 {vr(r,4)}, v24 offset:{i*1024}")
    a("s_waitcnt vmcnt(0) lgkmcnt(0)")
    a("s_nop 7")

def barrier(a, st=True):
    if st: stamp(a)
    a("s_barrier")
    if st: stamp(a)

def a_voff256(a, dst, rs, rows_per_wg, rows_per_wave, t):
    a(f"s_mul_i32 s6, s{S_RT}, {rows_per_wg}")
    a(f"s_mul_i32 s7, s{S_W}, {rows_per_wave}")
    a(f"s_add_u32 s6, s6, s7")
    a(f"s_mov_b32 s7, {rs}")
    for t4 in range(4):
        a(f"v_add_u32 v{t}, {4*t4}, v3")
        a(f"v_xor_b32 v{t+1}, v{t}, v2")
        a(f"v_add_u32 v{t}, s6, v{t}")
        a(f"v_mul_lo_u32 v{t}, v{t}, s7")
        a(f"v_lshl_add_u32 v{dst+t4}, v{t+1}, 4, v{t}")

def a_voff128(a, dst, rs, rows_per_wg, rows_per_wave, t):
    a(f"s_mul_i32 s6, s{S_RT}, {rows_per_wg}")
    a(f"s_mul_i32 s7, s{S_W}, {rows_per_wave}")
    a(f"s_add_u32 s6, s6, s7")
    a(f"s_mov_b32 s7, {rs}")
    a(f"v_lshrrev_b32 v{t+2}, 3, v1")
    a(f"v_and_b32 v{t+3}, 7, v1")
    for t2 in range(2):
        a(f"v_add_u32 v{t}, {4*t2}, v3")
        a(f"v_xor_b32 v{t+1}, v{t}, v{t+3}")
        a(f"v_add_u32 v{t}, {8*t2}, v{t+2}")
        a(f"v_add_u32 v{t}, s6, v{t}")
        a(f"v_mul_lo_u32 v{t}, v{t}, s7")
        a(f"v_lshl_add_u32 v{dst+t2}, v{t+1}, 4, v{t}")

def a_rd256(a, dst, t, wave_bytes):
    a(f"v_xor_b32 v{t}, v3, v2")
    a(f"v_lshlrev_b32 v{t}, 4, v{t}")
    a(f"v_lshl_add_u32 v{t}, v2, 8, v{t}")
    a(f"s_mul_i32 s6, s{S_W}, {wave_bytes}")
    for j in range(4):
        a(f"v_xor_b32 v{dst+j}, {j << 6}, v{t}")
        a(f"v_add_u32 v{dst+j}, s6, v{dst+j}")

def a_rd128(a, dst, t, wave_bytes):
    a(f"v_lshrrev_b32 v{t}, 1, v2")
    a(f"v_xor_b32 v{t}, v3, v{t}")
    a(f"v_lshlrev_b32 v{t}, 4, v{t}")
    a(f"v_lshl_add_u32 v{t}, v2, 7, v{t}")
    a(f"s_mul_i32 s6, s{S_W}, {wave_bytes}")
    for j in range(2):
        a(f"v_xor_b32 v{dst+j}, {j << 6}, v{t}")
        a(f"v_add_u32 v{dst+j}, s6, v{dst+j}")

def dma(a, vm, tag, voff, srdx, soff, imm, m0_sgpr_expr):
    sg, c = m0_sgpr_expr
    a(f"s_add_u32 m0, s{sg}, {c}")
    if imm:
        if soff == 0: a(f"s_mov_b32 s7, {imm}")
        else: a(f"s_add_u32 s7, {soff}, {imm}")
        soff = 's7'
    else:
        a("s_nop 0")
    a(f"buffer_load_dwordx4 v{voff}, s[{srdx}:{srdx+3}], {soff} offen lds")
    vm.issue(tag)

def b_voff128(a, voff, t, rs, swz):
    a(f"v_lshrrev_b32 v{t}, 3, v1")
    a(f"v_and_b32 v{voff}, 7, v1")
    if swz == 'std':
        a(f"v_and_b32 v{t+1}, 2, v{t}")
        a(f"s_and_b32 s6, s{S_W}, 1")
        a(f"s_lshl_b32 s6, s6, 2")
        a(f"v_or_b32 v{t+1}, s6, v{t+1}")
    else:
        a(f"v_and_b32 v{t+1}, 6, v{t}")
    a(f"v_xor_b32 v{voff}, v{voff}, v{t+1}")
    a(f"v_lshlrev_b32 v{voff}, 4, v{voff}")
    a(f"s_mov_b32 s6, {rs}")
    a(f"v_mul_lo_u32 v{t}, v{t}, s6")
    a(f"v_add_u32 v{voff}, v{voff}, v{t}")

def b_voff64(a, voff, t, rs):
    a(f"v_lshrrev_b32 v{t}, 2, v1")
    a(f"v_and_b32 v{voff}, 3, v1")
    a(f"v_lshrrev_b32 v{t+1}, 5, v1")
    a(f"v_lshlrev_b32 v{t+1}, 1, v{t+1}")
    a(f"v_xor_b32 v{voff}, v{voff}, v{t+1}")
    a(f"v_lshlrev_b32 v{voff}, 4, v{voff}")
    a(f"s_mov_b32 s6, {rs}")
    a(f"v_mul_lo_u32 v{t}, v{t}, s6")
    a(f"v_add_u32 v{voff}, v{voff}, v{t}")

def tr_addrs64s(a, dst, vt, sub_bytes):
    a(f"v_lshrrev_b32 v{vt}, 2, v2")
    a(f"v_and_b32 v{vt+1}, 3, v2")
    a(f"v_lshl_add_u32 v{vt+2}, v3, 3, v{vt}")
    a(f"v_and_b32 v{vt+3}, 1, v3")
    a(f"v_lshlrev_b32 v{vt+3}, 1, v{vt+3}")
    a(f"v_lshlrev_b32 v{vt+2}, 6, v{vt+2}")
    a(f"v_and_b32 v{vt+4}, 1, v{vt+1}")
    a(f"v_lshl_add_u32 v{vt+2}, v{vt+4}, 3, v{vt+2}")
    a(f"v_lshrrev_b32 v{vt+1}, 1, v{vt+1}")
    for n2 in range(2):
        a(f"v_or_b32 v{vt+4}, {2*n2}, v{vt+1}")
        a(f"v_xor_b32 v{vt+4}, v{vt+4}, v{vt+3}")
        a(f"v_lshl_add_u32 v{dst+n2}, v{vt+4}, 4, v{vt+2}")
    for j in (1, 2):
        for n2 in range(2):
            a(f"v_add_u32 v{dst+2*j+n2}, {j*sub_bytes}, v{dst+n2}")

def ln_finish(a, SUM, G, mb, rs, t):
    g = t; t0 = t + 1; mean = t + 3
    a(f"v_cndmask_b32 v{g}, 0, v{G}, s[64:65]")
    for r in range(1, 4):
        a(f"v_cndmask_b32 v{g}, v{g}, v{G+r}, s[{64+2*r}:{65+2*r}]")
    a(f"v_mul_f32 v{mean}, {lit(1.0/512)}, v{SUM}")
    xlane_sum(a, g, t0)
    bf16r(a, mb, mean, t0)
    a(f"v_mul_f32 v{g}, {lit(1.0/512)}, v{g}")
    a(f"v_fma_f32 v{g}, -v{mean}, v{mean}, v{g}")
    a(f"v_max_f32 v{g}, 0, v{g}")
    bf16r(a, g, g, t0)
    a(f"v_add_f32 v{g}, {lit(1e-5)}, v{g}")
    bf16r(a, g, g, t0)
    a(f"v_sqrt_f32 v{g}, v{g}")
    bf16r(a, g, g, t0)
    a(f"v_rcp_f32 v{rs}, v{g}")

def gelu4(a, c, t, vc0):
    for p in (0, 2):
        a(f"v_pk_mul_f32 {vr(t+p,2)}, {vr(c+p,2)}, {vr(c+p,2)}")
    for p in (0, 2):
        a(f"v_pk_fma_f32 {vr(t+p,2)}, {vr(t+p,2)}, {vr(vc0+2,2)}, {vr(vc0,2)}")
    for p in (0, 2):
        a(f"v_pk_mul_f32 {vr(t+p,2)}, {vr(t+p,2)}, {vr(c+p,2)}")
    for r in range(4): a(f"v_exp_f32 v{t+r}, v{t+r}")
    for p in (0, 2):
        a(f"v_pk_add_f32 {vr(t+p,2)}, {vr(t+p,2)}, 1.0 op_sel_hi:[1,0]")
    for r in range(4): a(f"v_rcp_f32 v{t+r}, v{t+r}")
    for p in (0, 2):
        a(f"v_pk_mul_f32 {vr(c+p,2)}, {vr(c+p,2)}, {vr(t+p,2)}")

def fold4(a, c, cs, nmb2, rs2):
    for p in (0, 2):
        a(f"v_pk_fma_f32 {vr(c+p,2)}, {vr(cs+p,2)}, {vr(nmb2,2)}, {vr(c+p,2)}")
    for p in (0, 2):
        a(f"v_pk_mul_f32 {vr(c+p,2)}, {vr(c+p,2)}, {vr(rs2,2)}")

def round4(a, c, t):
    a(f"v_cvt_pk_bf16_f32 v{t}, v{c}, v{c+1}")
    a(f"v_cvt_pk_bf16_f32 v{t+1}, v{c+2}, v{c+3}")
    unpack2(a, c, c + 1, t); unpack2(a, c + 2, c + 3, t + 1)

def pack4(a, dst, c):
    a(f"v_cvt_pk_bf16_f32 v{dst}, v{c}, v{c+1}")
    a(f"v_cvt_pk_bf16_f32 v{dst+1}, v{c+2}, v{c+3}")

WS_WQC, WS_W2C, WS_W4C = 0x1500000, 0x1680000, 0x1900000
W4C_STRIDE = 1536 * 128
K0_WGS = 86
def k0_init(a):
    prologue(a, K0_WGS)
    srd(a, SRD_O, P_WS, WS_KV, 2 * KV_STRIDE)
    srd(a, SRD_CS, P_WS, WS_CS, 0x5000)
    a(f"""
    s_cmp_ge_u32 s2, 34
    s_cbranch_scc1 L_nozero
    s_cmp_ge_u32 s2, 17
    s_cselect_b32 s6, {KV_STRIDE - 17 * 4096}, 0
    s_lshl_b32 s7, s2, 12
    s_add_u32 s6, s6, s7
    v_lshlrev_b32 v4, 4, v0
    v_mov_b32 v8, 0
    v_mov_b32 v9, 0
    v_mov_b32 v10, 0
    v_mov_b32 v11, 0
    buffer_store_dwordx4 v[8:11], v4, s[{SRD_O}:{SRD_O+3}], s6 offen
    """)
    a.label("L_nozero")
    a(f"""
    s_mov_b32 s{SRD_B}, s{P_WQKV}
    s_mov_b32 s{SRD_B+1}, s{P_WQKV+1}
    s_mov_b32 s{SRD_B+2}, {512*3072}
    s_mov_b32 s{SRD_B+3}, 0x00020000
    s_mov_b32 s8, 3072
    s_mov_b32 s9, s2
    s_mov_b32 s10, {CS_QKV}
    s_mov_b32 s13, 0
    s_lshl_b32 s14, s2, 16
    s_add_u32 s14, s14, {WS_WQC}
    s_mov_b32 s15, 1
    s_cmp_lt_u32 s2, 24
    s_cbranch_scc1 L_sel
    s_mov_b32 s15, 0
    s_mov_b32 s{SRD_B}, s{P_W1}
    s_mov_b32 s{SRD_B+1}, s{P_W1+1}
    s_mov_b32 s{SRD_B+2}, {512*1024}
    s_mov_b32 s8, 1024
    s_sub_u32 s9, s2, 24
    s_mov_b32 s10, {CS_W1}
    s_cmp_lt_u32 s2, 32
    s_cbranch_scc1 L_sel
    s_mov_b32 s{SRD_B}, s{P_W3}
    s_mov_b32 s{SRD_B+1}, s{P_W3+1}
    s_mov_b32 s{SRD_B+2}, {512*F*2}
    s_mov_b32 s8, {F*2}
    s_sub_u32 s9, s2, 32
    s_mov_b32 s10, {CS_W3}
    s_cmp_lt_u32 s2, 54
    s_cbranch_scc1 L_sel
    s_mov_b32 s15, 2
    s_mov_b32 s{SRD_B}, s{P_W2}
    s_mov_b32 s{SRD_B+1}, s{P_W2+1}
    s_mov_b32 s{SRD_B+2}, {512*1024}
    s_mov_b32 s8, 1024
    s_sub_u32 s9, s2, 54
    s_lshl_b32 s14, s9, 16
    s_add_u32 s14, s14, {WS_W2C}
    s_cmp_lt_u32 s2, 62
    s_cbranch_scc1 L_sel
    s_mov_b32 s{SRD_B}, s{P_W4}
    s_mov_b32 s{SRD_B+1}, s{P_W4+1}
    s_mov_b32 s{SRD_B+2}, {F*1024}
    s_sub_u32 s9, s2, 62
    s_lshr_b32 s6, s9, 3
    s_and_b32 s9, s9, 7
    s_lshl_b32 s13, s6, 19
    s_mul_i32 s14, s9, {W4C_STRIDE}
    s_lshl_b32 s6, s6, 16
    s_add_u32 s14, s14, s6
    s_add_u32 s14, s14, {WS_W4C}
    """)
    a.label("L_sel")
    a(f"""
    v_lshrrev_b32 v4, 3, v0
    v_and_b32 v5, 7, v0
    s_lshl_b32 s11, s8, 4
    v_mul_lo_u32 v6, v4, s11
    v_lshl_add_u32 v6, v5, 4, v6
    s_lshl_b32 s12, s9, 7
    s_add_u32 s12, s12, s13
    """)
    for i in range(16):
        a(f"buffer_load_dwordx4 {vr(32+4*i,4)}, v6, s[{SRD_B}:{SRD_B+3}], s12 offen")
        if i < 15: a("s_add_u32 s12, s12, s8")
    a(f"""
    s_add_u32 s{SRD_X1}, s{P_WS}, s14
    s_addc_u32 s{SRD_X1+1}, s{P_WS+1}, 0
    s_mov_b32 s{SRD_X1+2}, 0x10000
    s_mov_b32 s{SRD_X1+3}, 0x00020000
    v_lshlrev_b32 v7, 11, v4
    v_lshl_add_u32 v7, v5, 4, v7
    v_lshrrev_b32 v12, 2, v5
    v_lshlrev_b32 v12, 15, v12
    v_lshl_add_u32 v12, v4, 10, v12
    v_and_b32 v13, 3, v5
    v_lshl_add_u32 v12, v13, 4, v12
    s_cmp_lg_u32 s15, 2
    s_cbranch_scc1 L_sum
    """)
    for i in range(16):
        a(f"s_waitcnt vmcnt({15})")
        a(f"buffer_store_dwordx4 {vr(32+4*i,4)}, v7, s[{SRD_X1}:{SRD_X1+3}], 0 offen offset:{i*128}")
    a("s_branch L_fin")
    a.label("L_sum")
    for r in range(8): a(f"v_mov_b32 v{16+r}, 0")
    for i in range(16):
        a(f"s_waitcnt vmcnt({15-i})")
        for p in range(4):
            unpack2(a, 24, 25, 32 + 4 * i + p)
            a(f"v_pk_add_f32 {vr(16+2*p,2)}, {vr(16+2*p,2)}, v[24:25]")
    a("s_cmp_lg_u32 s15, 1")
    a("s_cbranch_scc1 L_nocopy")
    for i in range(16):
        a(f"buffer_store_dwordx4 {vr(32+4*i,4)}, v12, s[{SRD_X1}:{SRD_X1+3}], 0 offen offset:{i*64}")
    a.label("L_nocopy")
    a("v_lshlrev_b32 v6, 5, v0")
    a("ds_write_b128 v6, v[16:19]")
    a("ds_write_b128 v6, v[20:23] offset:16")
    a("s_waitcnt lgkmcnt(0)")
    a("s_barrier")
    a(f"s_cmp_lg_u32 s{S_W}, 0")
    a("s_cbranch_scc1 L_fin")
    a("v_lshlrev_b32 v6, 2, v1")
    for i in range(32):
        a(f"ds_read_b32 v{100+i}, v6 offset:{i*256}")
    a("s_waitcnt lgkmcnt(0)")
    for st in (16, 8, 4, 2, 1):
        for i in range(st):
            a(f"v_add_f32 v{100+i}, v{100+i}, v{100+st+i}")
    a("s_lshl_b32 s12, s9, 8")
    a("s_add_u32 s12, s12, s10")
    a(f"buffer_store_dword v100, v6, s[{SRD_CS}:{SRD_CS+3}], s12 offen")

def gemm64_chunk(a, steps, ard, brd, aslot, bslot, acc, abuf, bbuf, first, xreg=None, stats=None):
    def lds_off(base_reg, off):
        return base_reg, off
    def reads(j):
        if xreg is None:
            a(f"ds_read_b128 {vr(abuf + (j % 2) * 4, 4)}, v{ard + j} offset:{aslot}")
        for nt in range(4):
            for hh in range(2):
                a(f"ds_read_b64_tr_b16 {vr(bbuf + (j % 2) * 16 + nt * 4 + hh * 2, 2)}, v{brd + nt} offset:{bslot + j * 4096 + hh * 512}")
    per = 8 + (1 if xreg is None else 0)
    reads(0)
    for j in range(steps):
        if j + 1 < steps:
            reads(j + 1); a(f"s_waitcnt lgkmcnt({per})")
        else:
            a("s_waitcnt lgkmcnt(0)")
        x = vr(abuf + (j % 2) * 4, 4) if xreg is None else vr(xreg(j), 4)
        z = first and j == 0
        for nt in range(4):
            c = vr(acc + 4 * nt, 4)
            a(f"v_mfma_f32_16x16x32_bf16 {c}, {vr(bbuf + (j % 2) * 16 + nt * 4, 4)}, {x}, {'0' if z else c}")
        if stats is not None:
            SU, G = stats
            a(f"v_mfma_f32_16x16x32_bf16 {vr(SU,4)}, v[8:11], {x}, {'0' if z else vr(SU,4)}")
            a(f"v_mfma_f32_16x16x32_bf16 {vr(G,4)}, {x}, {x}, {'0' if z else vr(G,4)}")

class Banked:
    def __init__(self, a, base, n, extra):
        self.sets = [base] + extra
        for k, e in enumerate(extra):
            for i in range(n):
                a(f"v_add_u32 v{e+i}, {(k+1) << 16}, v{base+i}")
    def get(self, off):
        return self.sets[off >> 16], off & 0xffff

def k4_shift_w2(a):
    vm = VM(a)
    prologue8(a, 256); decode_wg(a, 4)
    srd(a, SRD_A, P_WS, WS_H, 0x200000)
    srd(a, SRD_B, P_WS, WS_W2C, 512 * 1024)
    srd(a, SRD_O, P_WS, WS_X1, 0x200000)
    srd(a, SRD_X1, P_WS, WS_XB, 0x200000)
    a(f"s_lshl_b32 s12, s{S_CT}, 7")
    split(a)
    row_voff(a, 21, 64, 16, 1024, with_g=8)
    a(f"v_add_u32 v21, s12, v21")
    XB = 80
    for nt in range(4):
        a(f"buffer_load_dwordx2 {vr(XB+2*nt,2)}, v21, s[{SRD_X1}:{SRD_X1+3}], 0 offen offset:{nt*32}")
    a_rd256(a, 4, 24, 4096)
    tr_addrs128(a, 12, 24, 'std')
    for nt in range(4): a(f"v_add_u32 v{12+nt}, 0x10000, v{12+nt}")
    for c in range(4):
        barrier(a)
        gemm64_chunk(a, 4, 4, 12, c * 16384, c * 16384, 32, 24, 48, c == 0)
    a("s_waitcnt vmcnt(0)")
    for nt in range(4):
        c = 32 + 4 * nt
        round4(a, c, 24)
        unpack2(a, 26, 27, XB + 2 * nt); unpack2(a, 28, 29, XB + 2 * nt + 1)
        for p in (0, 2): a(f"v_pk_add_f32 {vr(c+p,2)}, {vr(c+p,2)}, {vr(26+p,2)}")
        pack4(a, c, c)
        a(f"buffer_store_dwordx2 {vr(c,2)}, v21, s[{SRD_O}:{SRD_O+3}], 0 offen offset:{nt*32}")
    loader_begin(a)
    AV, BV = 16, 20
    a_voff256(a, AV, 1024, 64, 16, 24)
    b_voff128(a, BV, 24, 128, 'std')
    a(f"s_lshl_b32 s13, s{S_W}, 12")
    a(f"s_lshl_b32 s14, s{S_W}, 10")
    a(f"s_lshl_b32 s10, s{S_CT}, 16")
    a(f"s_add_u32 s10, s10, s14")
    def issue(c):
        sh = (-1, 1, -2, 2)[c]
        for t4 in range(4):
            a(f"v_add_u32 v{88+t4}, {(sh * 1024 + c * 256) & 0xffffffff}, v{AV+t4}")
        for t4 in range(4):
            dma(a, vm, ('ch', c), 88 + t4, SRD_A, 0, 0, (13, c * 16384 + t4 * 1024))
        for i in range(4):
            dma(a, vm, ('ch', c), BV, SRD_B, 's10', 0, (14, 65536 + c * 16384 + i * 4096))
            a(f"s_add_u32 s10, s10, {32*128}")
    issue(0); issue(1)
    for c in range(4):
        vm.wait(('ch', c)); a("s_barrier")
        if c + 2 < 4: issue(c + 2)
    loader_end(a, (P_W3, 512*F*2, 11))

def k3_ln_w1(a):
    vm = VM(a)
    prologue8(a, 256); decode_wg(a, 4)
    srd(a, SRD_A, P_WS, WS_XA, 0x200000)
    srd(a, SRD_B, P_W1, 0, 512 * 1024)
    srd(a, SRD_O, P_WS, WS_H, 0x200000)
    srd(a, SRD_X1, P_WS, WS_XB, 0x200000)
    srd(a, SRD_CS, P_WS, WS_CS, 0x5000)
    a(f"s_lshl_b32 s12, s{S_CT}, 7")
    split(a)
    CSR = 144
    a("v_lshlrev_b32 v24, 4, v3")
    a(f"s_lshl_b32 s6, s{S_CT}, 8")
    a(f"s_add_u32 s6, s6, {CS_W1}")
    for nt in range(4):
        a(f"buffer_load_dwordx4 {vr(CSR+4*nt,4)}, v24, s[{SRD_CS}:{SRD_CS+3}], s6 offen offset:{nt*64}")
    setup_consts(a)
    a_rd256(a, 4, 24, 4096)
    tr_addrs128(a, 12, 24, 'std')
    for nt in range(4): a(f"v_add_u32 v{12+nt}, 0x10000, v{12+nt}")
    row_voff(a, 21, 64, 16, 1024, with_g=8)
    a(f"v_add_u32 v21, s12, v21")
    row_voff(a, 22, 64, 16, 1024)
    X = 80
    SU, G = 160, 164
    for c in range(4):
        barrier(a, c in (0, 3))
        for j in range(4):
            a(f"ds_read_b128 {vr(X+16*c+4*j,4)}, v{4+j} offset:{c*16384}")
        for j in range(4):
            k = 4 * c + j
            a(f"s_waitcnt lgkmcnt({3-j})")
            x = vr(X + 4 * k, 4)
            a(f"v_mfma_f32_16x16x32_bf16 {vr(SU,4)}, v[8:11], {x}, {'0' if k == 0 else vr(SU,4)}")
            a(f"v_mfma_f32_16x16x32_bf16 {vr(G,4)}, {x}, {x}, {'0' if k == 0 else vr(G,4)}")
    stamp(a)
    MB, RS = 168, 170
    ln_finish(a, SU, G, MB, RS, 24)
    a(f"v_mov_b32 v{RS+1}, v{RS}")
    a(f"v_mul_f32 v{MB}, v{MB}, v{RS}")
    a(f"v_sub_f32 v{MB}, 0, v{MB}")
    a(f"v_mov_b32 v{MB+1}, v{MB}")
    def norm(k):
        r = Rec()
        for q in range(4):
            p = 4 * k + q; t = 24 + q * 2
            unpack2(r, t, t + 1, X + p)
            r(f"v_fma_f32 v{t}, v{t}, v{RS}, v{MB}")
            r(f"v_fma_f32 v{t+1}, v{t+1}, v{RS}, v{MB}")
            r(f"v_cvt_pk_bf16_f32 v{X+p}, v{t}, v{t+1}")
        return r
    def breads(k):
        c, j = k // 4, k % 4
        for nt in range(4):
            for hh in range(2):
                a(f"ds_read_b64_tr_b16 {vr(48 + (k % 2) * 16 + nt * 4 + hh * 2, 2)}, v{12 + nt} offset:{c * 16384 + j * 4096 + hh * 512}")
    interleave(a, [norm(0)])
    barrier(a)
    breads(0)
    SU2, G2 = 176, 180
    for k in range(16):
        if k + 1 < 16:
            if (k + 1) % 4 == 0: barrier(a, False)
            breads(k + 1); a("s_waitcnt lgkmcnt(8)")
        else:
            a("s_waitcnt lgkmcnt(0)")
        m = Rec()
        x = vr(X + 4 * k, 4); z = k == 0
        for nt in range(4):
            c = vr(32 + 4 * nt, 4)
            m(f"v_mfma_f32_16x16x32_bf16 {c}, {vr(48 + (k % 2) * 16 + nt * 4, 4)}, {x}, {'0' if z else c}")
        m(f"v_mfma_f32_16x16x32_bf16 {vr(SU2,4)}, v[8:11], {x}, {'0' if z else vr(SU2,4)}")
        m(f"v_mfma_f32_16x16x32_bf16 {vr(G2,4)}, {x}, {x}, {'0' if z else vr(G2,4)}")
        if k + 1 < 16:
            n = norm(k + 1).l
            for i, ins in enumerate(m.l):
                a(ins)
                for v in n[4 * i: 4 * i + 4]: a(v)
        else:
            for ins in m.l: a(ins)
        if k % 2 == 1:
            cc = k // 2
            a(f"s_cmp_lg_u32 s{S_CT}, {cc}")
            a(f"s_cbranch_scc1 L_xb{cc}")
            for j in (2 * cc, 2 * cc + 1):
                a(f"buffer_store_dwordx4 {vr(X+4*j,4)}, v22, s[{SRD_X1}:{SRD_X1+3}], 0 offen offset:{j*64}")
            a.label(f"L_xb{cc}")
    stamp(a)
    ln_finish(a, SU2, G2, MB, RS, 24)
    a(f"v_mov_b32 v{RS+1}, v{RS}")
    a(f"v_sub_f32 v{MB}, 0, v{MB}")
    a(f"v_mov_b32 v{MB+1}, v{MB}")
    GC = 172
    a(f"v_mov_b32 v{GC}, {lit(GELU_C0)}"); a(f"v_mov_b32 v{GC+1}, {lit(GELU_C0)}")
    a(f"v_mov_b32 v{GC+2}, {lit(GELU_C1)}"); a(f"v_mov_b32 v{GC+3}, {lit(GELU_C1)}")
    a("s_waitcnt vmcnt(2)")
    for np_ in range(2):
        recs = []
        for q in range(2):
            nt = 2 * np_ + q
            r = Rec()
            c = 32 + 4 * nt
            fold4(r, c, CSR + 4 * nt, MB, RS)
            round4(r, c, 24 + 2 * q)
            gelu4(r, c, 184 + 4 * q, GC)
            pack4(r, c, c)
            r(f"buffer_store_dwordx2 {vr(c,2)}, v21, s[{SRD_O}:{SRD_O+3}], 0 offen offset:{nt*32}")
            recs.append(r)
        interleave(a, recs)
    loader_begin(a)
    AV, BV = 16, 20
    a_voff256(a, AV, 1024, 64, 16, 24)
    b_voff128(a, BV, 24, 1024, 'std')
    a(f"s_lshl_b32 s13, s{S_W}, 12")
    a(f"s_lshl_b32 s14, s{S_W}, 10")
    a(f"s_mul_i32 s10, s{S_W}, {8*1024}")
    a(f"s_add_u32 s10, s10, s12")
    for c in range(4):
        for t4 in range(4):
            dma(a, vm, ('a', c), AV + t4, SRD_A, 0, c * 256, (13, c * 16384 + t4 * 1024))
    def issue_b(c):
        for i in range(4):
            dma(a, vm, ('b', c), BV, SRD_B, 's10', 0, (14, 65536 + c * 16384 + i * 4096))
            a(f"s_add_u32 s10, s10, {32*1024}")
    for c in range(4):
        vm.wait(('a', c)); a("s_barrier")
        issue_b(c)
    for c in range(4):
        vm.wait(('b', c)); a("s_barrier")
    loader_end(a)

def k6_w4(a):
    vm = VM(a)
    prologue8(a, 256); decode_wg(a, 4)
    srd(a, SRD_A, P_WS, WS_H3, S * F * 2)
    srd(a, SRD_B, P_WS, WS_W4C, 8 * W4C_STRIDE)
    srd_sel(a, SRD_O, P_WS, WS_XN, P_OUT, 0, 0x200000)
    srd(a, SRD_X1, P_WS, WS_X1, 0x200000)
    srd(a, SRD_X2, P_WS, WS_XA, 0x200000)
    NS, NCH, NI = 5, 11, 2
    a(f"s_lshl_b32 s12, s{S_CT}, 7")
    split(a)
    row_voff(a, 21, 64, 16, 1024, with_g=8)
    a(f"v_add_u32 v21, s12, v21")
    R1, R2 = 96, 104
    for nt in range(4):
        a(f"buffer_load_dwordx2 {vr(R1+2*nt,2)}, v21, s[{SRD_X1}:{SRD_X1+3}], 0 offen offset:{nt*32}")
        a(f"buffer_load_dwordx2 {vr(R2+2*nt,2)}, v21, s[{SRD_X2}:{SRD_X2+3}], 0 offen offset:{nt*32}")
    a_rd256(a, 4, 24, 4096)
    tr_addrs128(a, 12, 24, 'std')
    AB = Banked(a, 4, 4, [80, 84])
    BB = Banked(a, 12, 4, [88, 92])
    for c in range(NCH):
        barrier(a, c in (0, NCH - 1))
        slot = (c % NS) * 32768
        ar, ao = AB.get(slot); br, bo = BB.get(slot + 16384)
        gemm64_chunk(a, 4 if c < 10 else 3, ar, br, ao, bo, 32, 24, 48, c == 0)
    a("s_waitcnt vmcnt(0)")
    for nt in range(4):
        c = 32 + 4 * nt
        round4(a, c, 24)
        unpack2(a, 26, 27, R1 + 2 * nt); unpack2(a, 28, 29, R1 + 2 * nt + 1)
        for p in (0, 2): a(f"v_pk_add_f32 {vr(c+p,2)}, {vr(c+p,2)}, {vr(26+p,2)}")
        round4(a, c, 24)
        unpack2(a, 26, 27, R2 + 2 * nt); unpack2(a, 28, 29, R2 + 2 * nt + 1)
        for p in (0, 2): a(f"v_pk_add_f32 {vr(c+p,2)}, {vr(c+p,2)}, {vr(26+p,2)}")
        pack4(a, c, c)
        a(f"buffer_store_dwordx2 {vr(c,2)}, v21, s[{SRD_O}:{SRD_O+3}], 0 offen offset:{nt*32}")
    loader_begin(a)
    AV, BV = 16, 20
    a_voff256(a, AV, F * 2, 64, 16, 24)
    b_voff128(a, BV, 24, 128, 'std')
    a(f"s_lshl_b32 s13, s{S_W}, 12")
    a(f"s_lshl_b32 s14, s{S_W}, 10")
    a(f"s_mul_i32 s10, s{S_CT}, {W4C_STRIDE}")
    a(f"s_add_u32 s10, s10, s14")
    def issue(c):
        slot = (c % NS) * 32768
        for t4 in range(4):
            dma(a, vm, ('ch', c), AV + t4, SRD_A, 0, c * 256, (13, slot + t4 * 1024))
        for i in range(4 if c < 10 else 3):
            dma(a, vm, ('ch', c), BV, SRD_B, 's10', 0, (14, slot + 16384 + i * 4096))
            a(f"s_add_u32 s10, s10, {32*128}")
    loader_ring(a, vm, issue, NCH, NS, NI)
    loader_end(a, (P_WQKV, 512*3072, 12))

def loader_ring(a, vm, issue, NCH, NS, NI, hook=None):
    nxt = 0
    while nxt < min(NI, NCH): issue(nxt); nxt += 1
    for c in range(NCH):
        vm.wait(('ch', c)); a("s_barrier")
        k = 0
        while nxt < NCH and nxt <= c - 1 + NS and k < LOOKAHEAD_STEP:
            issue(nxt); nxt += 1; k += 1
            if nxt == NCH and hook: hook(vm)

LOOKAHEAD_STEP = 1

SLOT96 = 28672
def gemm96_compute(a, orient):
    NS, NCH = 5, 8
    setup_consts(a)
    a_rd128(a, 4, 24, 4096)
    tr_addrs64s(a, 160, 24, 4096)
    AB = Banked(a, 4, 2, [166, 168])
    BB = Banked(a, 160, 6, [170, 176])
    acc = lambda st, nt: 32 + 24 * st + 4 * nt
    def reads(c, j):
        slot = (c % NS) * SLOT96
        L = []
        for st in range(2):
            r, o = AB.get(slot + st * 2048)
            L.append(f"ds_read_b128 {vr(96 + j * 8 + st * 4, 4)}, v{r + j} offset:{o}")
        for nt in range(6):
            for hh in range(2):
                r, o = BB.get(slot + 16384 + j * 2048 + hh * 256)
                L.append(f"ds_read_b64_tr_b16 {vr(112 + j * 24 + nt * 4 + hh * 2, 2)}, v{r + nt} offset:{o}")
        return L
    def step(c, j, nxt):
        z = c == 0 and j == 0
        nxt = list(nxt); issued = 0
        def rd():
            nonlocal issued
            if nxt: a(nxt.pop(0)); issued += 1
        for nt in range(6):
            a(f"s_waitcnt lgkmcnt({10 - 2 * nt + issued})")
            for st in range(2):
                cc = vr(acc(st, nt), 4); w = vr(112 + j * 24 + nt * 4, 4); x = vr(96 + j * 8 + st * 4, 4)
                if orient[nt] == 'T': a(f"v_mfma_f32_16x16x32_bf16 {cc}, {w}, {x}, {'0' if z else cc}")
                else: a(f"v_mfma_f32_16x16x32_bf16 {cc}, {x}, {w}, {'0' if z else cc}")
                rd()
        for st in range(2):
            x = vr(96 + j * 8 + st * 4, 4); SU = vr(80 + 8 * st, 4); G = vr(84 + 8 * st, 4)
            a(f"v_mfma_f32_16x16x32_bf16 {SU}, v[8:11], {x}, {'0' if z else SU}")
            rd()
            a(f"v_mfma_f32_16x16x32_bf16 {G}, {x}, {x}, {'0' if z else G}")
            rd()
        assert not nxt
    for c in range(NCH):
        barrier(a, c in (NCH - 1,))
        if c == 0:
            for l in reads(0, 0): a(l)
        else:
            step(c - 1, 1, reads(c, 0))
        step(c, 0, reads(c, 1))
    step(NCH - 1, 1, [])
    stamp(a)
    return acc

def gemm96_loader(a, rs_a, rs_b, col_sgprs, hook=None):
    vm = VM(a)
    NS, NCH, NI = 5, 8, 2
    AV, BV = 16, 18
    a_voff128(a, AV, rs_a, 128, 32, 24)
    b_voff64(a, BV, 24, rs_b)
    a(f"s_lshl_b32 s13, s{S_W}, 12")
    a(f"s_lshl_b32 s14, s{S_W}, 10")
    a(f"s_mul_i32 s10, s{S_W}, {16*rs_b}")
    a(f"s_mov_b32 s11, {16*rs_a}")
    def issue(c):
        slot = (c % NS) * SLOT96
        for t in range(4):
            dma(a, vm, ('ch', c), AV + (t & 1), SRD_A, 's11' if t >= 2 else 0, c * 128, (13, slot + t * 1024))
        for j in range(3):
            a(f"s_add_u32 s6, s10, s{col_sgprs[j]}")
            dma(a, vm, ('ch', c), BV, SRD_B, 's6', 0, (14, slot + 16384 + j * 4096))
        a(f"s_add_u32 s10, s10, {64*rs_b}")
    loader_ring(a, vm, issue, NCH, NS, NI, hook)

def k5_ln_w3(a):
    vm = VM(a)
    prologue8(a, 240); decode_wg(a, 2)
    srd(a, SRD_A, P_WS, WS_X1, 0x200000)
    srd(a, SRD_B, P_W3, 0, 512 * F * 2)
    srd(a, SRD_O, P_WS, WS_H3, S * F * 2)
    srd(a, SRD_CS, P_WS, WS_CS, 0x5000)
    a(f"s_mul_i32 s12, s{S_CT}, 192")
    a(f"s_add_u32 s8, s12, 64")
    a(f"s_add_u32 s9, s12, 128")
    CSR = 184
    NST = 1 if EPI8 else 2
    def after(vm, sts):
        a("v_lshlrev_b32 v24, 4, v3")
        a(f"s_mul_i32 s6, s{S_CT}, 384")
        a(f"s_add_u32 s6, s6, {CS_W3}")
        for nt in range(6):
            a(f"buffer_load_dwordx4 {vr(CSR+4*nt,4)}, v24, s[{SRD_CS}:{SRD_CS+3}], s6 offen offset:{nt*64}")
            vm.issue('cs')
        for i, st in enumerate(sts):
            row_voff(a, 20 + i, 128, 32, F * 2, with_g=8, st=st)
            a(f"v_add_u32 v{20+i}, s12, v{20+i}")
    split(a)
    after(vm, (0,) if EPI8 else (0, 1))
    acc = gemm96_compute(a, 'TTTTTT')
    if EPI8:
        handover_put(a, [56 + 4 * i for i in range(6)] + [88, 92])
        a.label("L_epi")
    MB = (96, 100); RS = (98, 102)
    for st in range(NST):
        ln_finish(a, 80 + 8 * st, 84 + 8 * st, MB[st], RS[st], 24)
        a(f"v_mov_b32 v{RS[st]+1}, v{RS[st]}")
        a(f"v_sub_f32 v{MB[st]}, 0, v{MB[st]}")
        a(f"v_mov_b32 v{MB[st]+1}, v{MB[st]}")
    GC = 104
    a(f"v_mov_b32 v{GC}, {lit(GELU_C0)}"); a(f"v_mov_b32 v{GC+1}, {lit(GELU_C0)}")
    a(f"v_mov_b32 v{GC+2}, {lit(GELU_C1)}"); a(f"v_mov_b32 v{GC+3}, {lit(GELU_C1)}")
    vm.wait('cs')
    for np_ in range(3):
        if np_ == 1:
            a(f"s_cmp_eq_u32 s{S_CT}, 14")
            a("s_cbranch_scc1 L_fin")
        for st in range(NST):
            recs = []
            for q in range(2):
                nt = 2 * np_ + q
                r = Rec()
                c = acc(st, nt)
                fold4(r, c, CSR + 4 * nt, MB[st], RS[st])
                round4(r, c, 24 + 2 * q)
                gelu4(r, c, 108 + 4 * q, GC)
                pack4(r, c, c)
                r(f"buffer_store_dwordx2 {vr(c,2)}, v{20+st}, s[{SRD_O}:{SRD_O+3}], 0 offen offset:{nt*32}")
                recs.append(r)
            interleave(a, recs)
    loader_begin(a)
    def hook(vml):
        setup_consts(a)
        after(vml, (1,))
    gemm96_loader(a, 1024, F * 2, (12, 8, 9), hook if EPI8 else None)
    if EPI8:
        handover_get(a, [32 + 4 * i for i in range(6)] + [80, 84])
        a("s_branch L_epi")
    else:
        loader_end(a)

def k1_qkv(a):
    vm = VM(a)
    prologue8(a, 256); decode_wg(a, 2)
    srd_sel(a, SRD_A, P_X, 0, P_WS, WS_XN, 0x200000)
    srd(a, SRD_B, P_WS, WS_WQC, 512 * 1536 * 2)
    srd(a, SRD_O, P_WS, WS_PHIQ, 0x400000)
    srd(a, SRD_X1, P_WPHI, 0, 32 * 512)
    srd(a, SRD_CS, P_WS, WS_CS, 0x5000)
    a(f"s_mul_i32 s6, s{S_LAYER}, {KV_STRIDE}")
    a(f"s_add_u32 s6, s6, {WS_KV}")
    a(f"s_add_u32 s{SRD_X2}, s{P_WS}, s6")
    a(f"s_addc_u32 s{SRD_X2+1}, s{P_WS+1}, 0")
    a(f"s_mov_b32 s{SRD_X2+2}, {KV_STRIDE}")
    a(f"s_mov_b32 s{SRD_X2+3}, 0x00020000")
    a(f"s_lshl_b32 s12, s{S_CT}, 15")
    a(f"s_add_u32 s8, s12, {16*32768}")
    a(f"s_add_u32 s9, s12, {32*32768}")
    CSQ = 184
    WP = 204
    def after(vm, st):
        a(f"v_lshlrev_b32 v24, 7, v3")
        a(f"v_lshl_add_u32 v24, v2, 1, v24")
        a(f"s_lshl_b32 s6, s{S_CT}, 10")
        for h in range(2):
            for jj in range(4):
                a(f"buffer_load_ushort v{WP+4*h+jj}, v24, s[{SRD_X1}:{SRD_X1+3}], s6 offen offset:{h*512 + jj*32}")
                vm.issue('cs')
        a("v_lshlrev_b32 v24, 4, v3")
        a("v_lshlrev_b32 v25, 2, v2")
        a(f"s_lshl_b32 s6, s{S_CT}, 7")
        for nt in range(4):
            a(f"buffer_load_dwordx4 {vr(CSQ+4*nt,4)}, v24, s[{SRD_CS}:{SRD_CS+3}], s6 offen offset:{(nt//2)*2048 + (nt%2)*64}")
            vm.issue('cs')
        a(f"s_add_u32 s6, s6, 4096")
        for h in range(2):
            a(f"buffer_load_dword v{CSQ+16+h}, v25, s[{SRD_CS}:{SRD_CS+3}], s6 offen offset:{h*64}")
            vm.issue('cs')
        for i, s_ in enumerate(st):
            row_voff(a, 20 + i, 128, 32, 2048, with_g=8, st=s_)
            a(f"s_lshl_b32 s6, s{S_CT}, 7")
            a(f"v_add_u32 v{20+i}, s6, v{20+i}")
    NST = 1 if EPI8 else 2
    split(a)
    after(vm, (0,) if EPI8 else (0, 1))
    accf = gemm96_compute(a, 'TTTTNN')
    if EPI8:
        handover_put(a, [56 + 4 * i for i in range(6)] + [88, 92])
        a.label("L_epi")
    stamp(a)
    MB = (96, 100); RS = (98, 102)
    for st in range(NST):
        ln_finish(a, 80 + 8 * st, 84 + 8 * st, MB[st], RS[st], 24)
    RRS = (104, 112); RRM = (108, 116)
    a("v_lshlrev_b32 v23, 4, v3")
    for r in range(4): a(f"v_add_u32 v{24+r}, {4*r}, v23")
    for st in range(NST):
        for r in range(4):
            a(f"ds_bpermute_b32 v{RRS[st]+r}, v{24+r}, v{RS[st]}")
            a(f"ds_bpermute_b32 v{RRM[st]+r}, v{24+r}, v{MB[st]}")
    for st in range(NST):
        a(f"v_mov_b32 v{RS[st]+1}, v{RS[st]}")
        a(f"v_sub_f32 v{MB[st]}, 0, v{MB[st]}")
        a(f"v_mov_b32 v{MB[st]+1}, v{MB[st]}")
    vm.wait('cs')
    for h in range(2):
        for jj in range(2):
            a(f"v_lshl_or_b32 v{28+2*h+jj}, v{WP+4*h+2*jj+1}, 16, v{WP+4*h+2*jj}")
    a("s_waitcnt lgkmcnt(0)")
    KV = 120; Z = 136
    T = 212
    L2P = 202
    IDN = 22
    a(f"v_mov_b32 v{L2P}, {lit(LOG2E)}"); a(f"v_mov_b32 v{L2P+1}, {lit(LOG2E)}")
    a("v_mov_b32 v24, 0x3f80"); a("v_mov_b32 v25, 0x3f800000")
    for p in range(2):
        a(f"v_cndmask_b32 v{IDN+p}, 0, v24, s[{64+4*p}:{65+4*p}]")
        a(f"v_cndmask_b32 v26, 0, v25, s[{66+4*p}:{67+4*p}]")
        a(f"v_or_b32 v{IDN+p}, v{IDN+p}, v26")
    def red4(r, A, B, C, D, op, mid):
        r(f"v_permlane16_swap_b32 v{A}, v{B}")
        r(f"v_permlane16_swap_b32 v{C}, v{D}")
        r(f"{op} v{A}, v{A}, v{B}")
        r(f"{op} v{C}, v{C}, v{D}")
        r(f"v_permlane32_swap_b32 v{A}, v{C}")
        r(f"{op} v{A}, v{A}, v{C}")
        r(mid)
        r(f"v_mov_b32 v{C}, v{A}")
        r(f"v_permlane32_swap_b32 v{A}, v{C}")
        r(f"v_mov_b32 v{B}, v{A}")
        r(f"v_mov_b32 v{D}, v{C}")
        r(f"v_permlane16_swap_b32 v{A}, v{B}")
        r(f"v_permlane16_swap_b32 v{C}, v{D}")
    def stream(st, h, Bq):
        r = Rec()
        wph = vr(28 + 2 * h, 2)
        c = accf(st, h); ck = accf(st, 2 + h); cv = accf(st, 4 + h)
        P, PK, ENQ, ENK, VB = Bq + 4, Bq + 8, Bq + 12, Bq + 16, Bq + 20
        A, B, C, D = Bq + 22, Bq + 24, Bq + 26, Bq + 28
        fold4(r, c, CSQ + 4 * h, MB[st], RS[st])
        fold4(r, ck, CSQ + 8 + 4 * h, MB[st], RS[st])
        pack4(r, Bq, c); pack4(r, Bq + 2, ck)
        r(f"v_mfma_f32_16x16x16_bf16 {vr(P,4)}, {wph}, {vr(Bq,2)}, 0")
        r(f"v_mfma_f32_16x16x16_bf16 {vr(PK,4)}, {wph}, {vr(Bq+2,2)}, 0")
        sel = "op_sel_hi:[1,0,1]" if h == 0 else "op_sel:[0,1,0] op_sel_hi:[1,1,1]"
        for p in (0, 2):
            r(f"v_pk_fma_f32 {vr(cv+p,2)}, {vr(RRM[st]+p,2)}, {vr(CSQ+16,2)}, {vr(cv+p,2)} {sel} neg_lo:[1,0,0] neg_hi:[1,0,0]")
        for p in (0, 2):
            r(f"v_pk_mul_f32 {vr(cv+p,2)}, {vr(cv+p,2)}, {vr(RRS[st]+p,2)}")
        pack4(r, VB, cv)
        round4(r, P, Bq); round4(r, PK, Bq + 2)
        for X, mx, mn in ((P, A, B), (PK, C, D)):
            r(f"v_max3_f32 v{mx}, v{X}, v{X+1}, v{X+2}")
            r(f"v_max3_f32 v{mn}, -v{X}, -v{X+1}, -v{X+2}")
            r(f"v_max_f32 v{mx}, v{mx}, v{X+3}")
            r(f"v_max_f32_e64 v{mn}, v{mn}, -v{X+3}")
        red4(r, A, B, C, D, 'v_max_f32', f"v_mul_f32 v{A}, {lit(-LOG2E)}, v{A}")
        for X, EN, mx, mn in ((P, ENQ, A, B), (PK, ENK, C, D)):
            for p in (0, 2):
                r(f"v_pk_fma_f32 {vr(EN+p,2)}, {vr(X+p,2)}, {vr(L2P,2)}, {vr(mn,2)} op_sel_hi:[1,1,0] neg_lo:[0,1,0] neg_hi:[0,1,0]")
            for p in (0, 2):
                r(f"v_pk_fma_f32 {vr(X+p,2)}, {vr(X+p,2)}, {vr(L2P,2)}, {vr(mx,2)} op_sel_hi:[1,1,0]")
        for X in (P, ENQ, PK, ENK):
            for q in range(4): r(f"v_exp_f32 v{X+q}, v{X+q}")
        for X, d in ((P, A), (ENQ, B), (PK, C), (ENK, D)):
            r(f"v_pk_add_f32 {vr(d,2)}, {vr(X,2)}, {vr(X+2,2)}")
        for d in (A, B, C, D):
            r(f"v_add_f32 v{d}, v{d}, v{d+1}")
        red4(r, A, B, C, D, 'v_add_f32', f"v_rcp_f32 v{A}, v{A}")
        for X, d in ((PK, C), (ENK, D), (P, A), (ENQ, B)):
            for p in (0, 2):
                r(f"v_pk_mul_f32 {vr(X+p,2)}, {vr(X+p,2)}, {vr(d,2)} op_sel_hi:[1,0]")
        pack4(r, PK, PK); pack4(r, ENK, ENK)
        r(f"v_mfma_f32_16x16x16_bf16 {vr(Bq,4)}, {vr(PK,2)}, {vr(IDN,2)}, 0")
        r(f"v_mfma_f32_16x16x16_bf16 {vr(Bq+24,4)}, {vr(ENK,2)}, {vr(IDN,2)}, 0")
        pack4(r, P, P); pack4(r, ENQ, ENQ)
        r(f"buffer_store_dwordx2 {vr(P,2)}, v{20+st}, s[{SRD_O}:{SRD_O+3}], 0 offen offset:{h*64}")
        r(f"buffer_store_dwordx2 {vr(ENQ,2)}, v{20+st}, s[{SRD_O}:{SRD_O+3}], 0 offen offset:{h*64+32}")
        pack4(r, Bq, Bq); pack4(r, Bq + 24, Bq + 24)
        for sg, ph in ((0, Bq), (1, Bq + 24)):
            kv = KV + (h * 2 + sg) * 4; z = Z + (h * 2 + sg) * 4
            r(f"v_mfma_f32_16x16x16_bf16 {vr(kv,4)}, {vr(VB,2)}, {vr(ph,2)}, {'0' if st == 0 else vr(kv,4)}")
            r(f"v_mfma_f32_16x16x16_bf16 {vr(z,4)}, v[8:9], {vr(ph,2)}, {'0' if st == 0 else vr(z,4)}")
        return r
    stamp(a)
    for st in range(NST):
        interleave(a, [stream(st, 0, 212), stream(st, 1, 152)])
    RED = 3 * SLOT96; REDZ = RED + 32768
    a(f"s_lshl_b32 s6, s101, 12")
    a(f"v_lshlrev_b32 v4, 4, v1")
    a(f"v_add_u32 v4, s6, v4")
    a(f"s_lshl_b32 s6, s101, 10")
    a(f"v_lshlrev_b32 v5, 2, v1")
    a(f"v_add_u32 v5, s6, v5")
    a(f"v_add_u32 v4, {RED}, v4")
    a(f"v_add_u32 v5, {REDZ}, v5")
    for i in range(4):
        a(f"ds_write_b128 v4, {vr(KV+4*i,4)} offset:{i*1024}")
        a(f"ds_write_b32 v5, v{Z+4*i} offset:{i*256}")
    a("s_waitcnt lgkmcnt(0)")
    barrier(a)
    a("s_cmp_ge_u32 s101, 4")
    a("s_cbranch_scc1 L_end")
    a(f"v_lshlrev_b32 v4, 4, v0")
    a(f"v_add_u32 v4, {RED}, v4")
    NW = 8 if EPI8 else 4
    for w in range(NW):
        a(f"ds_read_b128 {vr(T+4*w,4)}, v4 offset:{w*4096}")
    a(f"v_lshrrev_b32 v5, 4, v0")
    a(f"v_lshlrev_b32 v5, 8, v5")
    a(f"v_lshl_add_u32 v5, v2, 2, v5")
    a(f"v_add_u32 v5, {REDZ}, v5")
    for w in range(NW):
        a(f"ds_read_b32 v{T+32+w}, v5 offset:{w*1024}")
    a(f"s_lshr_b32 s6, s{S_W}, 1")
    a(f"s_lshl_b32 s7, s{S_CT}, 1")
    a(f"s_add_u32 s6, s6, s7")
    a(f"s_lshl_b32 s6, s6, 11")
    a(f"s_and_b32 s7, s{S_W}, 1")
    a(f"s_lshl_b32 s7, s7, 6")
    a(f"s_add_u32 s6, s6, s7")
    a(f"v_lshlrev_b32 v6, 9, v3")
    a(f"v_lshl_add_u32 v6, v2, 2, v6")
    a(f"s_lshl_b32 s7, s{S_CT}, 8")
    a(f"s_add_u32 s7, s7, {KVZ_OFF}")
    a(f"v_lshlrev_b32 v7, 2, v0")
    a("s_waitcnt lgkmcnt(0)")
    for d in ((16, 8, 4) if EPI8 else (8, 4)):
        for w in range(0, d, 4):
            for p in (0, 2):
                a(f"v_pk_add_f32 {vr(T+w+p,2)}, {vr(T+w+p,2)}, {vr(T+w+d+p,2)}")
    for d in ((4, 2, 1) if EPI8 else (2, 1)):
        for w in range(d):
            a(f"v_add_f32 v{T+32+w}, v{T+32+w}, v{T+32+w+d}")
    for r in range(4):
        a(f"buffer_atomic_add_f32 v{T+r}, v6, s[{SRD_X2}:{SRD_X2+3}], s6 offen offset:{r*128}")
    a(f"s_cmp_lg_u32 s{S_W}, 0")
    a("s_cbranch_scc1 L_fin")
    a(f"buffer_atomic_add_f32 v{T+32}, v7, s[{SRD_X2}:{SRD_X2+3}], s7 offen")
    loader_begin(a)
    def hook(vml):
        setup_consts(a)
        after(vml, (1,))
    gemm96_loader(a, 1024, 64, (12, 8, 9), hook if EPI8 else None)
    if EPI8:
        handover_get(a, [32 + 4 * i for i in range(6)] + [80, 84])
        a("s_branch L_epi")
    else:
        loader_end(a)

def k2_attn_wo(a):
    vm = VM(a)
    prologue8(a, 256); decode_wg(a, 4)
    srd(a, SRD_A, P_WS, WS_PHIQ, 0x400000)
    srd(a, SRD_B, P_WO, 0, 512 * 1024)
    srd(a, SRD_O, P_WS, WS_XA, 0x200000)
    srd_sel(a, SRD_X1, P_X, 0, P_WS, WS_XN, 0x200000)
    a(f"s_mul_i32 s6, s{S_LAYER}, {KV_STRIDE}")
    a(f"s_add_u32 s6, s6, {WS_KV}")
    a(f"s_add_u32 s{SRD_X2}, s{P_WS}, s6")
    a(f"s_addc_u32 s{SRD_X2+1}, s{P_WS+1}, 0")
    a(f"s_mov_b32 s{SRD_X2+2}, {KV_STRIDE}")
    a(f"s_mov_b32 s{SRD_X2+3}, 0x00020000")
    NS, NCH, SL, NI = 5, 8, 24576, 2
    KVL = NS * SL; ZL = KVL + 32768
    KR = 160
    a(f"s_lshl_b32 s12, s{S_CT}, 7")
    split(a)
    a("v_lshlrev_b32 v4, 4, v0")
    for i in range(17):
        a(f"s_mov_b32 s6, {i*4096 if i < 16 else KVZ_OFF}")
        a(f"buffer_load_dwordx4 {vr(KR+4*i,4)}, v4, s[{SRD_X2}:{SRD_X2+3}], s6 offen")
    row_voff(a, 21, 64, 16, 1024, with_g=8)
    a(f"v_add_u32 v21, s12, v21")
    RX = 240
    for nt in range(4):
        a(f"buffer_load_dwordx2 {vr(RX+2*nt,2)}, v21, s[{SRD_X1}:{SRD_X1+3}], 0 offen offset:{nt*32}")
    a_rd256(a, 4, 24, 4096)
    tr_addrs128(a, 12, 24, 'k2')
    AB = Banked(a, 4, 4, [232])
    BB = Banked(a, 12, 4, [236])
    a("v_lshlrev_b32 v22, 3, v0")
    a(f"v_add_u32 v22, {KVL}, v22")
    for i in range(17):
        q = KR + 4 * i
        a(f"s_waitcnt vmcnt({4 + 16 - i})")
        pack4(a, q, q)
        a(f"ds_write_b64 v22, {vr(q,2)} offset:{i*2048}")
    a("v_lshlrev_b32 v22, 6, v2")
    a("v_lshl_add_u32 v22, v3, 4, v22")
    a(f"v_add_u32 v22, {KVL}, v22")
    a("v_lshlrev_b32 v23, 4, v3")
    a(f"v_add_u32 v23, {ZL}, v23")
    a("s_waitcnt lgkmcnt(0)")
    PHB = 80
    KVB = 96
    NUB = 128
    OBS = (64, 72)
    BFS = (160, 192)
    def wo_mfma(c):
        OB = OBS[c % 2]; BF = BFS[c % 2]
        for j in range(2):
            for nt in range(4):
                cc = vr(32 + 4 * nt, 4)
                a(f"v_mfma_f32_16x16x32_bf16 {cc}, {vr(BF + j*16 + nt*4, 4)}, {vr(OB+4*j,4)}, {'0' if c == 0 and j == 0 else cc}")
    for c in range(NCH):
        slot = (c % NS) * SL
        OB = OBS[c % 2]; BF = BFS[c % 2]
        barrier(a, c in (3, 4))
        ar, ao = AB.get(slot)
        br, bo = BB.get(slot + 16384)
        for hh in range(4):
            h = 4 * c + hh
            a(f"ds_read_b128 {vr(PHB+4*hh,4)}, v{ar+hh} offset:{ao}")
            a(f"ds_read_b128 {vr(KVB+8*hh,4)}, v22 offset:{h*1024}")
            a(f"ds_read_b128 {vr(KVB+8*hh+4,4)}, v23 offset:{h*64}")
        if c:
            a("s_waitcnt lgkmcnt(12)")
            wo_mfma(c - 1)
        if c == 3: stamp(a)
        for hh in range(4):
            a(f"s_waitcnt lgkmcnt({9-3*hh})")
            n = NUB + 8 * hh
            a(f"v_mfma_f32_16x16x32_bf16 {vr(n,4)}, {vr(KVB+8*hh,4)}, {vr(PHB+4*hh,4)}, 0")
            a(f"v_mfma_f32_16x16x32_bf16 {vr(n+4,4)}, {vr(KVB+8*hh+4,4)}, {vr(PHB+4*hh,4)}, 0")
        if c == 3: stamp(a)
        for j in range(2):
            for nt in range(4):
                for hh in range(2):
                    a(f"ds_read_b64_tr_b16 {vr(BF + j*16 + nt*4 + hh*2, 2)}, v{br+nt} offset:{bo + j*4096 + hh*2048}")
        if c == 3: stamp(a)
        recs = []
        for hh in range(4):
            r = Rec()
            n = NUB + 8 * hh; t = 24 + 2 * hh
            bf16r(r, n + 4, n + 4, t)
            r(f"v_add_f32 v{n+4}, {lit(1e-6)}, v{n+4}")
            bf16r(r, n + 4, n + 4, t)
            r(f"v_rcp_f32 v{n+4}, v{n+4}")
            round4(r, n, t)
            for p in (0, 2): r(f"v_pk_mul_f32 {vr(n+p,2)}, {vr(n+p,2)}, {vr(n+4,2)} op_sel_hi:[1,0]")
            pack4(r, OB + 2 * hh, n)
            recs.append(r)
        interleave(a, recs[:2]); interleave(a, recs[2:])
    a("s_waitcnt lgkmcnt(0)")
    wo_mfma(NCH - 1)
    a("s_waitcnt vmcnt(0)")
    for nt in range(4):
        c = 32 + 4 * nt
        round4(a, c, 24)
        unpack2(a, 26, 27, RX + 2 * nt); unpack2(a, 28, 29, RX + 2 * nt + 1)
        for p in (0, 2): a(f"v_pk_add_f32 {vr(c+p,2)}, {vr(c+p,2)}, {vr(26+p,2)}")
        pack4(a, c, c)
        a(f"buffer_store_dwordx2 {vr(c,2)}, v21, s[{SRD_O}:{SRD_O+3}], 0 offen offset:{nt*32}")
    loader_begin(a)
    AV, BV = 16, 20
    a_voff256(a, AV, 2048, 64, 16, 24)
    b_voff128(a, BV, 24, 1024, 'k2')
    a(f"s_lshl_b32 s13, s{S_W}, 12")
    a(f"s_lshl_b32 s14, s{S_W}, 10")
    a(f"s_mul_i32 s10, s{S_W}, {8*1024}")
    a(f"s_add_u32 s10, s10, s12")
    def issue(c):
        slot = (c % NS) * SL
        for t4 in range(4):
            dma(a, vm, ('ch', c), AV + t4, SRD_A, 0, c * 256, (13, slot + t4 * 1024))
        for i in range(2):
            dma(a, vm, ('ch', c), BV, SRD_B, 's10', 0, (14, slot + 16384 + i * 4096))
            a(f"s_add_u32 s10, s10, {32*1024}")
    loader_ring(a, vm, issue, NCH, NS, NI)
    loader_end(a, (P_W1, 512*1024, 4))

KERNELS = [
    ('k0', k0_init, K0_WGS, 8192, False),
    ('k1', k1_qkv, 256, 5 * SLOT96, True),
    ('k2', k2_attn_wo, 256, 5 * 24576 + 32768 + 2048, True),
    ('k3', k3_ln_w1, 256, 131072, False),
    ('k4', k4_shift_w2, 256, 131072, False),
    ('k5', k5_ln_w3, 240, 5 * SLOT96, False),
    ('k6', k6_w4, 256, 163840, True),
]

def build():
    header = open('cdna_kernels/' + NAME + '.s.ref').read().split('; Override launch')[0]
    launches = [('k0', None)]
    for L in range(2):
        for k in KERNELS[1:]:
            launches.append((k[0], L if k[4] else None))
    info = {k[0]: k for k in KERNELS}
    out = [header.rstrip('\n')]
    def lab(n, L): return f"hh_{n}{'' if L is None else '_l%d' % L}_kernel"
    for n, L in launches:
        k = info[n]
        out.append(f"; @launch kernel={lab(n, L)} grid=({k[2]},1,1) block=({256 if n == 'k0' else 512},1,1) lds={k[3]}")
    out.append('.amdgcn_target "amdgcn-amd-amdhsa--gfx950"')
    out.append('.text')
    descs = []
    for n, fn, nwg, lds, layered in KERNELS:
        a = Asm(); St.n = 0
        fn(a)
        a.label("L_fin")
        if gen.TIMING and n != 'k0':
            a("s_cmp_ge_u32 s101, 4")
            a("s_cbranch_scc1 L_end")
        dump_stamps(a, [k[0] for k in KERNELS].index(n))
        body = a.text().replace('L_', f'L{n}_')
        entries = [(lab(n, 0), 0), (lab(n, 1), 1)] if layered else [(lab(n, None), None)]
        if layered:
            for nm, L in entries:
                out.append(f".globl {nm}\n.p2align 8\n.type {nm},@function\n{nm}:")
                out.append(f"  s_mov_b32 s{S_LAYER}, {L}\n  s_branch L{n}_body")
            out.append(f".p2align 8\nL{n}_body:")
        else:
            nm = entries[0][0]
            out.append(f".globl {nm}\n.p2align 8\n.type {nm},@function\n{nm}:")
        out.append(body.rstrip('\n'))
        out.append(f"L{n}_end:\n  s_endpgm")
        for nm, L in entries: descs.append(nm)
    out.append('.section .rodata,"a"')
    for nm in descs:
        out.append(f""".p2align 6
.amdhsa_kernel {nm}
  .amdhsa_next_free_vgpr 256
  .amdhsa_next_free_sgpr 102
  .amdhsa_accum_offset 256
  .amdhsa_group_segment_fixed_size 0
  .amdhsa_kernarg_size 96
  .amdhsa_user_sgpr_count 2
  .amdhsa_user_sgpr_kernarg_segment_ptr 1
  .amdhsa_system_sgpr_workgroup_id_x 1
.end_amdhsa_kernel""")
    return '\n'.join(out) + '\n'

if __name__ == '__main__':
    if len(sys.argv) > 2 and sys.argv[2] == 'timing': gen.TIMING = True
    txt = build()
    dst = sys.argv[1] if len(sys.argv) > 1 else 'cdna_kernels/' + NAME + '.s'
    open(dst, 'w').write(txt)
    print('wrote', dst, len(txt), 'bytes')
```

```python
import sys
import gen
from gen import (Asm, vr, sr, NAME, S, D, F, H, WS_XA, WS_XB, WS_H, WS_X1, WS_XN, WS_H3, WS_PHIQ, WS_KV,
                 KV_STRIDE, KVZ_OFF, P_X, P_WQKV, P_WPHI, P_WO, P_BX, P_W1, P_W2, P_W3, P_W4, P_OUT, P_DBG, P_WS,
                 SRD_A, SRD_B, SRD_O, SRD_X1, SRD_X2, SRD_X3, S_RT, S_CT, S_W, S_LAYER, LOG2E, lit, prologue, srd,
                 srd_sel, decode_wg, tr_addrs128, tr_addrs64, setup_consts, xlane_sum, bf16r, GELU_C0, GELU_C1,
                 unpack2, row_voff, dpp_allreduce, stamp, dump_stamps, St)

WS_CS = 0x1480000
CS_QKV, CS_W1, CS_W3 = 0x0, 0x2000, 0x3000
SRD_CS = 96

class VM:
    def __init__(self, a): self.a = a; self.q = []
    def issue(self, tag): self.q.append(tag)
    def wait(self, tag):
        idx = [i for i, t in enumerate(self.q) if t == tag]
        if not idx: return
        idx = idx[-1]
        n = len(self.q) - 1 - idx
        self.a(f"s_waitcnt vmcnt({min(n, 63)})")
        self.q = self.q[idx + 1:]
    def wait_all(self):
        self.a("s_waitcnt vmcnt(0)"); self.q = []

def prologue8(a, nwg):
    prologue(a, nwg)
    a(f"s_mov_b32 s101, s{S_W}")
    a(f"s_and_b32 s{S_W}, s{S_W}, 3")
def split(a):
    a("s_cmp_ge_u32 s101, 4")
    a("s_cbranch_scc1 L_loader")
def loader_begin(a):
    a("s_branch L_fin")
    a.label("L_loader")
PREFETCH = False
EPI8 = False
def loader_end(a, pf=None):
    if pf and PREFETCH:
        ptr, nbytes, n = pf
        srd(a, SRD_X3, ptr, 0, nbytes)
        a("s_lshr_b32 s6, s2, 3")
        a(f"s_lshl_b32 s6, s6, 2")
        a(f"s_add_u32 s6, s6, s{S_W}")
        a(f"s_mul_i32 s6, s6, {n*1024}")
        a("v_lshlrev_b32 v4, 4, v1")
        for i in range(n):
            if i and i % 4 == 0: a("s_add_u32 s6, s6, 4096")
            a(f"buffer_load_dwordx4 {vr(32+4*i,4)}, v4, s[{SRD_X3}:{SRD_X3+3}], s6 offen offset:{(i%4)*1024}")
        a("s_waitcnt vmcnt(0)")
    a("s_branch L_end")

class Rec:
    def __init__(self): self.l = []
    def __call__(self, text):
        for line in text.strip('\n').split('\n'):
            line = line.strip()
            if line: self.l.append(line)
def interleave(a, recs):
    n = max(len(r.l) for r in recs)
    for i in range(n):
        for r in recs:
            if i < len(r.l): a(r.l[i])

def handover_put(a, regs):
    a(f"s_lshl_b32 s6, s{S_W}, 13")
    a("v_lshlrev_b32 v24, 4, v1")
    a("v_add_u32 v24, s6, v24")
    for i, r in enumerate(regs):
        a(f"ds_write_b128 v24, {vr(r,4)} offset:{i*1024}")
    a("s_waitcnt lgkmcnt(0)")
    a("s_barrier")
def handover_get(a, regs):
    a(f"s_lshl_b32 s6, s{S_W}, 13")
    a("v_lshlrev_b32 v24, 4, v1")
    a("v_add_u32 v24, s6, v24")
    a("s_barrier")
    for i, r in enumerate(regs):
        a(f"ds_read_b128 {vr(r,4)}, v24 offset:{i*1024}")
    a("s_waitcnt vmcnt(0) lgkmcnt(0)")
    a("s_nop 7")

def barrier(a, st=True):
    if st: stamp(a)
    a("s_barrier")
    if st: stamp(a)

def a_voff256(a, dst, rs, rows_per_wg, rows_per_wave, t):
    a(f"s_mul_i32 s6, s{S_RT}, {rows_per_wg}")
    a(f"s_mul_i32 s7, s{S_W}, {rows_per_wave}")
    a(f"s_add_u32 s6, s6, s7")
    a(f"s_mov_b32 s7, {rs}")
    for t4 in range(4):
        a(f"v_add_u32 v{t}, {4*t4}, v3")
        a(f"v_xor_b32 v{t+1}, v{t}, v2")
        a(f"v_add_u32 v{t}, s6, v{t}")
        a(f"v_mul_lo_u32 v{t}, v{t}, s7")
        a(f"v_lshl_add_u32 v{dst+t4}, v{t+1}, 4, v{t}")

def a_voff128(a, dst, rs, rows_per_wg, rows_per_wave, t):
    a(f"s_mul_i32 s6, s{S_RT}, {rows_per_wg}")
    a(f"s_mul_i32 s7, s{S_W}, {rows_per_wave}")
    a(f"s_add_u32 s6, s6, s7")
    a(f"s_mov_b32 s7, {rs}")
    a(f"v_lshrrev_b32 v{t+2}, 3, v1")
    a(f"v_and_b32 v{t+3}, 7, v1")
    for t2 in range(2):
        a(f"v_add_u32 v{t}, {4*t2}, v3")
        a(f"v_xor_b32 v{t+1}, v{t}, v{t+3}")
        a(f"v_add_u32 v{t}, {8*t2}, v{t+2}")
        a(f"v_add_u32 v{t}, s6, v{t}")
        a(f"v_mul_lo_u32 v{t}, v{t}, s7")
        a(f"v_lshl_add_u32 v{dst+t2}, v{t+1}, 4, v{t}")

def a_rd256(a, dst, t, wave_bytes):
    a(f"v_xor_b32 v{t}, v3, v2")
    a(f"v_lshlrev_b32 v{t}, 4, v{t}")
    a(f"v_lshl_add_u32 v{t}, v2, 8, v{t}")
    a(f"s_mul_i32 s6, s{S_W}, {wave_bytes}")
    for j in range(4):
        a(f"v_xor_b32 v{dst+j}, {j << 6}, v{t}")
        a(f"v_add_u32 v{dst+j}, s6, v{dst+j}")

def a_rd128(a, dst, t, wave_bytes):
    a(f"v_lshrrev_b32 v{t}, 1, v2")
    a(f"v_xor_b32 v{t}, v3, v{t}")
    a(f"v_lshlrev_b32 v{t}, 4, v{t}")
    a(f"v_lshl_add_u32 v{t}, v2, 7, v{t}")
    a(f"s_mul_i32 s6, s{S_W}, {wave_bytes}")
    for j in range(2):
        a(f"v_xor_b32 v{dst+j}, {j << 6}, v{t}")
        a(f"v_add_u32 v{dst+j}, s6, v{dst+j}")

def dma(a, vm, tag, voff, srdx, soff, imm, m0_sgpr_expr):
    sg, c = m0_sgpr_expr
    a(f"s_add_u32 m0, s{sg}, {c}")
    if imm:
        if soff == 0: a(f"s_mov_b32 s7, {imm}")
        else: a(f"s_add_u32 s7, {soff}, {imm}")
        soff = 's7'
    else:
        a("s_nop 0")
    a(f"buffer_load_dwordx4 v{voff}, s[{srdx}:{srdx+3}], {soff} offen lds")
    vm.issue(tag)

def b_voff128(a, voff, t, rs, swz):
    a(f"v_lshrrev_b32 v{t}, 3, v1")
    a(f"v_and_b32 v{voff}, 7, v1")
    if swz == 'std':
        a(f"v_and_b32 v{t+1}, 2, v{t}")
        a(f"s_and_b32 s6, s{S_W}, 1")
        a(f"s_lshl_b32 s6, s6, 2")
        a(f"v_or_b32 v{t+1}, s6, v{t+1}")
    else:
        a(f"v_and_b32 v{t+1}, 6, v{t}")
    a(f"v_xor_b32 v{voff}, v{voff}, v{t+1}")
    a(f"v_lshlrev_b32 v{voff}, 4, v{voff}")
    a(f"s_mov_b32 s6, {rs}")
    a(f"v_mul_lo_u32 v{t}, v{t}, s6")
    a(f"v_add_u32 v{voff}, v{voff}, v{t}")

def b_voff64(a, voff, t, rs):
    a(f"v_lshrrev_b32 v{t}, 2, v1")
    a(f"v_and_b32 v{voff}, 3, v1")
    a(f"v_lshrrev_b32 v{t+1}, 5, v1")
    a(f"v_lshlrev_b32 v{t+1}, 1, v{t+1}")
    a(f"v_xor_b32 v{voff}, v{voff}, v{t+1}")
    a(f"v_lshlrev_b32 v{voff}, 4, v{voff}")
    a(f"s_mov_b32 s6, {rs}")
    a(f"v_mul_lo_u32 v{t}, v{t}, s6")
    a(f"v_add_u32 v{voff}, v{voff}, v{t}")

def tr_addrs64s(a, dst, vt, sub_bytes):
    a(f"v_lshrrev_b32 v{vt}, 2, v2")
    a(f"v_and_b32 v{vt+1}, 3, v2")
    a(f"v_lshl_add_u32 v{vt+2}, v3, 3, v{vt}")
    a(f"v_and_b32 v{vt+3}, 1, v3")
    a(f"v_lshlrev_b32 v{vt+3}, 1, v{vt+3}")
    a(f"v_lshlrev_b32 v{vt+2}, 6, v{vt+2}")
    a(f"v_and_b32 v{vt+4}, 1, v{vt+1}")
    a(f"v_lshl_add_u32 v{vt+2}, v{vt+4}, 3, v{vt+2}")
    a(f"v_lshrrev_b32 v{vt+1}, 1, v{vt+1}")
    for n2 in range(2):
        a(f"v_or_b32 v{vt+4}, {2*n2}, v{vt+1}")
        a(f"v_xor_b32 v{vt+4}, v{vt+4}, v{vt+3}")
        a(f"v_lshl_add_u32 v{dst+n2}, v{vt+4}, 4, v{vt+2}")
    for j in (1, 2):
        for n2 in range(2):
            a(f"v_add_u32 v{dst+2*j+n2}, {j*sub_bytes}, v{dst+n2}")

def ln_finish(a, SUM, G, mb, rs, t):
    g = t; t0 = t + 1; mean = t + 3
    a(f"v_cndmask_b32 v{g}, 0, v{G}, s[64:65]")
    for r in range(1, 4):
        a(f"v_cndmask_b32 v{g}, v{g}, v{G+r}, s[{64+2*r}:{65+2*r}]")
    a(f"v_mul_f32 v{mean}, {lit(1.0/512)}, v{SUM}")
    xlane_sum(a, g, t0)
    bf16r(a, mb, mean, t0)
    a(f"v_mul_f32 v{g}, {lit(1.0/512)}, v{g}")
    a(f"v_fma_f32 v{g}, -v{mean}, v{mean}, v{g}")
    a(f"v_max_f32 v{g}, 0, v{g}")
    bf16r(a, g, g, t0)
    a(f"v_add_f32 v{g}, {lit(1e-5)}, v{g}")
    bf16r(a, g, g, t0)
    a(f"v_sqrt_f32 v{g}, v{g}")
    bf16r(a, g, g, t0)
    a(f"v_rcp_f32 v{rs}, v{g}")

def gelu4(a, c, t, vc0):
    for p in (0, 2):
        a(f"v_pk_mul_f32 {vr(t+p,2)}, {vr(c+p,2)}, {vr(c+p,2)}")
    for p in (0, 2):
        a(f"v_pk_fma_f32 {vr(t+p,2)}, {vr(t+p,2)}, {vr(vc0+2,2)}, {vr(vc0,2)}")
    for p in (0, 2):
        a(f"v_pk_mul_f32 {vr(t+p,2)}, {vr(t+p,2)}, {vr(c+p,2)}")
    for r in range(4): a(f"v_exp_f32 v{t+r}, v{t+r}")
    for p in (0, 2):
        a(f"v_pk_add_f32 {vr(t+p,2)}, {vr(t+p,2)}, 1.0 op_sel_hi:[1,0]")
    for r in range(4): a(f"v_rcp_f32 v{t+r}, v{t+r}")
    for p in (0, 2):
        a(f"v_pk_mul_f32 {vr(c+p,2)}, {vr(c+p,2)}, {vr(t+p,2)}")

def fold4(a, c, cs, nmb2, rs2):
    for p in (0, 2):
        a(f"v_pk_fma_f32 {vr(c+p,2)}, {vr(cs+p,2)}, {vr(nmb2,2)}, {vr(c+p,2)}")
    for p in (0, 2):
        a(f"v_pk_mul_f32 {vr(c+p,2)}, {vr(c+p,2)}, {vr(rs2,2)}")

def round4(a, c, t):
    a(f"v_cvt_pk_bf16_f32 v{t}, v{c}, v{c+1}")
    a(f"v_cvt_pk_bf16_f32 v{t+1}, v{c+2}, v{c+3}")
    unpack2(a, c, c + 1, t); unpack2(a, c + 2, c + 3, t + 1)

def pack4(a, dst, c):
    a(f"v_cvt_pk_bf16_f32 v{dst}, v{c}, v{c+1}")
    a(f"v_cvt_pk_bf16_f32 v{dst+1}, v{c+2}, v{c+3}")

WS_WQC, WS_W2C, WS_W4C = 0x1500000, 0x1680000, 0x1900000
W4C_STRIDE = 1536 * 128
K0_WGS = 86
def k0_init(a):
    prologue(a, K0_WGS)
    srd(a, SRD_O, P_WS, WS_KV, 2 * KV_STRIDE)
    srd(a, SRD_CS, P_WS, WS_CS, 0x5000)
    a(f"""
    s_cmp_ge_u32 s2, 34
    s_cbranch_scc1 L_nozero
    s_cmp_ge_u32 s2, 17
    s_cselect_b32 s6, {KV_STRIDE - 17 * 4096}, 0
    s_lshl_b32 s7, s2, 12
    s_add_u32 s6, s6, s7
    v_lshlrev_b32 v4, 4, v0
    v_mov_b32 v8, 0
    v_mov_b32 v9, 0
    v_mov_b32 v10, 0
    v_mov_b32 v11, 0
    buffer_store_dwordx4 v[8:11], v4, s[{SRD_O}:{SRD_O+3}], s6 offen
    """)
    a.label("L_nozero")
    a(f"""
    s_mov_b32 s{SRD_B}, s{P_WQKV}
    s_mov_b32 s{SRD_B+1}, s{P_WQKV+1}
    s_mov_b32 s{SRD_B+2}, {512*3072}
    s_mov_b32 s{SRD_B+3}, 0x00020000
    s_mov_b32 s8, 3072
    s_mov_b32 s9, s2
    s_mov_b32 s10, {CS_QKV}
    s_mov_b32 s13, 0
    s_lshl_b32 s14, s2, 16
    s_add_u32 s14, s14, {WS_WQC}
    s_mov_b32 s15, 1
    s_cmp_lt_u32 s2, 24
    s_cbranch_scc1 L_sel
    s_mov_b32 s15, 0
    s_mov_b32 s{SRD_B}, s{P_W1}
    s_mov_b32 s{SRD_B+1}, s{P_W1+1}
    s_mov_b32 s{SRD_B+2}, {512*1024}
    s_mov_b32 s8, 1024
    s_sub_u32 s9, s2, 24
    s_mov_b32 s10, {CS_W1}
    s_cmp_lt_u32 s2, 32
    s_cbranch_scc1 L_sel
    s_mov_b32 s{SRD_B}, s{P_W3}
    s_mov_b32 s{SRD_B+1}, s{P_W3+1}
    s_mov_b32 s{SRD_B+2}, {512*F*2}
    s_mov_b32 s8, {F*2}
    s_sub_u32 s9, s2, 32
    s_mov_b32 s10, {CS_W3}
    s_cmp_lt_u32 s2, 54
    s_cbranch_scc1 L_sel
    s_mov_b32 s15, 2
    s_mov_b32 s{SRD_B}, s{P_W2}
    s_mov_b32 s{SRD_B+1}, s{P_W2+1}
    s_mov_b32 s{SRD_B+2}, {512*1024}
    s_mov_b32 s8, 1024
    s_sub_u32 s9, s2, 54
    s_lshl_b32 s14, s9, 16
    s_add_u32 s14, s14, {WS_W2C}
    s_cmp_lt_u32 s2, 62
    s_cbranch_scc1 L_sel
    s_mov_b32 s{SRD_B}, s{P_W4}
    s_mov_b32 s{SRD_B+1}, s{P_W4+1}
    s_mov_b32 s{SRD_B+2}, {F*1024}
    s_sub_u32 s9, s2, 62
    s_lshr_b32 s6, s9, 3
    s_and_b32 s9, s9, 7
    s_lshl_b32 s13, s6, 19
    s_mul_i32 s14, s9, {W4C_STRIDE}
    s_lshl_b32 s6, s6, 16
    s_add_u32 s14, s14, s6
    s_add_u32 s14, s14, {WS_W4C}
    """)
    a.label("L_sel")
    a(f"""
    v_lshrrev_b32 v4, 3, v0
    v_and_b32 v5, 7, v0
    s_lshl_b32 s11, s8, 4
    v_mul_lo_u32 v6, v4, s11
    v_lshl_add_u32 v6, v5, 4, v6
    s_lshl_b32 s12, s9, 7
    s_add_u32 s12, s12, s13
    """)
    for i in range(16):
        a(f"buffer_load_dwordx4 {vr(32+4*i,4)}, v6, s[{SRD_B}:{SRD_B+3}], s12 offen")
        if i < 15: a("s_add_u32 s12, s12, s8")
    a(f"""
    s_add_u32 s{SRD_X1}, s{P_WS}, s14
    s_addc_u32 s{SRD_X1+1}, s{P_WS+1}, 0
    s_mov_b32 s{SRD_X1+2}, 0x10000
    s_mov_b32 s{SRD_X1+3}, 0x00020000
    v_lshlrev_b32 v7, 11, v4
    v_lshl_add_u32 v7, v5, 4, v7
    v_lshrrev_b32 v12, 2, v5
    v_lshlrev_b32 v12, 15, v12
    v_lshl_add_u32 v12, v4, 10, v12
    v_and_b32 v13, 3, v5
    v_lshl_add_u32 v12, v13, 4, v12
    s_cmp_lg_u32 s15, 2
    s_cbranch_scc1 L_sum
    """)
    for i in range(16):
        a(f"s_waitcnt vmcnt({15})")
        a(f"buffer_store_dwordx4 {vr(32+4*i,4)}, v7, s[{SRD_X1}:{SRD_X1+3}], 0 offen offset:{i*128}")
    a("s_branch L_fin")
    a.label("L_sum")
    for r in range(8): a(f"v_mov_b32 v{16+r}, 0")
    for i in range(16):
        a(f"s_waitcnt vmcnt({15-i})")
        for p in range(4):
            unpack2(a, 24, 25, 32 + 4 * i + p)
            a(f"v_pk_add_f32 {vr(16+2*p,2)}, {vr(16+2*p,2)}, v[24:25]")
    a("s_cmp_lg_u32 s15, 1")
    a("s_cbranch_scc1 L_nocopy")
    for i in range(16):
        a(f"buffer_store_dwordx4 {vr(32+4*i,4)}, v12, s[{SRD_X1}:{SRD_X1+3}], 0 offen offset:{i*64}")
    a.label("L_nocopy")
    a("v_lshlrev_b32 v6, 5, v0")
    a("ds_write_b128 v6, v[16:19]")
    a("ds_write_b128 v6, v[20:23] offset:16")
    a("s_waitcnt lgkmcnt(0)")
    a("s_barrier")
    a(f"s_cmp_lg_u32 s{S_W}, 0")
    a("s_cbranch_scc1 L_fin")
    a("v_lshlrev_b32 v6, 2, v1")
    for i in range(32):
        a(f"ds_read_b32 v{100+i}, v6 offset:{i*256}")
    a("s_waitcnt lgkmcnt(0)")
    for st in (16, 8, 4, 2, 1):
        for i in range(st):
            a(f"v_add_f32 v{100+i}, v{100+i}, v{100+st+i}")
    a("s_lshl_b32 s12, s9, 8")
    a("s_add_u32 s12, s12, s10")
    a(f"buffer_store_dword v100, v6, s[{SRD_CS}:{SRD_CS+3}], s12 offen")

def gemm64_chunk(a, steps, ard, brd, aslot, bslot, acc, abuf, bbuf, first, xreg=None, stats=None):
    def lds_off(base_reg, off):
        return base_reg, off
    def reads(j):
        if xreg is None:
            a(f"ds_read_b128 {vr(abuf + (j % 2) * 4, 4)}, v{ard + j} offset:{aslot}")
        for nt in range(4):
            for hh in range(2):
                a(f"ds_read_b64_tr_b16 {vr(bbuf + (j % 2) * 16 + nt * 4 + hh * 2, 2)}, v{brd + nt} offset:{bslot + j * 4096 + hh * 512}")
    per = 8 + (1 if xreg is None else 0)
    reads(0)
    for j in range(steps):
        if j + 1 < steps:
            reads(j + 1); a(f"s_waitcnt lgkmcnt({per})")
        else:
            a("s_waitcnt lgkmcnt(0)")
        x = vr(abuf + (j % 2) * 4, 4) if xreg is None else vr(xreg(j), 4)
        z = first and j == 0
        for nt in range(4):
            c = vr(acc + 4 * nt, 4)
            a(f"v_mfma_f32_16x16x32_bf16 {c}, {vr(bbuf + (j % 2) * 16 + nt * 4, 4)}, {x}, {'0' if z else c}")
        if stats is not None:
            SU, G = stats
            a(f"v_mfma_f32_16x16x32_bf16 {vr(SU,4)}, v[8:11], {x}, {'0' if z else vr(SU,4)}")
            a(f"v_mfma_f32_16x16x32_bf16 {vr(G,4)}, {x}, {x}, {'0' if z else vr(G,4)}")

def gemm64_loop(a, chunks, acc, abuf, bbuf, stats=None, stamps=(), tail=None):
    steps = [(c, j) for c, ch in enumerate(chunks) for j in range(ch[0])]
    def reads(n):
        c, j = steps[n]; _, ar, ao, br, bo = chunks[c]; p = n % 2
        L = [f"ds_read_b128 {vr(abuf + p * 4, 4)}, v{ar + j} offset:{ao}"]
        for nt in range(4):
            for hh in range(2):
                L.append(f"ds_read_b64_tr_b16 {vr(bbuf + p * 16 + nt * 4 + hh * 2, 2)}, v{br + nt} offset:{bo + j * 4096 + hh * 512}")
        return L
    def step(n, nxt):
        z = n == 0; p = n % 2
        nxt = list(nxt); issued = 0
        def rd(k):
            nonlocal issued
            for _ in range(k):
                if nxt: a(nxt.pop(0)); issued += 1
        x = vr(abuf + p * 4, 4)
        per = (2, 2, 2, 1, 1, 1) if stats is not None else (3, 2, 2, 2)
        for nt in range(4):
            a(f"s_waitcnt lgkmcnt({6 - 2 * nt + issued})")
            c = vr(acc + 4 * nt, 4)
            a(f"v_mfma_f32_16x16x32_bf16 {c}, {vr(bbuf + p * 16 + nt * 4, 4)}, {x}, {'0' if z else c}")
            rd(per[nt])
        if stats is not None:
            SU, G = stats
            a(f"v_mfma_f32_16x16x32_bf16 {vr(SU,4)}, v[8:11], {x}, {'0' if z else vr(SU,4)}")
            rd(per[4])
            a(f"v_mfma_f32_16x16x32_bf16 {vr(G,4)}, {x}, {x}, {'0' if z else vr(G,4)}")
            rd(per[5])
        assert not nxt
    for n, (c, j) in enumerate(steps):
        if j == 0:
            barrier(a, c in stamps)
        if n == 0:
            for l in reads(0): a(l)
        else:
            step(n - 1, reads(n))
    step(len(steps) - 1, [])

class Banked:
    def __init__(self, a, base, n, extra):
        self.sets = [base] + extra
        for k, e in enumerate(extra):
            for i in range(n):
                a(f"v_add_u32 v{e+i}, {(k+1) << 16}, v{base+i}")
    def get(self, off):
        return self.sets[off >> 16], off & 0xffff

def k4_shift_w2(a):
    vm = VM(a)
    prologue8(a, 256); decode_wg(a, 4)
    srd(a, SRD_A, P_WS, WS_H, 0x200000)
    srd(a, SRD_B, P_WS, WS_W2C, 512 * 1024)
    srd(a, SRD_O, P_WS, WS_X1, 0x200000)
    srd(a, SRD_X1, P_WS, WS_XB, 0x200000)
    a(f"s_lshl_b32 s12, s{S_CT}, 7")
    split(a)
    row_voff(a, 21, 64, 16, 1024, with_g=8)
    a(f"v_add_u32 v21, s12, v21")
    XB = 80
    for nt in range(4):
        a(f"buffer_load_dwordx2 {vr(XB+2*nt,2)}, v21, s[{SRD_X1}:{SRD_X1+3}], 0 offen offset:{nt*32}")
    a_rd256(a, 4, 24, 4096)
    tr_addrs128(a, 12, 24, 'std')
    for nt in range(4): a(f"v_add_u32 v{12+nt}, 0x10000, v{12+nt}")
    gemm64_loop(a, [(4, 4, c * 16384, 12, c * 16384) for c in range(4)], 32, 24, 48, stamps=(0, 1, 2, 3))
    stamp(a)
    a("s_waitcnt vmcnt(0)")
    for nt in range(4):
        c = 32 + 4 * nt
        round4(a, c, 24)
        unpack2(a, 26, 27, XB + 2 * nt); unpack2(a, 28, 29, XB + 2 * nt + 1)
        for p in (0, 2): a(f"v_pk_add_f32 {vr(c+p,2)}, {vr(c+p,2)}, {vr(26+p,2)}")
        pack4(a, c, c)
        a(f"buffer_store_dwordx2 {vr(c,2)}, v21, s[{SRD_O}:{SRD_O+3}], 0 offen offset:{nt*32}")
    loader_begin(a)
    AV, BV = 16, 20
    a_voff256(a, AV, 1024, 64, 16, 24)
    b_voff128(a, BV, 24, 128, 'std')
    a(f"s_lshl_b32 s13, s{S_W}, 12")
    a(f"s_lshl_b32 s14, s{S_W}, 10")
    a(f"s_lshl_b32 s10, s{S_CT}, 16")
    a(f"s_add_u32 s10, s10, s14")
    def issue(c):
        sh = (-1, 1, -2, 2)[c]
        for t4 in range(4):
            a(f"v_add_u32 v{88+t4}, {(sh * 1024 + c * 256) & 0xffffffff}, v{AV+t4}")
        for t4 in range(4):
            dma(a, vm, ('ch', c), 88 + t4, SRD_A, 0, 0, (13, c * 16384 + t4 * 1024))
        for i in range(4):
            dma(a, vm, ('ch', c), BV, SRD_B, 's10', 0, (14, 65536 + c * 16384 + i * 4096))
            a(f"s_add_u32 s10, s10, {32*128}")
    issue(0); issue(1)
    for c in range(4):
        vm.wait(('ch', c)); a("s_barrier")
        if c + 2 < 4: issue(c + 2)
    loader_end(a, (P_W3, 512*F*2, 11))

def pair_exchange(a, hf, send, recv, base, t):
    n = len(send)
    a(f"s_mul_i32 s6, s{S_W}, {2*n*1024}")
    a(f"v_lshlrev_b32 v{t}, 4, v1")
    a(f"v_add_u32 v{t}, s6, v{t}")
    if base: a(f"v_add_u32 v{t}, {base}, v{t}")
    for i, r in enumerate(send):
        a(f"ds_write_b128 v{t}, {vr(r,4)} offset:{(hf*n + i)*1024}")
    a("s_waitcnt lgkmcnt(0)")
    a("s_barrier")
    for i, r in enumerate(recv):
        a(f"ds_read_b128 {vr(r,4)}, v{t} offset:{((1-hf)*n + i)*1024}")

def ln_stats(a, SUM, G, mean, var, t):
    t0 = t
    a(f"v_cndmask_b32 v{var}, 0, v{G}, s[64:65]")
    for r in range(1, 4):
        a(f"v_cndmask_b32 v{var}, v{var}, v{G+r}, s[{64+2*r}:{65+2*r}]")
    a(f"v_mul_f32 v{mean}, {lit(1.0/512)}, v{SUM}")
    xlane_sum(a, var, t0)
    a(f"v_mul_f32 v{var}, {lit(1.0/512)}, v{var}")
    a(f"v_fma_f32 v{var}, -v{mean}, v{mean}, v{var}")
    a(f"v_max_f32 v{var}, 0, v{var}")
def ln_scale(a, var, rs, t):
    bf16r(a, rs, var, t)
    a(f"v_add_f32 v{rs}, {lit(1e-5)}, v{rs}")
    bf16r(a, rs, rs, t)
    a(f"v_sqrt_f32 v{rs}, v{rs}")
    bf16r(a, rs, rs, t)
    a(f"v_rcp_f32 v{rs}, v{rs}")

def k3_ln_w1(a):
    vm = VM(a)
    prologue8(a, 256); decode_wg(a, 4)
    srd(a, SRD_A, P_WS, WS_XA, 0x200000)
    srd(a, SRD_B, P_W1, 0, 512 * 1024)
    srd(a, SRD_O, P_WS, WS_H, 0x200000)
    srd(a, SRD_X1, P_WS, WS_XB, 0x200000)
    srd(a, SRD_CS, P_WS, WS_CS, 0x5000)
    a(f"s_lshl_b32 s12, s{S_CT}, 7")
    split(a)
    CSR = 144
    row_voff(a, 21, 64, 16, 1024, with_g=8)
    a(f"v_add_u32 v21, s12, v21")
    RX = 80
    for nt in range(4):
        a(f"buffer_load_dwordx2 {vr(RX+2*nt,2)}, v21, s[{SRD_A}:{SRD_A+3}], 0 offen offset:{nt*32}")
    a("v_lshlrev_b32 v24, 4, v3")
    a(f"s_lshl_b32 s6, s{S_CT}, 8")
    a(f"s_add_u32 s6, s6, {CS_W1}")
    for nt in range(4):
        a(f"buffer_load_dwordx4 {vr(CSR+4*nt,4)}, v24, s[{SRD_CS}:{SRD_CS+3}], s6 offen offset:{nt*64}")
    setup_consts(a)
    a_rd256(a, 4, 24, 4096)
    tr_addrs128(a, 12, 24, 'std')
    for nt in range(4): a(f"v_add_u32 v{12+nt}, 0x10000, v{12+nt}")
    SU, G = 160, 164
    GC = 172
    a(f"v_mov_b32 v{GC}, {lit(GELU_C0)}"); a(f"v_mov_b32 v{GC+1}, {lit(GELU_C0)}")
    a(f"v_mov_b32 v{GC+2}, {lit(GELU_C1)}"); a(f"v_mov_b32 v{GC+3}, {lit(GELU_C1)}")
    gemm64_loop(a, [(4, 4, c * 16384, 12, c * 16384) for c in range(4)], 32, 24, 48, stats=(SU, G), stamps=(0, 1, 2, 3))
    stamp(a)
    MEAN, VAR, MB1, RS1, M2, V2 = 176, 177, 178, 180, 182, 183
    MB, RS = 168, 170
    ln_stats(a, SU, G, MEAN, VAR, 24)
    bf16r(a, MB1, MEAN, 24)
    ln_scale(a, VAR, RS1, 24)
    a(f"v_sub_f32 v{M2}, v{MEAN}, v{MB1}")
    a(f"v_mul_f32 v{V2}, v{VAR}, v{RS1}")
    a(f"v_mul_f32 v{M2}, v{M2}, v{RS1}")
    a(f"v_mul_f32 v{V2}, v{V2}, v{RS1}")
    bf16r(a, M2, M2, 24)
    ln_scale(a, V2, RS, 25)
    a(f"v_mul_f32 v{MB1}, v{MB1}, v{RS1}")
    a(f"v_rcp_f32 v24, v{RS1}")
    a(f"v_add_f32 v{MB}, v{MB1}, v{M2}")
    a(f"v_sub_f32 v{MB1}, 0, v{MB1}")
    a(f"v_mul_f32 v{MB}, v{MB}, v24")
    a(f"v_mul_f32 v{RS}, v{RS}, v{RS1}")
    a(f"v_sub_f32 v{MB}, 0, v{MB}")
    a(f"v_mov_b32 v{RS+1}, v{RS}")
    a(f"v_mov_b32 v{MB+1}, v{MB}")
    a(f"v_mov_b32 v{RS1+1}, v{RS1}")
    a(f"v_mov_b32 v{MB1+1}, v{MB1}")
    a("s_waitcnt vmcnt(0)")
    for np_ in range(2):
        recs = []
        for q in range(2):
            nt = 2 * np_ + q
            r = Rec()
            c = 32 + 4 * nt
            fold4(r, c, CSR + 4 * nt, MB, RS)
            round4(r, c, 24 + 2 * q)
            gelu4(r, c, 184 + 4 * q, GC)
            pack4(r, c, c)
            r(f"buffer_store_dwordx2 {vr(c,2)}, v21, s[{SRD_O}:{SRD_O+3}], 0 offen offset:{nt*32}")
            recs.append(r)
        interleave(a, recs)
    recs = []
    for nt in range(4):
        r = Rec()
        t = 96 + 4 * nt
        unpack2(r, t, t + 1, RX + 2 * nt); unpack2(r, t + 2, t + 3, RX + 2 * nt + 1)
        for p in (0, 2): r(f"v_pk_fma_f32 {vr(t+p,2)}, {vr(t+p,2)}, {vr(RS1,2)}, {vr(MB1,2)}")
        pack4(r, t, t)
        r(f"buffer_store_dwordx2 {vr(t,2)}, v21, s[{SRD_X1}:{SRD_X1+3}], 0 offen offset:{nt*32}")
        recs.append(r)
    interleave(a, recs)
    loader_begin(a)
    AV, BV = 16, 20
    a_voff256(a, AV, 1024, 64, 16, 24)
    b_voff128(a, BV, 24, 1024, 'std')
    a(f"s_lshl_b32 s13, s{S_W}, 12")
    a(f"s_lshl_b32 s14, s{S_W}, 10")
    a(f"s_mul_i32 s10, s{S_W}, {8*1024}")
    a(f"s_add_u32 s10, s10, s12")
    def issue(c):
        for t4 in range(4):
            dma(a, vm, ('ch', c), AV + t4, SRD_A, 0, c * 256, (13, c * 16384 + t4 * 1024))
        for i in range(4):
            dma(a, vm, ('ch', c), BV, SRD_B, 's10', 0, (14, 65536 + c * 16384 + i * 4096))
            a(f"s_add_u32 s10, s10, {32*1024}")
    issue(0); issue(1)
    for c in range(4):
        vm.wait(('ch', c)); a("s_barrier")
        if c + 2 < 4: issue(c + 2)
    loader_end(a)

def k6_w4(a):
    vm = VM(a)
    prologue8(a, 256); decode_wg(a, 4)
    srd(a, SRD_A, P_WS, WS_H3, S * F * 2)
    srd(a, SRD_B, P_WS, WS_W4C, 8 * W4C_STRIDE)
    srd_sel(a, SRD_O, P_WS, WS_XN, P_OUT, 0, 0x200000)
    srd(a, SRD_X1, P_WS, WS_X1, 0x200000)
    srd(a, SRD_X2, P_WS, WS_XA, 0x200000)
    NS, NCH, NI = 5, 11, 2
    a(f"s_lshl_b32 s12, s{S_CT}, 7")
    split(a)
    row_voff(a, 21, 64, 16, 1024, with_g=8)
    a(f"v_add_u32 v21, s12, v21")
    R1, R2 = 96, 104
    for nt in range(4):
        a(f"buffer_load_dwordx2 {vr(R1+2*nt,2)}, v21, s[{SRD_X1}:{SRD_X1+3}], 0 offen offset:{nt*32}")
        a(f"buffer_load_dwordx2 {vr(R2+2*nt,2)}, v21, s[{SRD_X2}:{SRD_X2+3}], 0 offen offset:{nt*32}")
    a_rd256(a, 4, 24, 4096)
    tr_addrs128(a, 12, 24, 'std')
    AB = Banked(a, 4, 4, [80, 84])
    BB = Banked(a, 12, 4, [88, 92])
    chs = []
    for c in range(NCH):
        slot = (c % NS) * 32768
        ar, ao = AB.get(slot); br, bo = BB.get(slot + 16384)
        chs.append((4 if c < 10 else 3, ar, ao, br, bo))
    gemm64_loop(a, chs, 32, 24, 48, stamps=(0, NCH - 1))
    stamp(a)
    a("s_waitcnt vmcnt(0)")
    for nt in range(4):
        c = 32 + 4 * nt
        round4(a, c, 24)
        unpack2(a, 26, 27, R1 + 2 * nt); unpack2(a, 28, 29, R1 + 2 * nt + 1)
        for p in (0, 2): a(f"v_pk_add_f32 {vr(c+p,2)}, {vr(c+p,2)}, {vr(26+p,2)}")
        round4(a, c, 24)
        unpack2(a, 26, 27, R2 + 2 * nt); unpack2(a, 28, 29, R2 + 2 * nt + 1)
        for p in (0, 2): a(f"v_pk_add_f32 {vr(c+p,2)}, {vr(c+p,2)}, {vr(26+p,2)}")
        pack4(a, c, c)
        a(f"buffer_store_dwordx2 {vr(c,2)}, v21, s[{SRD_O}:{SRD_O+3}], 0 offen offset:{nt*32}")
    loader_begin(a)
    AV, BV = 16, 20
    a_voff256(a, AV, F * 2, 64, 16, 24)
    b_voff128(a, BV, 24, 128, 'std')
    a(f"s_lshl_b32 s13, s{S_W}, 12")
    a(f"s_lshl_b32 s14, s{S_W}, 10")
    a(f"s_mul_i32 s10, s{S_CT}, {W4C_STRIDE}")
    a(f"s_add_u32 s10, s10, s14")
    def issue(c):
        slot = (c % NS) * 32768
        for t4 in range(4):
            dma(a, vm, ('ch', c), AV + t4, SRD_A, 0, c * 256, (13, slot + t4 * 1024))
        for i in range(4 if c < 10 else 3):
            dma(a, vm, ('ch', c), BV, SRD_B, 's10', 0, (14, slot + 16384 + i * 4096))
            a(f"s_add_u32 s10, s10, {32*128}")
    loader_ring(a, vm, issue, NCH, NS, NI)
    loader_end(a, (P_WQKV, 512*3072, 12))

def loader_ring(a, vm, issue, NCH, NS, NI, hook=None):
    nxt = 0
    while nxt < min(NI, NCH): issue(nxt); nxt += 1
    for c in range(NCH):
        vm.wait(('ch', c)); a("s_barrier")
        k = 0
        while nxt < NCH and nxt <= c - 1 + NS and k < LOOKAHEAD_STEP:
            issue(nxt); nxt += 1; k += 1
            if nxt == NCH and hook: hook(vm)

LOOKAHEAD_STEP = 1

SLOT96 = 28672
def gemm96_compute(a, orient):
    NS, NCH = 5, 8
    setup_consts(a)
    a_rd128(a, 4, 24, 4096)
    tr_addrs64s(a, 160, 24, 4096)
    AB = Banked(a, 4, 2, [166, 168])
    BB = Banked(a, 160, 6, [170, 176])
    acc = lambda st, nt: 32 + 24 * st + 4 * nt
    def reads(c, j):
        slot = (c % NS) * SLOT96
        L = []
        for st in range(2):
            r, o = AB.get(slot + st * 2048)
            L.append(f"ds_read_b128 {vr(96 + j * 8 + st * 4, 4)}, v{r + j} offset:{o}")
        for nt in range(6):
            for hh in range(2):
                r, o = BB.get(slot + 16384 + j * 2048 + hh * 256)
                L.append(f"ds_read_b64_tr_b16 {vr(112 + j * 24 + nt * 4 + hh * 2, 2)}, v{r + nt} offset:{o}")
        return L
    def step(c, j, nxt):
        z = c == 0 and j == 0
        nxt = list(nxt); issued = 0
        def rd():
            nonlocal issued
            if nxt: a(nxt.pop(0)); issued += 1
        for nt in range(6):
            a(f"s_waitcnt lgkmcnt({10 - 2 * nt + issued})")
            for st in range(2):
                cc = vr(acc(st, nt), 4); w = vr(112 + j * 24 + nt * 4, 4); x = vr(96 + j * 8 + st * 4, 4)
                if orient[nt] == 'T': a(f"v_mfma_f32_16x16x32_bf16 {cc}, {w}, {x}, {'0' if z else cc}")
                else: a(f"v_mfma_f32_16x16x32_bf16 {cc}, {x}, {w}, {'0' if z else cc}")
                rd()
        for st in range(2):
            x = vr(96 + j * 8 + st * 4, 4); SU = vr(80 + 8 * st, 4); G = vr(84 + 8 * st, 4)
            a(f"v_mfma_f32_16x16x32_bf16 {SU}, v[8:11], {x}, {'0' if z else SU}")
            rd()
            a(f"v_mfma_f32_16x16x32_bf16 {G}, {x}, {x}, {'0' if z else G}")
            rd()
        assert not nxt
    for c in range(NCH):
        barrier(a, c in (NCH - 1,))
        if c == 0:
            for l in reads(0, 0): a(l)
        else:
            step(c - 1, 1, reads(c, 0))
        step(c, 0, reads(c, 1))
    step(NCH - 1, 1, [])
    stamp(a)
    return acc

def gemm96_loader(a, rs_a, rs_b, col_sgprs, hook=None):
    vm = VM(a)
    NS, NCH, NI = 5, 8, 2
    AV, BV = 16, 18
    a_voff128(a, AV, rs_a, 128, 32, 24)
    b_voff64(a, BV, 24, rs_b)
    a(f"s_lshl_b32 s13, s{S_W}, 12")
    a(f"s_lshl_b32 s14, s{S_W}, 10")
    a(f"s_mul_i32 s10, s{S_W}, {16*rs_b}")
    a(f"s_mov_b32 s11, {16*rs_a}")
    def issue(c):
        slot = (c % NS) * SLOT96
        for t in range(4):
            dma(a, vm, ('ch', c), AV + (t & 1), SRD_A, 's11' if t >= 2 else 0, c * 128, (13, slot + t * 1024))
        for j in range(3):
            a(f"s_add_u32 s6, s10, s{col_sgprs[j]}")
            dma(a, vm, ('ch', c), BV, SRD_B, 's6', 0, (14, slot + 16384 + j * 4096))
        a(f"s_add_u32 s10, s10, {64*rs_b}")
    loader_ring(a, vm, issue, NCH, NS, NI, hook)

def k5_ln_w3(a):
    vm = VM(a)
    prologue8(a, 240); decode_wg(a, 2)
    srd(a, SRD_A, P_WS, WS_X1, 0x200000)
    srd(a, SRD_B, P_W3, 0, 512 * F * 2)
    srd(a, SRD_O, P_WS, WS_H3, S * F * 2)
    srd(a, SRD_CS, P_WS, WS_CS, 0x5000)
    a(f"s_mul_i32 s12, s{S_CT}, 192")
    a(f"s_add_u32 s8, s12, 64")
    a(f"s_add_u32 s9, s12, 128")
    CSR = 184
    NST = 1 if EPI8 else 2
    def after(vm, sts):
        a("v_lshlrev_b32 v24, 4, v3")
        a(f"s_mul_i32 s6, s{S_CT}, 384")
        a(f"s_add_u32 s6, s6, {CS_W3}")
        for nt in range(6):
            a(f"buffer_load_dwordx4 {vr(CSR+4*nt,4)}, v24, s[{SRD_CS}:{SRD_CS+3}], s6 offen offset:{nt*64}")
            vm.issue('cs')
        for i, st in enumerate(sts):
            row_voff(a, 20 + i, 128, 32, F * 2, with_g=8, st=st)
            a(f"v_add_u32 v{20+i}, s12, v{20+i}")
    split(a)
    after(vm, (0,) if EPI8 else (0, 1))
    acc = gemm96_compute(a, 'TTTTTT')
    if EPI8:
        handover_put(a, [56 + 4 * i for i in range(6)] + [88, 92])
        a.label("L_epi")
    MB = (96, 100); RS = (98, 102)
    for st in range(NST):
        ln_finish(a, 80 + 8 * st, 84 + 8 * st, MB[st], RS[st], 24)
        a(f"v_mov_b32 v{RS[st]+1}, v{RS[st]}")
        a(f"v_sub_f32 v{MB[st]}, 0, v{MB[st]}")
        a(f"v_mov_b32 v{MB[st]+1}, v{MB[st]}")
    GC = 104
    a(f"v_mov_b32 v{GC}, {lit(GELU_C0)}"); a(f"v_mov_b32 v{GC+1}, {lit(GELU_C0)}")
    a(f"v_mov_b32 v{GC+2}, {lit(GELU_C1)}"); a(f"v_mov_b32 v{GC+3}, {lit(GELU_C1)}")
    vm.wait('cs')
    for np_ in range(3):
        if np_ == 1:
            a(f"s_cmp_eq_u32 s{S_CT}, 14")
            a("s_cbranch_scc1 L_fin")
        for st in range(NST):
            recs = []
            for q in range(2):
                nt = 2 * np_ + q
                r = Rec()
                c = acc(st, nt)
                fold4(r, c, CSR + 4 * nt, MB[st], RS[st])
                round4(r, c, 24 + 2 * q)
                gelu4(r, c, 108 + 4 * q, GC)
                pack4(r, c, c)
                r(f"buffer_store_dwordx2 {vr(c,2)}, v{20+st}, s[{SRD_O}:{SRD_O+3}], 0 offen offset:{nt*32}")
                recs.append(r)
            interleave(a, recs)
    loader_begin(a)
    def hook(vml):
        setup_consts(a)
        after(vml, (1,))
    gemm96_loader(a, 1024, F * 2, (12, 8, 9), hook if EPI8 else None)
    if EPI8:
        handover_get(a, [32 + 4 * i for i in range(6)] + [80, 84])
        a("s_branch L_epi")
    else:
        loader_end(a)

def k1_qkv(a):
    vm = VM(a)
    prologue8(a, 256); decode_wg(a, 2)
    srd_sel(a, SRD_A, P_X, 0, P_WS, WS_XN, 0x200000)
    srd(a, SRD_B, P_WS, WS_WQC, 512 * 1536 * 2)
    srd(a, SRD_O, P_WS, WS_PHIQ, 0x400000)
    srd(a, SRD_X1, P_WPHI, 0, 32 * 512)
    srd(a, SRD_CS, P_WS, WS_CS, 0x5000)
    a(f"s_mul_i32 s6, s{S_LAYER}, {KV_STRIDE}")
    a(f"s_add_u32 s6, s6, {WS_KV}")
    a(f"s_add_u32 s{SRD_X2}, s{P_WS}, s6")
    a(f"s_addc_u32 s{SRD_X2+1}, s{P_WS+1}, 0")
    a(f"s_mov_b32 s{SRD_X2+2}, {KV_STRIDE}")
    a(f"s_mov_b32 s{SRD_X2+3}, 0x00020000")
    a(f"s_lshl_b32 s12, s{S_CT}, 15")
    a(f"s_add_u32 s8, s12, {16*32768}")
    a(f"s_add_u32 s9, s12, {32*32768}")
    CSQ = 184
    WP = 204
    def after(vm, st):
        a(f"v_lshlrev_b32 v24, 7, v3")
        a(f"v_lshl_add_u32 v24, v2, 1, v24")
        a(f"s_lshl_b32 s6, s{S_CT}, 10")
        for h in range(2):
            for jj in range(4):
                a(f"buffer_load_ushort v{WP+4*h+jj}, v24, s[{SRD_X1}:{SRD_X1+3}], s6 offen offset:{h*512 + jj*32}")
                vm.issue('cs')
        a("v_lshlrev_b32 v24, 4, v3")
        a("v_lshlrev_b32 v25, 2, v2")
        a(f"s_lshl_b32 s6, s{S_CT}, 7")
        for nt in range(4):
            a(f"buffer_load_dwordx4 {vr(CSQ+4*nt,4)}, v24, s[{SRD_CS}:{SRD_CS+3}], s6 offen offset:{(nt//2)*2048 + (nt%2)*64}")
            vm.issue('cs')
        a(f"s_add_u32 s6, s6, 4096")
        for h in range(2):
            a(f"buffer_load_dword v{CSQ+16+h}, v25, s[{SRD_CS}:{SRD_CS+3}], s6 offen offset:{h*64}")
            vm.issue('cs')
        for i, s_ in enumerate(st):
            row_voff(a, 20 + i, 128, 32, 2048, with_g=8, st=s_)
            a(f"s_lshl_b32 s6, s{S_CT}, 7")
            a(f"v_add_u32 v{20+i}, s6, v{20+i}")
    NST = 1 if EPI8 else 2
    split(a)
    after(vm, (0,) if EPI8 else (0, 1))
    accf = gemm96_compute(a, 'TTTTNN')
    if EPI8:
        handover_put(a, [56 + 4 * i for i in range(6)] + [88, 92])
        a.label("L_epi")
    stamp(a)
    MB = (96, 100); RS = (98, 102)
    for st in range(NST):
        ln_finish(a, 80 + 8 * st, 84 + 8 * st, MB[st], RS[st], 24)
    RRS = (104, 112); RRM = (108, 116)
    a("v_lshlrev_b32 v23, 4, v3")
    for r in range(4): a(f"v_add_u32 v{24+r}, {4*r}, v23")
    for st in range(NST):
        for r in range(4):
            a(f"ds_bpermute_b32 v{RRS[st]+r}, v{24+r}, v{RS[st]}")
            a(f"ds_bpermute_b32 v{RRM[st]+r}, v{24+r}, v{MB[st]}")
    for st in range(NST):
        a(f"v_mov_b32 v{RS[st]+1}, v{RS[st]}")
        a(f"v_sub_f32 v{MB[st]}, 0, v{MB[st]}")
        a(f"v_mov_b32 v{MB[st]+1}, v{MB[st]}")
    vm.wait('cs')
    for h in range(2):
        for jj in range(2):
            a(f"v_lshl_or_b32 v{28+2*h+jj}, v{WP+4*h+2*jj+1}, 16, v{WP+4*h+2*jj}")
    a("s_waitcnt lgkmcnt(0)")
    KV = 120; Z = 136
    T = 212
    L2P = 202
    IDN = 22
    a(f"v_mov_b32 v{L2P}, {lit(LOG2E)}"); a(f"v_mov_b32 v{L2P+1}, {lit(LOG2E)}")
    a("v_mov_b32 v24, 0x3f80"); a("v_mov_b32 v25, 0x3f800000")
    for p in range(2):
        a(f"v_cndmask_b32 v{IDN+p}, 0, v24, s[{64+4*p}:{65+4*p}]")
        a(f"v_cndmask_b32 v26, 0, v25, s[{66+4*p}:{67+4*p}]")
        a(f"v_or_b32 v{IDN+p}, v{IDN+p}, v26")
    def red4(r, A, B, C, D, op, mid):
        r(f"v_permlane16_swap_b32 v{A}, v{B}")
        r(f"v_permlane16_swap_b32 v{C}, v{D}")
        r(f"{op} v{A}, v{A}, v{B}")
        r(f"{op} v{C}, v{C}, v{D}")
        r(f"v_permlane32_swap_b32 v{A}, v{C}")
        r(f"{op} v{A}, v{A}, v{C}")
        r(mid)
        r(f"v_mov_b32 v{C}, v{A}")
        r(f"v_permlane32_swap_b32 v{A}, v{C}")
        r(f"v_mov_b32 v{B}, v{A}")
        r(f"v_mov_b32 v{D}, v{C}")
        r(f"v_permlane16_swap_b32 v{A}, v{B}")
        r(f"v_permlane16_swap_b32 v{C}, v{D}")
    def stream(st, h, Bq):
        r = Rec()
        wph = vr(28 + 2 * h, 2)
        c = accf(st, h); ck = accf(st, 2 + h); cv = accf(st, 4 + h)
        P, PK, ENQ, ENK, VB = Bq + 4, Bq + 8, Bq + 12, Bq + 16, Bq + 20
        A, B, C, D = Bq + 22, Bq + 24, Bq + 26, Bq + 28
        fold4(r, c, CSQ + 4 * h, MB[st], RS[st])
        fold4(r, ck, CSQ + 8 + 4 * h, MB[st], RS[st])
        pack4(r, Bq, c); pack4(r, Bq + 2, ck)
        r(f"v_mfma_f32_16x16x16_bf16 {vr(P,4)}, {wph}, {vr(Bq,2)}, 0")
        r(f"v_mfma_f32_16x16x16_bf16 {vr(PK,4)}, {wph}, {vr(Bq+2,2)}, 0")
        sel = "op_sel_hi:[1,0,1]" if h == 0 else "op_sel:[0,1,0] op_sel_hi:[1,1,1]"
        for p in (0, 2):
            r(f"v_pk_fma_f32 {vr(cv+p,2)}, {vr(RRM[st]+p,2)}, {vr(CSQ+16,2)}, {vr(cv+p,2)} {sel} neg_lo:[1,0,0] neg_hi:[1,0,0]")
        for p in (0, 2):
            r(f"v_pk_mul_f32 {vr(cv+p,2)}, {vr(cv+p,2)}, {vr(RRS[st]+p,2)}")
        pack4(r, VB, cv)
        round4(r, P, Bq); round4(r, PK, Bq + 2)
        for X, mx, mn in ((P, A, B), (PK, C, D)):
            r(f"v_max3_f32 v{mx}, v{X}, v{X+1}, v{X+2}")
            r(f"v_max3_f32 v{mn}, -v{X}, -v{X+1}, -v{X+2}")
            r(f"v_max_f32 v{mx}, v{mx}, v{X+3}")
            r(f"v_max_f32_e64 v{mn}, v{mn}, -v{X+3}")
        red4(r, A, B, C, D, 'v_max_f32', f"v_mul_f32 v{A}, {lit(-LOG2E)}, v{A}")
        for X, EN, mx, mn in ((P, ENQ, A, B), (PK, ENK, C, D)):
            for p in (0, 2):
                r(f"v_pk_fma_f32 {vr(EN+p,2)}, {vr(X+p,2)}, {vr(L2P,2)}, {vr(mn,2)} op_sel_hi:[1,1,0] neg_lo:[0,1,0] neg_hi:[0,1,0]")
            for p in (0, 2):
                r(f"v_pk_fma_f32 {vr(X+p,2)}, {vr(X+p,2)}, {vr(L2P,2)}, {vr(mx,2)} op_sel_hi:[1,1,0]")
        for X in (P, ENQ, PK, ENK):
            for q in range(4): r(f"v_exp_f32 v{X+q}, v{X+q}")
        for X, d in ((P, A), (ENQ, B), (PK, C), (ENK, D)):
            r(f"v_pk_add_f32 {vr(d,2)}, {vr(X,2)}, {vr(X+2,2)}")
        for d in (A, B, C, D):
            r(f"v_add_f32 v{d}, v{d}, v{d+1}")
        red4(r, A, B, C, D, 'v_add_f32', f"v_rcp_f32 v{A}, v{A}")
        for X, d in ((PK, C), (ENK, D), (P, A), (ENQ, B)):
            for p in (0, 2):
                r(f"v_pk_mul_f32 {vr(X+p,2)}, {vr(X+p,2)}, {vr(d,2)} op_sel_hi:[1,0]")
        pack4(r, PK, PK); pack4(r, ENK, ENK)
        r(f"v_mfma_f32_16x16x16_bf16 {vr(Bq,4)}, {vr(PK,2)}, {vr(IDN,2)}, 0")
        r(f"v_mfma_f32_16x16x16_bf16 {vr(Bq+24,4)}, {vr(ENK,2)}, {vr(IDN,2)}, 0")
        pack4(r, P, P); pack4(r, ENQ, ENQ)
        r(f"buffer_store_dwordx2 {vr(P,2)}, v{20+st}, s[{SRD_O}:{SRD_O+3}], 0 offen offset:{h*64}")
        r(f"buffer_store_dwordx2 {vr(ENQ,2)}, v{20+st}, s[{SRD_O}:{SRD_O+3}], 0 offen offset:{h*64+32}")
        pack4(r, Bq, Bq); pack4(r, Bq + 24, Bq + 24)
        for sg, ph in ((0, Bq), (1, Bq + 24)):
            kv = KV + (h * 2 + sg) * 4; z = Z + (h * 2 + sg) * 4
            r(f"v_mfma_f32_16x16x16_bf16 {vr(kv,4)}, {vr(VB,2)}, {vr(ph,2)}, {'0' if st == 0 else vr(kv,4)}")
            r(f"v_mfma_f32_16x16x16_bf16 {vr(z,4)}, v[8:9], {vr(ph,2)}, {'0' if st == 0 else vr(z,4)}")
        return r
    stamp(a)
    for st in range(NST):
        interleave(a, [stream(st, 0, 212), stream(st, 1, 152)])
    RED = 3 * SLOT96; REDZ = RED + 32768
    a(f"s_lshl_b32 s6, s101, 12")
    a(f"v_lshlrev_b32 v4, 4, v1")
    a(f"v_add_u32 v4, s6, v4")
    a(f"s_lshl_b32 s6, s101, 10")
    a(f"v_lshlrev_b32 v5, 2, v1")
    a(f"v_add_u32 v5, s6, v5")
    a(f"v_add_u32 v4, {RED}, v4")
    a(f"v_add_u32 v5, {REDZ}, v5")
    for i in range(4):
        a(f"ds_write_b128 v4, {vr(KV+4*i,4)} offset:{i*1024}")
        a(f"ds_write_b32 v5, v{Z+4*i} offset:{i*256}")
    a("s_waitcnt lgkmcnt(0)")
    barrier(a)
    a("s_cmp_ge_u32 s101, 4")
    a("s_cbranch_scc1 L_end")
    a(f"v_lshlrev_b32 v4, 4, v0")
    a(f"v_add_u32 v4, {RED}, v4")
    NW = 8 if EPI8 else 4
    for w in range(NW):
        a(f"ds_read_b128 {vr(T+4*w,4)}, v4 offset:{w*4096}")
    a(f"v_lshrrev_b32 v5, 4, v0")
    a(f"v_lshlrev_b32 v5, 8, v5")
    a(f"v_lshl_add_u32 v5, v2, 2, v5")
    a(f"v_add_u32 v5, {REDZ}, v5")
    for w in range(NW):
        a(f"ds_read_b32 v{T+32+w}, v5 offset:{w*1024}")
    a(f"s_lshr_b32 s6, s{S_W}, 1")
    a(f"s_lshl_b32 s7, s{S_CT}, 1")
    a(f"s_add_u32 s6, s6, s7")
    a(f"s_lshl_b32 s6, s6, 11")
    a(f"s_and_b32 s7, s{S_W}, 1")
    a(f"s_lshl_b32 s7, s7, 6")
    a(f"s_add_u32 s6, s6, s7")
    a(f"v_lshlrev_b32 v6, 9, v3")
    a(f"v_lshl_add_u32 v6, v2, 2, v6")
    a(f"s_lshl_b32 s7, s{S_CT}, 8")
    a(f"s_add_u32 s7, s7, {KVZ_OFF}")
    a(f"v_lshlrev_b32 v7, 2, v0")
    a("s_waitcnt lgkmcnt(0)")
    for d in ((16, 8, 4) if EPI8 else (8, 4)):
        for w in range(0, d, 4):
            for p in (0, 2):
                a(f"v_pk_add_f32 {vr(T+w+p,2)}, {vr(T+w+p,2)}, {vr(T+w+d+p,2)}")
    for d in ((4, 2, 1) if EPI8 else (2, 1)):
        for w in range(d):
            a(f"v_add_f32 v{T+32+w}, v{T+32+w}, v{T+32+w+d}")
    for r in range(4):
        a(f"buffer_atomic_add_f32 v{T+r}, v6, s[{SRD_X2}:{SRD_X2+3}], s6 offen offset:{r*128}")
    a(f"s_cmp_lg_u32 s{S_W}, 0")
    a("s_cbranch_scc1 L_fin")
    a(f"buffer_atomic_add_f32 v{T+32}, v7, s[{SRD_X2}:{SRD_X2+3}], s7 offen")
    loader_begin(a)
    def hook(vml):
        setup_consts(a)
        after(vml, (1,))
    gemm96_loader(a, 1024, 64, (12, 8, 9), hook if EPI8 else None)
    if EPI8:
        handover_get(a, [32 + 4 * i for i in range(6)] + [80, 84])
        a("s_branch L_epi")
    else:
        loader_end(a)

import os
_V = os.environ.get('K2V', '0')
K2_KV = {c: (c + 2,) for c in range(6)}
K2_CH = {c: (c + 2,) for c in range(6)}
if _V == '1':
    K2_CH = {0: (2, 3), 1: (4,), 2: (5,), 3: (6,), 4: (7,)}
if _V == '2':
    K2_CH = {0: (2, 3), 1: (4,), 2: (5,), 3: (6,), 4: (7,)}
    K2_KV = {0: (2, 3), 1: (4,), 2: (5,), 3: (6,), 4: (7,)}
if _V == '3':
    K2_CH = {0: (2,), 1: (3, 4), 2: (5,), 3: (6,), 4: (7,)}
def k2_attn_wo(a):
    prologue8(a, 256); decode_wg(a, 4)
    srd(a, SRD_A, P_WS, WS_PHIQ, 0x400000)
    srd(a, SRD_B, P_WO, 0, 512 * 1024)
    srd(a, SRD_O, P_WS, WS_XA, 0x200000)
    srd_sel(a, SRD_X1, P_X, 0, P_WS, WS_XN, 0x200000)
    a(f"s_mul_i32 s6, s{S_LAYER}, {KV_STRIDE}")
    a(f"s_add_u32 s6, s6, {WS_KV}")
    a(f"s_add_u32 s{SRD_X2}, s{P_WS}, s6")
    a(f"s_addc_u32 s{SRD_X2+1}, s{P_WS+1}, 0")
    a(f"s_mov_b32 s{SRD_X2+2}, {KV_STRIDE}")
    a(f"s_mov_b32 s{SRD_X2+3}, 0x00020000")
    NS, NCH, SL = 5, 8, 24576
    KVL = NS * SL; ZL = KVL + 32768
    a(f"s_lshl_b32 s12, s{S_CT}, 7")
    a("v_lshlrev_b32 v8, 4, v0")
    a("v_lshlrev_b32 v9, 3, v0")
    split(a)
    PHB = 80
    KVB = 96
    NUB = 128
    OBS = (64, 68)
    BFS = (160, 176)
    KR = [192 + 4 * i for i in range(8)]; ZR = 224
    RX = 240
    def body(hf):
        vm = VM(a)
        tm = gen.TIMING
        if hf: gen.TIMING = False
        AV, BV = 16, 20
        def ldkv(c):
            a(f"s_mov_b32 s6, {c*8192}")
            a(f"buffer_load_dwordx4 {vr(KR[c],4)}, v8, s[{SRD_X2}:{SRD_X2+3}], s6 offen")
            vm.issue(('kv', c))
        def issue(c):
            slot = (c % NS) * SL
            for t4 in range(4):
                dma(a, vm, ('ch', c), AV + t4, SRD_A, 0, c * 256, (13, slot + t4 * 1024))
            for i in range(2):
                dma(a, vm, ('ch', c), BV, SRD_B, 's10', 0, (14, slot + 16384 + i * 4096))
                a(f"s_add_u32 s10, s10, {32*1024}")
        ldkv(0)
        a(f"s_mov_b32 s6, {KVZ_OFF}")
        a(f"buffer_load_dwordx2 {vr(ZR,2)}, v9, s[{SRD_X2}:{SRD_X2+3}], s6 offen")
        vm.issue('z')
        if hf:
            a_voff256(a, AV, 2048, 64, 16, 24)
            b_voff128(a, BV, 24, 1024, 'k2')
            a(f"s_lshl_b32 s13, s{S_W}, 12")
            a(f"s_lshl_b32 s14, s{S_W}, 10")
            a(f"s_mul_i32 s10, s{S_W}, {8*1024}")
            a(f"s_add_u32 s10, s10, s12")
            issue(0)
        ldkv(1)
        if hf: issue(1)
        row_voff(a, 21, 64, 16, 1024, with_g=8)
        a(f"v_add_u32 v21, s12, v21")
        for q in range(2):
            a(f"buffer_load_dwordx2 {vr(RX+2*q,2)}, v21, s[{SRD_X1}:{SRD_X1+3}], 0 offen offset:{(2*hf+q)*32}")
            vm.issue('rx')
        a_rd256(a, 4, 24, 4096)
        tr_addrs128(a, 12, 24, 'k2')
        AB = Banked(a, 4, 4, [232])
        BB = Banked(a, 12, 4, [236])
        a(f"v_add_u32 v9, {KVL}, v9")
        a("v_lshlrev_b32 v10, 2, v0")
        a(f"v_add_u32 v10, {ZL}, v10")
        a("v_lshlrev_b32 v22, 6, v2")
        a("v_lshl_add_u32 v22, v3, 4, v22")
        a(f"v_add_u32 v22, {KVL}, v22")
        a("v_lshlrev_b32 v23, 4, v3")
        a(f"v_add_u32 v23, {ZL}, v23")
        def stage(c):
            vm.wait(('kv', c))
            q = KR[c]
            pack4(a, q, q)
            a(f"ds_write_b64 v9, {vr(q,2)} offset:{c*4096}")
        vm.wait('z')
        a(f"v_cvt_pk_bf16_f32 v{ZR}, v{ZR}, v{ZR+1}")
        a(f"ds_write_b32 v10, v{ZR}")
        stage(0)
        def wo_mfma(c):
            OB = OBS[c % 2]; BF = BFS[c % 2]
            for nt in range(4):
                cc = vr(32 + 4 * nt, 4)
                a(f"v_mfma_f32_16x16x32_bf16 {cc}, {vr(BF + nt*4, 4)}, {vr(OB,4)}, {'0' if c == 0 else cc}")
        for c in range(NCH):
            slot = (c % NS) * SL
            OB = OBS[c % 2]; BF = BFS[c % 2]
            if hf: vm.wait(('ch', c))
            a("s_waitcnt lgkmcnt(0)")
            barrier(a, c in (0, 3, 4))
            ar, ao = AB.get(slot)
            br, bo = BB.get(slot + 16384)
            for q in range(2):
                hh = 2 * hf + q; h = 4 * c + hh
                a(f"ds_read_b128 {vr(PHB+4*q,4)}, v{ar+hh} offset:{ao}")
                a(f"ds_read_b128 {vr(KVB+8*q,4)}, v22 offset:{h*1024}")
                a(f"ds_read_b128 {vr(KVB+8*q+4,4)}, v23 offset:{h*64}")
            for n_ in K2_KV.get(c, ()): ldkv(n_)
            if hf:
                for n_ in K2_CH.get(c, ()): issue(n_)
            if c: wo_mfma(c - 1)
            for q in range(2):
                a(f"s_waitcnt lgkmcnt({3-3*q})")
                n = NUB + 8 * q
                a(f"v_mfma_f32_16x16x32_bf16 {vr(n,4)}, {vr(KVB+8*q,4)}, {vr(PHB+4*q,4)}, 0")
                a(f"v_mfma_f32_16x16x32_bf16 {vr(n+4,4)}, {vr(KVB+8*q+4,4)}, {vr(PHB+4*q,4)}, 0")
            for nt in range(4):
                for hh in range(2):
                    a(f"ds_read_b64_tr_b16 {vr(BF + nt*4 + hh*2, 2)}, v{br+nt} offset:{bo + hf*4096 + hh*2048}")
            recs = []
            for q in range(2):
                r = Rec()
                n = NUB + 8 * q; t = 24 + 2 * q
                bf16r(r, n + 4, n + 4, t)
                r(f"v_add_f32 v{n+4}, {lit(1e-6)}, v{n+4}")
                bf16r(r, n + 4, n + 4, t)
                r(f"v_rcp_f32 v{n+4}, v{n+4}")
                round4(r, n, t)
                for p in (0, 2): r(f"v_pk_mul_f32 {vr(n+p,2)}, {vr(n+p,2)}, {vr(n+4,2)} op_sel_hi:[1,0]")
                pack4(r, OB + 2 * q, n)
                recs.append(r)
            interleave(a, recs)
            if c + 1 < NCH: stage(c + 1)
        a("s_waitcnt lgkmcnt(0)")
        wo_mfma(NCH - 1)
        stamp(a)
        keep = [32 + 4 * (2 * hf + q) for q in range(2)]
        send = [32 + 4 * (2 * (1 - hf) + q) for q in range(2)]
        pair_exchange(a, hf, send, [48, 52], 3 * SL, 24)
        a("s_waitcnt vmcnt(0) lgkmcnt(0)")
        recs = []
        for q in range(2):
            r = Rec()
            c = keep[q]; t = 112 + 8 * q
            for p in (0, 2): r(f"v_pk_add_f32 {vr(c+p,2)}, {vr(c+p,2)}, {vr(48+4*q+p,2)}")
            round4(r, c, t)
            unpack2(r, t + 2, t + 3, RX + 2 * q); unpack2(r, t + 4, t + 5, RX + 2 * q + 1)
            for p in (0, 2): r(f"v_pk_add_f32 {vr(c+p,2)}, {vr(c+p,2)}, {vr(t+2+p,2)}")
            pack4(r, c, c)
            r(f"buffer_store_dwordx2 {vr(c,2)}, v21, s[{SRD_O}:{SRD_O+3}], 0 offen offset:{(2*hf+q)*32}")
            recs.append(r)
        interleave(a, recs)
        gen.TIMING = tm
    body(0)
    loader_begin(a)
    body(1)
    loader_end(a)

KERNELS = [
    ('k0', k0_init, K0_WGS, 8192, False),
    ('k1', k1_qkv, 256, 5 * SLOT96, True),
    ('k2', k2_attn_wo, 256, 5 * 24576 + 32768 + 2048, True),
    ('k3', k3_ln_w1, 256, 131072, False),
    ('k4', k4_shift_w2, 256, 131072, False),
    ('k5', k5_ln_w3, 240, 5 * SLOT96, False),
    ('k6', k6_w4, 256, 163840, True),
]

def build():
    header = open('cdna_kernels/' + NAME + '.s.ref').read().split('; Override launch')[0]
    launches = [('k0', None)]
    for L in range(2):
        for k in KERNELS[1:]:
            launches.append((k[0], L if k[4] else None))
    info = {k[0]: k for k in KERNELS}
    out = [header.rstrip('\n')]
    def lab(n, L): return f"hh_{n}{'' if L is None else '_l%d' % L}_kernel"
    for n, L in launches:
        k = info[n]
        out.append(f"; @launch kernel={lab(n, L)} grid=({k[2]},1,1) block=({256 if n == 'k0' else 512},1,1) lds={k[3]}")
    out.append('.amdgcn_target "amdgcn-amd-amdhsa--gfx950"')
    out.append('.text')
    descs = []
    for n, fn, nwg, lds, layered in KERNELS:
        a = Asm(); St.n = 0
        fn(a)
        a.label("L_fin")
        if gen.TIMING and n != 'k0':
            a("s_cmp_ge_u32 s101, 4")
            a("s_cbranch_scc1 L_end")
        dump_stamps(a, [k[0] for k in KERNELS].index(n))
        body = a.text().replace('L_', f'L{n}_')
        entries = [(lab(n, 0), 0), (lab(n, 1), 1)] if layered else [(lab(n, None), None)]
        if layered:
            for nm, L in entries:
                out.append(f".globl {nm}\n.p2align 8\n.type {nm},@function\n{nm}:")
                out.append(f"  s_mov_b32 s{S_LAYER}, {L}\n  s_branch L{n}_body")
            out.append(f".p2align 8\nL{n}_body:")
        else:
            nm = entries[0][0]
            out.append(f".globl {nm}\n.p2align 8\n.type {nm},@function\n{nm}:")
        out.append(body.rstrip('\n'))
        out.append(f"L{n}_end:\n  s_endpgm")
        for nm, L in entries: descs.append(nm)
    out.append('.section .rodata,"a"')
    for nm in descs:
        out.append(f""".p2align 6
.amdhsa_kernel {nm}
  .amdhsa_next_free_vgpr 256
  .amdhsa_next_free_sgpr 102
  .amdhsa_accum_offset 256
  .amdhsa_group_segment_fixed_size 0
  .amdhsa_kernarg_size 96
  .amdhsa_user_sgpr_count 2
  .amdhsa_user_sgpr_kernarg_segment_ptr 1
  .amdhsa_system_sgpr_workgroup_id_x 1
.end_amdhsa_kernel""")
    return '\n'.join(out) + '\n'

if __name__ == '__main__':
    if len(sys.argv) > 2 and sys.argv[2] == 'timing': gen.TIMING = True
    txt = build()
    dst = sys.argv[1] if len(sys.argv) > 1 else 'cdna_kernels/' + NAME + '.s'
    open(dst, 'w').write(txt)
    print('wrote', dst, len(txt), 'bytes')
```

```python
import sys
import gen
from gen import (Asm, vr, sr, NAME, S, D, F, H, WS_XA, WS_XB, WS_H, WS_X1, WS_XN, WS_H3, WS_PHIQ, WS_KV,
                 KV_STRIDE, KVZ_OFF, P_X, P_WQKV, P_WPHI, P_WO, P_BX, P_W1, P_W2, P_W3, P_W4, P_OUT, P_DBG, P_WS,
                 SRD_A, SRD_B, SRD_O, SRD_X1, SRD_X2, SRD_X3, S_RT, S_CT, S_W, S_LAYER, LOG2E, lit, prologue, srd,
                 srd_sel, decode_wg, tr_addrs128, tr_addrs64, setup_consts, xlane_sum, bf16r, GELU_C0, GELU_C1,
                 unpack2, row_voff, dpp_allreduce, stamp, dump_stamps, St)

WS_CS = 0x1480000
CS_QKV, CS_W1, CS_W3 = 0x0, 0x2000, 0x3000
SRD_CS = 96

class VM:
    def __init__(self, a): self.a = a; self.q = []
    def issue(self, tag): self.q.append(tag)
    def wait(self, tag):
        idx = [i for i, t in enumerate(self.q) if t == tag]
        if not idx: return
        idx = idx[-1]
        n = len(self.q) - 1 - idx
        self.a(f"s_waitcnt vmcnt({min(n, 63)})")
        self.q = self.q[idx + 1:]
    def wait_all(self):
        self.a("s_waitcnt vmcnt(0)"); self.q = []

PEND = []
import os
def FL(n, d): return int(os.environ.get(n, str(d)))
def srd_sel(a, dst, base0, off0, base1, off1, size):
    a(f"s_add_u32 s{dst}, s{base0}, {off0}")
    a(f"s_addc_u32 s{dst+1}, s{base0+1}, 0")
    a(f"s_add_u32 s{dst+2}, s{base1}, {off1}")
    a(f"s_addc_u32 s{dst+3}, s{base1+1}, 0")
    a(f"s_cmp_eq_u32 s{S_LAYER}, 0")
    a(f"s_cselect_b32 s{dst}, s{dst}, s{dst+2}")
    a(f"s_cselect_b32 s{dst+1}, s{dst+1}, s{dst+3}")
    a(f"s_mov_b32 s{dst+2}, {size}")
    a(f"s_mov_b32 s{dst+3}, 0x00020000")
def kwait(a, code=None, st=True):
    a("s_waitcnt lgkmcnt(0)")
    if st: stamp(a)
    if code: code()
def prologue8(a, nwg):
    a(f"""
    s_cmp_ge_u32 s2, {nwg}
    s_cbranch_scc1 L_end
    """)
    stamp(a)
    a(f"""
    s_load_dwordx16 s[16:31], s[0:1], 0
    s_load_dwordx8 s[32:39], s[0:1], 64
    v_and_b32 v1, 63, v0
    v_lshrrev_b32 v4, 6, v0
    v_and_b32 v2, 15, v0
    v_readfirstlane_b32 s{S_W}, v4
    v_lshrrev_b32 v3, 4, v1
    """)
    a(f"s_mov_b32 s101, s{S_W}")
    a(f"s_and_b32 s{S_W}, s{S_W}, 3")
def split(a):
    a("s_cmp_ge_u32 s101, 4")
    a("s_cbranch_scc1 L_loader")
def loader_begin(a):
    a("s_branch L_fin")
    a.label("L_loader")
PREFETCH = False
EPI8 = False
def loader_end(a, pf=None):
    if pf and PREFETCH:
        ptr, nbytes, n = pf
        srd(a, SRD_X3, ptr, 0, nbytes)
        a("s_lshr_b32 s6, s2, 3")
        a(f"s_lshl_b32 s6, s6, 2")
        a(f"s_add_u32 s6, s6, s{S_W}")
        a(f"s_mul_i32 s6, s6, {n*1024}")
        a("v_lshlrev_b32 v4, 4, v1")
        for i in range(n):
            if i and i % 4 == 0: a("s_add_u32 s6, s6, 4096")
            a(f"buffer_load_dwordx4 {vr(32+4*i,4)}, v4, s[{SRD_X3}:{SRD_X3+3}], s6 offen offset:{(i%4)*1024}")
        a("s_waitcnt vmcnt(0)")
    a("s_branch L_end")

class Rec:
    def __init__(self): self.l = []
    def __call__(self, text):
        for line in text.strip('\n').split('\n'):
            line = line.strip()
            if line: self.l.append(line)
def interleave(a, recs):
    n = max(len(r.l) for r in recs)
    for i in range(n):
        for r in recs:
            if i < len(r.l): a(r.l[i])

def handover_put(a, regs):
    a(f"s_lshl_b32 s6, s{S_W}, 13")
    a("v_lshlrev_b32 v24, 4, v1")
    a("v_add_u32 v24, s6, v24")
    for i, r in enumerate(regs):
        a(f"ds_write_b128 v24, {vr(r,4)} offset:{i*1024}")
    a("s_waitcnt lgkmcnt(0)")
    a("s_barrier")
def handover_get(a, regs):
    a(f"s_lshl_b32 s6, s{S_W}, 13")
    a("v_lshlrev_b32 v24, 4, v1")
    a("v_add_u32 v24, s6, v24")
    a("s_barrier")
    for i, r in enumerate(regs):
        a(f"ds_read_b128 {vr(r,4)}, v24 offset:{i*1024}")
    a("s_waitcnt vmcnt(0) lgkmcnt(0)")
    a("s_nop 7")

def barrier(a, st=True):
    if st: stamp(a)
    a("s_barrier")
    if st: stamp(a)

def a_voff256(a, dst, rs, rows_per_wg, rows_per_wave, t):
    a(f"s_mul_i32 s6, s{S_RT}, {rows_per_wg}")
    a(f"s_mul_i32 s7, s{S_W}, {rows_per_wave}")
    a(f"s_add_u32 s6, s6, s7")
    a(f"s_mov_b32 s7, {rs}")
    for t4 in range(4):
        a(f"v_add_u32 v{t}, {4*t4}, v3")
        a(f"v_xor_b32 v{t+1}, v{t}, v2")
        a(f"v_add_u32 v{t}, s6, v{t}")
        a(f"v_mul_lo_u32 v{t}, v{t}, s7")
        a(f"v_lshl_add_u32 v{dst+t4}, v{t+1}, 4, v{t}")

def a_voff128(a, dst, rs, rows_per_wg, rows_per_wave, t):
    a(f"s_mul_i32 s6, s{S_RT}, {rows_per_wg}")
    a(f"s_mul_i32 s7, s{S_W}, {rows_per_wave}")
    a(f"s_add_u32 s6, s6, s7")
    a(f"s_mov_b32 s7, {rs}")
    a(f"v_lshrrev_b32 v{t+2}, 3, v1")
    a(f"v_and_b32 v{t+3}, 7, v1")
    for t2 in range(2):
        a(f"v_add_u32 v{t}, {4*t2}, v3")
        a(f"v_xor_b32 v{t+1}, v{t}, v{t+3}")
        a(f"v_add_u32 v{t}, {8*t2}, v{t+2}")
        a(f"v_add_u32 v{t}, s6, v{t}")
        a(f"v_mul_lo_u32 v{t}, v{t}, s7")
        a(f"v_lshl_add_u32 v{dst+t2}, v{t+1}, 4, v{t}")

def a_rd256(a, dst, t, wave_bytes):
    a(f"v_xor_b32 v{t}, v3, v2")
    a(f"v_lshlrev_b32 v{t}, 4, v{t}")
    a(f"v_lshl_add_u32 v{t}, v2, 8, v{t}")
    a(f"s_mul_i32 s6, s{S_W}, {wave_bytes}")
    for j in range(4):
        a(f"v_xor_b32 v{dst+j}, {j << 6}, v{t}")
        a(f"v_add_u32 v{dst+j}, s6, v{dst+j}")

def a_rd128(a, dst, t, wave_bytes):
    a(f"v_lshrrev_b32 v{t}, 1, v2")
    a(f"v_xor_b32 v{t}, v3, v{t}")
    a(f"v_lshlrev_b32 v{t}, 4, v{t}")
    a(f"v_lshl_add_u32 v{t}, v2, 7, v{t}")
    a(f"s_mul_i32 s6, s{S_W}, {wave_bytes}")
    for j in range(2):
        a(f"v_xor_b32 v{dst+j}, {j << 6}, v{t}")
        a(f"v_add_u32 v{dst+j}, s6, v{dst+j}")

def dma(a, vm, tag, voff, srdx, soff, imm, m0_sgpr_expr):
    sg, c = m0_sgpr_expr
    if PEND:
        f = PEND.pop(); kwait(a, f, False)
    a(f"s_add_u32 m0, s{sg}, {c}")
    if imm:
        if soff == 0: a(f"s_mov_b32 s7, {imm}")
        else: a(f"s_add_u32 s7, {soff}, {imm}")
        soff = 's7'
    else:
        a("s_nop 0")
    a(f"buffer_load_dwordx4 v{voff}, s[{srdx}:{srdx+3}], {soff} offen lds")
    vm.issue(tag)

def b_voff128(a, voff, t, rs, swz):
    a(f"v_lshrrev_b32 v{t}, 3, v1")
    a(f"v_and_b32 v{voff}, 7, v1")
    if swz == 'std':
        a(f"v_and_b32 v{t+1}, 2, v{t}")
        a(f"s_and_b32 s6, s{S_W}, 1")
        a(f"s_lshl_b32 s6, s6, 2")
        a(f"v_or_b32 v{t+1}, s6, v{t+1}")
    else:
        a(f"v_and_b32 v{t+1}, 6, v{t}")
    a(f"v_xor_b32 v{voff}, v{voff}, v{t+1}")
    a(f"v_lshlrev_b32 v{voff}, 4, v{voff}")
    a(f"s_mov_b32 s6, {rs}")
    a(f"v_mul_lo_u32 v{t}, v{t}, s6")
    a(f"v_add_u32 v{voff}, v{voff}, v{t}")

def b_voff64(a, voff, t, rs):
    a(f"v_lshrrev_b32 v{t}, 2, v1")
    a(f"v_and_b32 v{voff}, 3, v1")
    a(f"v_lshrrev_b32 v{t+1}, 5, v1")
    a(f"v_lshlrev_b32 v{t+1}, 1, v{t+1}")
    a(f"v_xor_b32 v{voff}, v{voff}, v{t+1}")
    a(f"v_lshlrev_b32 v{voff}, 4, v{voff}")
    a(f"s_mov_b32 s6, {rs}")
    a(f"v_mul_lo_u32 v{t}, v{t}, s6")
    a(f"v_add_u32 v{voff}, v{voff}, v{t}")

def tr_addrs64s(a, dst, vt, sub_bytes):
    a(f"v_lshrrev_b32 v{vt}, 2, v2")
    a(f"v_and_b32 v{vt+1}, 3, v2")
    a(f"v_lshl_add_u32 v{vt+2}, v3, 3, v{vt}")
    a(f"v_and_b32 v{vt+3}, 1, v3")
    a(f"v_lshlrev_b32 v{vt+3}, 1, v{vt+3}")
    a(f"v_lshlrev_b32 v{vt+2}, 6, v{vt+2}")
    a(f"v_and_b32 v{vt+4}, 1, v{vt+1}")
    a(f"v_lshl_add_u32 v{vt+2}, v{vt+4}, 3, v{vt+2}")
    a(f"v_lshrrev_b32 v{vt+1}, 1, v{vt+1}")
    for n2 in range(2):
        a(f"v_or_b32 v{vt+4}, {2*n2}, v{vt+1}")
        a(f"v_xor_b32 v{vt+4}, v{vt+4}, v{vt+3}")
        a(f"v_lshl_add_u32 v{dst+n2}, v{vt+4}, 4, v{vt+2}")
    for j in (1, 2):
        for n2 in range(2):
            a(f"v_add_u32 v{dst+2*j+n2}, {j*sub_bytes}, v{dst+n2}")

def ln_finish(a, SUM, G, mb, rs, t):
    g = t; t0 = t + 1; mean = t + 3
    a(f"v_cndmask_b32 v{g}, 0, v{G}, s[64:65]")
    for r in range(1, 4):
        a(f"v_cndmask_b32 v{g}, v{g}, v{G+r}, s[{64+2*r}:{65+2*r}]")
    a(f"v_mul_f32 v{mean}, {lit(1.0/512)}, v{SUM}")
    xlane_sum(a, g, t0)
    bf16r(a, mb, mean, t0)
    a(f"v_mul_f32 v{g}, {lit(1.0/512)}, v{g}")
    a(f"v_fma_f32 v{g}, -v{mean}, v{mean}, v{g}")
    a(f"v_max_f32 v{g}, 0, v{g}")
    bf16r(a, g, g, t0)
    a(f"v_add_f32 v{g}, {lit(1e-5)}, v{g}")
    bf16r(a, g, g, t0)
    a(f"v_sqrt_f32 v{g}, v{g}")
    bf16r(a, g, g, t0)
    a(f"v_rcp_f32 v{rs}, v{g}")

def gelu4(a, c, t, vc0):
    for p in (0, 2):
        a(f"v_pk_mul_f32 {vr(t+p,2)}, {vr(c+p,2)}, {vr(c+p,2)}")
    for p in (0, 2):
        a(f"v_pk_fma_f32 {vr(t+p,2)}, {vr(t+p,2)}, {vr(vc0+2,2)}, {vr(vc0,2)}")
    for p in (0, 2):
        a(f"v_pk_mul_f32 {vr(t+p,2)}, {vr(t+p,2)}, {vr(c+p,2)}")
    for r in range(4): a(f"v_exp_f32 v{t+r}, v{t+r}")
    for p in (0, 2):
        a(f"v_pk_add_f32 {vr(t+p,2)}, {vr(t+p,2)}, 1.0 op_sel_hi:[1,0]")
    for r in range(4): a(f"v_rcp_f32 v{t+r}, v{t+r}")
    for p in (0, 2):
        a(f"v_pk_mul_f32 {vr(c+p,2)}, {vr(c+p,2)}, {vr(t+p,2)}")

def fold4(a, c, cs, nmb2, rs2):
    for p in (0, 2):
        a(f"v_pk_fma_f32 {vr(c+p,2)}, {vr(cs+p,2)}, {vr(nmb2,2)}, {vr(c+p,2)}")
    for p in (0, 2):
        a(f"v_pk_mul_f32 {vr(c+p,2)}, {vr(c+p,2)}, {vr(rs2,2)}")

def round4(a, c, t):
    a(f"v_cvt_pk_bf16_f32 v{t}, v{c}, v{c+1}")
    a(f"v_cvt_pk_bf16_f32 v{t+1}, v{c+2}, v{c+3}")
    unpack2(a, c, c + 1, t); unpack2(a, c + 2, c + 3, t + 1)

def pack4(a, dst, c):
    a(f"v_cvt_pk_bf16_f32 v{dst}, v{c}, v{c+1}")
    a(f"v_cvt_pk_bf16_f32 v{dst+1}, v{c+2}, v{c+3}")

import os
PAD = int(os.environ.get('PAD', '4352'))
WS_WQC, WS_W2C, WS_W4C = 0x1500000, 0x1700000, 0x1900000
QS = 32768 + PAD
W2S = 65536 + PAD
W4C_STRIDE = 1536 * 128 + PAD
K0_WGS = 86
def k0_init(a):
    prologue(a, K0_WGS)
    srd(a, SRD_O, P_WS, WS_KV, 2 * KV_STRIDE)
    srd(a, SRD_CS, P_WS, WS_CS, 0x5000)
    a(f"""
    s_cmp_ge_u32 s2, 34
    s_cbranch_scc1 L_nozero
    s_cmp_ge_u32 s2, 17
    s_cselect_b32 s6, {KV_STRIDE - 17 * 4096}, 0
    s_lshl_b32 s7, s2, 12
    s_add_u32 s6, s6, s7
    v_lshlrev_b32 v4, 4, v0
    v_mov_b32 v8, 0
    v_mov_b32 v9, 0
    v_mov_b32 v10, 0
    v_mov_b32 v11, 0
    buffer_store_dwordx4 v[8:11], v4, s[{SRD_O}:{SRD_O+3}], s6 offen
    """)
    a.label("L_nozero")
    a(f"""
    s_mov_b32 s{SRD_B}, s{P_WQKV}
    s_mov_b32 s{SRD_B+1}, s{P_WQKV+1}
    s_mov_b32 s{SRD_B+2}, {512*3072}
    s_mov_b32 s{SRD_B+3}, 0x00020000
    s_mov_b32 s8, 3072
    s_mov_b32 s9, s2
    s_mov_b32 s10, {CS_QKV}
    s_mov_b32 s13, 0
    s_mul_i32 s14, s2, {2*QS}
    s_add_u32 s14, s14, {WS_WQC}
    s_mov_b32 s15, 1
    s_cmp_lt_u32 s2, 24
    s_cbranch_scc1 L_sel
    s_mov_b32 s15, 0
    s_mov_b32 s{SRD_B}, s{P_W1}
    s_mov_b32 s{SRD_B+1}, s{P_W1+1}
    s_mov_b32 s{SRD_B+2}, {512*1024}
    s_mov_b32 s8, 1024
    s_sub_u32 s9, s2, 24
    s_mov_b32 s10, {CS_W1}
    s_cmp_lt_u32 s2, 32
    s_cbranch_scc1 L_sel
    s_mov_b32 s{SRD_B}, s{P_W3}
    s_mov_b32 s{SRD_B+1}, s{P_W3+1}
    s_mov_b32 s{SRD_B+2}, {512*F*2}
    s_mov_b32 s8, {F*2}
    s_sub_u32 s9, s2, 32
    s_mov_b32 s10, {CS_W3}
    s_cmp_lt_u32 s2, 54
    s_cbranch_scc1 L_sel
    s_mov_b32 s15, 2
    s_mov_b32 s{SRD_B}, s{P_W2}
    s_mov_b32 s{SRD_B+1}, s{P_W2+1}
    s_mov_b32 s{SRD_B+2}, {512*1024}
    s_mov_b32 s8, 1024
    s_sub_u32 s9, s2, 54
    s_mul_i32 s14, s9, {W2S}
    s_add_u32 s14, s14, {WS_W2C}
    s_cmp_lt_u32 s2, 62
    s_cbranch_scc1 L_sel
    s_mov_b32 s{SRD_B}, s{P_W4}
    s_mov_b32 s{SRD_B+1}, s{P_W4+1}
    s_mov_b32 s{SRD_B+2}, {F*1024}
    s_sub_u32 s9, s2, 62
    s_lshr_b32 s6, s9, 3
    s_and_b32 s9, s9, 7
    s_lshl_b32 s13, s6, 19
    s_mul_i32 s14, s9, {W4C_STRIDE}
    s_lshl_b32 s6, s6, 16
    s_add_u32 s14, s14, s6
    s_add_u32 s14, s14, {WS_W4C}
    """)
    a.label("L_sel")
    a(f"""
    v_lshrrev_b32 v4, 3, v0
    v_and_b32 v5, 7, v0
    s_lshl_b32 s11, s8, 4
    v_mul_lo_u32 v6, v4, s11
    v_lshl_add_u32 v6, v5, 4, v6
    s_lshl_b32 s12, s9, 7
    s_add_u32 s12, s12, s13
    """)
    for i in range(16):
        a(f"buffer_load_dwordx4 {vr(32+4*i,4)}, v6, s[{SRD_B}:{SRD_B+3}], s12 offen")
        if i < 15: a("s_add_u32 s12, s12, s8")
    a(f"""
    s_add_u32 s{SRD_X1}, s{P_WS}, s14
    s_addc_u32 s{SRD_X1+1}, s{P_WS+1}, 0
    s_mov_b32 s{SRD_X1+2}, {2*QS}
    s_mov_b32 s{SRD_X1+3}, 0x00020000
    v_lshlrev_b32 v7, 11, v4
    v_lshl_add_u32 v7, v5, 4, v7
    v_lshrrev_b32 v12, 2, v5
    v_mul_u32_u24 v12, {QS}, v12
    v_lshl_add_u32 v12, v4, 10, v12
    v_and_b32 v13, 3, v5
    v_lshl_add_u32 v12, v13, 4, v12
    s_cmp_lg_u32 s15, 2
    s_cbranch_scc1 L_sum
    """)
    for i in range(16):
        a(f"s_waitcnt vmcnt({15})")
        a(f"buffer_store_dwordx4 {vr(32+4*i,4)}, v7, s[{SRD_X1}:{SRD_X1+3}], 0 offen offset:{i*128}")
    a("s_branch L_fin")
    a.label("L_sum")
    for r in range(8): a(f"v_mov_b32 v{16+r}, 0")
    for i in range(16):
        a(f"s_waitcnt vmcnt({15-i})")
        for p in range(4):
            unpack2(a, 24, 25, 32 + 4 * i + p)
            a(f"v_pk_add_f32 {vr(16+2*p,2)}, {vr(16+2*p,2)}, v[24:25]")
    a("s_cmp_lg_u32 s15, 1")
    a("s_cbranch_scc1 L_nocopy")
    for i in range(16):
        a(f"buffer_store_dwordx4 {vr(32+4*i,4)}, v12, s[{SRD_X1}:{SRD_X1+3}], 0 offen offset:{i*64}")
    a.label("L_nocopy")
    a("v_lshlrev_b32 v6, 5, v0")
    a("ds_write_b128 v6, v[16:19]")
    a("ds_write_b128 v6, v[20:23] offset:16")
    a("s_waitcnt lgkmcnt(0)")
    a("s_barrier")
    a(f"s_cmp_lg_u32 s{S_W}, 0")
    a("s_cbranch_scc1 L_fin")
    a("v_lshlrev_b32 v6, 2, v1")
    for i in range(32):
        a(f"ds_read_b32 v{100+i}, v6 offset:{i*256}")
    a("s_waitcnt lgkmcnt(0)")
    for st in (16, 8, 4, 2, 1):
        for i in range(st):
            a(f"v_add_f32 v{100+i}, v{100+i}, v{100+st+i}")
    a("s_lshl_b32 s12, s9, 8")
    a("s_add_u32 s12, s12, s10")
    a(f"buffer_store_dword v100, v6, s[{SRD_CS}:{SRD_CS+3}], s12 offen")

def gemm64_chunk(a, steps, ard, brd, aslot, bslot, acc, abuf, bbuf, first, xreg=None, stats=None):
    def lds_off(base_reg, off):
        return base_reg, off
    def reads(j):
        if xreg is None:
            a(f"ds_read_b128 {vr(abuf + (j % 2) * 4, 4)}, v{ard + j} offset:{aslot}")
        for nt in range(4):
            for hh in range(2):
                a(f"ds_read_b64_tr_b16 {vr(bbuf + (j % 2) * 16 + nt * 4 + hh * 2, 2)}, v{brd + nt} offset:{bslot + j * 4096 + hh * 512}")
    per = 8 + (1 if xreg is None else 0)
    reads(0)
    for j in range(steps):
        if j + 1 < steps:
            reads(j + 1); a(f"s_waitcnt lgkmcnt({per})")
        else:
            a("s_waitcnt lgkmcnt(0)")
        x = vr(abuf + (j % 2) * 4, 4) if xreg is None else vr(xreg(j), 4)
        z = first and j == 0
        for nt in range(4):
            c = vr(acc + 4 * nt, 4)
            a(f"v_mfma_f32_16x16x32_bf16 {c}, {vr(bbuf + (j % 2) * 16 + nt * 4, 4)}, {x}, {'0' if z else c}")
        if stats is not None:
            SU, G = stats
            a(f"v_mfma_f32_16x16x32_bf16 {vr(SU,4)}, v[8:11], {x}, {'0' if z else vr(SU,4)}")
            a(f"v_mfma_f32_16x16x32_bf16 {vr(G,4)}, {x}, {x}, {'0' if z else vr(G,4)}")

def gemm64_loop(a, chunks, acc, abuf, bbuf, stats=None, stamps=(), tail=None):
    steps = [(c, j) for c, ch in enumerate(chunks) for j in range(ch[0])]
    def reads(n):
        c, j = steps[n]; _, ar, ao, br, bo = chunks[c]; p = n % 2
        L = [f"ds_read_b128 {vr(abuf + p * 4, 4)}, v{ar + j} offset:{ao}"]
        for nt in range(4):
            for hh in range(2):
                L.append(f"ds_read_b64_tr_b16 {vr(bbuf + p * 16 + nt * 4 + hh * 2, 2)}, v{br + nt} offset:{bo + j * 4096 + hh * 512}")
        return L
    def step(n, nxt):
        z = n == 0; p = n % 2
        nxt = list(nxt); issued = 0
        def rd(k):
            nonlocal issued
            for _ in range(k):
                if nxt: a(nxt.pop(0)); issued += 1
        x = vr(abuf + p * 4, 4)
        per = (2, 2, 2, 1, 1, 1) if stats is not None else (3, 2, 2, 2)
        for nt in range(4):
            a(f"s_waitcnt lgkmcnt({6 - 2 * nt + issued})")
            c = vr(acc + 4 * nt, 4)
            a(f"v_mfma_f32_16x16x32_bf16 {c}, {vr(bbuf + p * 16 + nt * 4, 4)}, {x}, {'0' if z else c}")
            rd(per[nt])
        if stats is not None:
            SU, G = stats
            a(f"v_mfma_f32_16x16x32_bf16 {vr(SU,4)}, v[8:11], {x}, {'0' if z else vr(SU,4)}")
            rd(per[4])
            a(f"v_mfma_f32_16x16x32_bf16 {vr(G,4)}, {x}, {x}, {'0' if z else vr(G,4)}")
            rd(per[5])
        assert not nxt
    for n, (c, j) in enumerate(steps):
        if j == 0:
            barrier(a, c in stamps)
        if n == 0:
            for l in reads(0): a(l)
        else:
            step(n - 1, reads(n))
    step(len(steps) - 1, [])

class Banked:
    def __init__(self, a, base, n, extra):
        self.sets = [base] + extra
        for k, e in enumerate(extra):
            for i in range(n):
                a(f"v_add_u32 v{e+i}, {(k+1) << 16}, v{base+i}")
    def get(self, off):
        return self.sets[off >> 16], off & 0xffff

def k4_shift_w2(a):
    vm = VM(a)
    prologue8(a, 256); decode_wg(a, 4)
    def srds_ld():
        srd(a, SRD_A, P_WS, WS_H, 0x200000)
        srd(a, SRD_B, P_WS, WS_W2C, 8 * W2S)
    def srds_cp():
        srd(a, SRD_O, P_WS, WS_X1, 0x200000)
        srd(a, SRD_X1, P_WS, WS_XB, 0x200000)
    a(f"s_lshl_b32 s12, s{S_CT}, 7")
    split(a)
    row_voff(a, 21, 64, 16, 1024, with_g=8)
    a(f"v_add_u32 v21, s12, v21")
    kwait(a, srds_cp)
    XB = 80
    for nt in range(4):
        a(f"buffer_load_dwordx2 {vr(XB+2*nt,2)}, v21, s[{SRD_X1}:{SRD_X1+3}], 0 offen offset:{nt*32}")
    a_rd256(a, 4, 24, 4096)
    tr_addrs128(a, 12, 24, 'std')
    for nt in range(4): a(f"v_add_u32 v{12+nt}, 0x10000, v{12+nt}")
    gemm64_loop(a, [(4, 4, c * 16384, 12, c * 16384) for c in range(4)], 32, 24, 48, stamps=(0, 1, 2, 3))
    stamp(a)
    a("s_waitcnt vmcnt(0)")
    for nt in range(4):
        c = 32 + 4 * nt
        round4(a, c, 24)
        unpack2(a, 26, 27, XB + 2 * nt); unpack2(a, 28, 29, XB + 2 * nt + 1)
        for p in (0, 2): a(f"v_pk_add_f32 {vr(c+p,2)}, {vr(c+p,2)}, {vr(26+p,2)}")
        pack4(a, c, c)
        a(f"buffer_store_dwordx2 {vr(c,2)}, v21, s[{SRD_O}:{SRD_O+3}], 0 offen offset:{nt*32}")
    loader_begin(a)
    PEND.append(srds_ld)
    AV, BV = 16, 20
    a_voff256(a, AV, 1024, 64, 16, 24)
    b_voff128(a, BV, 24, 128, 'std')
    a(f"s_lshl_b32 s13, s{S_W}, 12")
    a(f"s_lshl_b32 s14, s{S_W}, 10")
    a(f"s_mul_i32 s10, s{S_CT}, {W2S}")
    a(f"s_add_u32 s10, s10, s14")
    if FL('ROT4', 0): a(f"s_mov_b32 s15, s{S_RT}")
    else: a("s_mov_b32 s15, 0")
    def issue(c):
        a(f"s_add_u32 s8, s15, {c}")
        a(f"s_and_b32 s8, s8, 3")
        a(f"s_lshl_b32 s9, s8, 14")
        a(f"s_add_u32 s9, s9, s10")
        a(f"s_mov_b32 s11, {(-1024) & 0xffffffff}")
        for cc, sh in ((1, 1), (2, -2), (3, 2)):
            a(f"s_cmp_eq_u32 s8, {cc}")
            a(f"s_cselect_b32 s11, {(sh * 1024 + cc * 256) & 0xffffffff}, s11")
        for t4 in range(4):
            a(f"v_add_u32 v{88+4*(c%2)+t4}, s11, v{AV+t4}")
        for ab in ((1, 0) if FL('BF4', 0) else (0, 1)):
            if ab == 0:
                for t4 in range(4):
                    dma(a, vm, ('ch', c), 88 + 4 * (c % 2) + t4, SRD_A, 0, 0, (13, c * 16384 + t4 * 1024))
            else:
                for i in range(4):
                    dma(a, vm, ('ch', c), BV, SRD_B, 's9', i * 4096, (14, 65536 + c * 16384 + i * 4096))
    issue(0); issue(1)
    for c in range(4):
        vm.wait(('ch', c)); a("s_barrier")
        if c + 2 < 4: issue(c + 2)
    loader_end(a, (P_W3, 512*F*2, 11))

def pair_exchange(a, hf, send, recv, base, t):
    n = len(send)
    a(f"s_mul_i32 s6, s{S_W}, {2*n*1024}")
    a(f"v_lshlrev_b32 v{t}, 4, v1")
    a(f"v_add_u32 v{t}, s6, v{t}")
    if base: a(f"v_add_u32 v{t}, {base}, v{t}")
    for i, r in enumerate(send):
        a(f"ds_write_b128 v{t}, {vr(r,4)} offset:{(hf*n + i)*1024}")
    a("s_waitcnt lgkmcnt(0)")
    a("s_barrier")
    for i, r in enumerate(recv):
        a(f"ds_read_b128 {vr(r,4)}, v{t} offset:{((1-hf)*n + i)*1024}")

def ln_stats(a, SUM, G, mean, var, t):
    t0 = t
    a(f"v_cndmask_b32 v{var}, 0, v{G}, s[64:65]")
    for r in range(1, 4):
        a(f"v_cndmask_b32 v{var}, v{var}, v{G+r}, s[{64+2*r}:{65+2*r}]")
    a(f"v_mul_f32 v{mean}, {lit(1.0/512)}, v{SUM}")
    xlane_sum(a, var, t0)
    a(f"v_mul_f32 v{var}, {lit(1.0/512)}, v{var}")
    a(f"v_fma_f32 v{var}, -v{mean}, v{mean}, v{var}")
    a(f"v_max_f32 v{var}, 0, v{var}")
def ln_scale(a, var, rs, t):
    bf16r(a, rs, var, t)
    a(f"v_add_f32 v{rs}, {lit(1e-5)}, v{rs}")
    bf16r(a, rs, rs, t)
    a(f"v_sqrt_f32 v{rs}, v{rs}")
    bf16r(a, rs, rs, t)
    a(f"v_rcp_f32 v{rs}, v{rs}")

def k3_ln_w1(a):
    vm = VM(a)
    prologue8(a, 256); decode_wg(a, 4)
    def srds_ld():
        srd(a, SRD_A, P_WS, WS_XA, 0x200000)
        srd(a, SRD_B, P_W1, 0, 512 * 1024)
    def srds_cp():
        srd(a, SRD_A, P_WS, WS_XA, 0x200000)
        srd(a, SRD_O, P_WS, WS_H, 0x200000)
        srd(a, SRD_X1, P_WS, WS_XB, 0x200000)
        srd(a, SRD_CS, P_WS, WS_CS, 0x5000)
    a(f"s_lshl_b32 s12, s{S_CT}, 7")
    split(a)
    CSR = 144
    row_voff(a, 21, 64, 16, 1024, with_g=8)
    a(f"v_add_u32 v21, s12, v21")
    kwait(a, srds_cp)
    RX = 80
    for nt in range(4):
        a(f"buffer_load_dwordx2 {vr(RX+2*nt,2)}, v21, s[{SRD_A}:{SRD_A+3}], 0 offen offset:{nt*32}")
    a("v_lshlrev_b32 v24, 4, v3")
    a(f"s_lshl_b32 s6, s{S_CT}, 8")
    a(f"s_add_u32 s6, s6, {CS_W1}")
    for nt in range(4):
        a(f"buffer_load_dwordx4 {vr(CSR+4*nt,4)}, v24, s[{SRD_CS}:{SRD_CS+3}], s6 offen offset:{nt*64}")
    setup_consts(a)
    a_rd256(a, 4, 24, 4096)
    tr_addrs128(a, 12, 24, 'std')
    for nt in range(4): a(f"v_add_u32 v{12+nt}, 0x10000, v{12+nt}")
    SU, G = 160, 164
    GC = 172
    a(f"v_mov_b32 v{GC}, {lit(GELU_C0)}"); a(f"v_mov_b32 v{GC+1}, {lit(GELU_C0)}")
    a(f"v_mov_b32 v{GC+2}, {lit(GELU_C1)}"); a(f"v_mov_b32 v{GC+3}, {lit(GELU_C1)}")
    gemm64_loop(a, [(4, 4, c * 16384, 12, c * 16384) for c in range(4)], 32, 24, 48, stats=(SU, G), stamps=(0, 1, 2, 3))
    stamp(a)
    MEAN, VAR, MB1, RS1, M2, V2 = 176, 177, 178, 180, 182, 183
    MB, RS = 168, 170
    ln_stats(a, SU, G, MEAN, VAR, 24)
    bf16r(a, MB1, MEAN, 24)
    ln_scale(a, VAR, RS1, 24)
    a(f"v_sub_f32 v{M2}, v{MEAN}, v{MB1}")
    a(f"v_mul_f32 v{V2}, v{VAR}, v{RS1}")
    a(f"v_mul_f32 v{M2}, v{M2}, v{RS1}")
    a(f"v_mul_f32 v{V2}, v{V2}, v{RS1}")
    bf16r(a, M2, M2, 24)
    ln_scale(a, V2, RS, 25)
    a(f"v_mul_f32 v{MB1}, v{MB1}, v{RS1}")
    a(f"v_rcp_f32 v24, v{RS1}")
    a(f"v_add_f32 v{MB}, v{MB1}, v{M2}")
    a(f"v_sub_f32 v{MB1}, 0, v{MB1}")
    a(f"v_mul_f32 v{MB}, v{MB}, v24")
    a(f"v_mul_f32 v{RS}, v{RS}, v{RS1}")
    a(f"v_sub_f32 v{MB}, 0, v{MB}")
    a(f"v_mov_b32 v{RS+1}, v{RS}")
    a(f"v_mov_b32 v{MB+1}, v{MB}")
    a(f"v_mov_b32 v{RS1+1}, v{RS1}")
    a(f"v_mov_b32 v{MB1+1}, v{MB1}")
    a("s_waitcnt vmcnt(0)")
    for np_ in range(2):
        recs = []
        for q in range(2):
            nt = 2 * np_ + q
            r = Rec()
            c = 32 + 4 * nt
            fold4(r, c, CSR + 4 * nt, MB, RS)
            round4(r, c, 24 + 2 * q)
            gelu4(r, c, 184 + 4 * q, GC)
            pack4(r, c, c)
            r(f"buffer_store_dwordx2 {vr(c,2)}, v21, s[{SRD_O}:{SRD_O+3}], 0 offen offset:{nt*32}")
            recs.append(r)
        interleave(a, recs)
    recs = []
    for nt in range(4):
        r = Rec()
        t = 96 + 4 * nt
        unpack2(r, t, t + 1, RX + 2 * nt); unpack2(r, t + 2, t + 3, RX + 2 * nt + 1)
        for p in (0, 2): r(f"v_pk_fma_f32 {vr(t+p,2)}, {vr(t+p,2)}, {vr(RS1,2)}, {vr(MB1,2)}")
        pack4(r, t, t)
        r(f"buffer_store_dwordx2 {vr(t,2)}, v21, s[{SRD_X1}:{SRD_X1+3}], 0 offen offset:{nt*32}")
        recs.append(r)
    interleave(a, recs)
    loader_begin(a)
    PEND.append(srds_ld)
    AV, BV = 16, 20
    a_voff256(a, AV, 1024, 64, 16, 24)
    b_voff128(a, BV, 24, 1024, 'std')
    a(f"s_lshl_b32 s13, s{S_W}, 12")
    a(f"s_lshl_b32 s14, s{S_W}, 10")
    a(f"s_mul_i32 s10, s{S_W}, {8*1024}")
    a(f"s_add_u32 s10, s10, s12")
    ROT = os.environ.get('ROT', '3')
    if ROT == '1': a(f"s_add_u32 s15, s{S_CT}, s{S_RT}")
    elif ROT == '2': a(f"s_mov_b32 s15, s{S_CT}")
    elif ROT == '3': a(f"s_mov_b32 s15, s{S_RT}")
    else: a("s_mov_b32 s15, 0")
    def issue(c):
        a(f"s_add_u32 s8, s15, {c}")
        a(f"s_and_b32 s8, s8, 3")
        a(f"s_lshl_b32 s9, s8, 17")
        a(f"s_add_u32 s9, s9, s10")
        a(f"s_lshl_b32 s8, s8, 8")
        for ab in ((0, 1) if os.environ.get('BF', '1') == '0' else (1, 0)):
            if ab == 0:
                for t4 in range(4):
                    dma(a, vm, ('ch', c), AV + t4, SRD_A, 's8', 0, (13, c * 16384 + t4 * 1024))
            else:
                for i in range(4):
                    dma(a, vm, ('ch', c), BV, SRD_B, 's9', i * 32768, (14, 65536 + c * 16384 + i * 4096))
    issue(0); issue(1)
    for c in range(4):
        vm.wait(('ch', c)); a("s_barrier")
        if c + 2 < 4: issue(c + 2)
    loader_end(a)

def k6_w4(a):
    vm = VM(a)
    prologue8(a, 256); decode_wg(a, 4)
    def srds_ld():
        srd(a, SRD_A, P_WS, WS_H3, S * F * 2)
        srd(a, SRD_B, P_WS, WS_W4C, 8 * W4C_STRIDE)
    def srds_cp():
        srd_sel(a, SRD_O, P_WS, WS_XN, P_OUT, 0, 0x200000)
        srd(a, SRD_X1, P_WS, WS_X1, 0x200000)
        srd(a, SRD_X2, P_WS, WS_XA, 0x200000)
    NS, NCH, NI = 5, 11, 2
    a(f"s_lshl_b32 s12, s{S_CT}, 7")
    split(a)
    row_voff(a, 21, 64, 16, 1024, with_g=8)
    a(f"v_add_u32 v21, s12, v21")
    kwait(a, srds_cp)
    R1, R2 = 96, 104
    for nt in range(4):
        a(f"buffer_load_dwordx2 {vr(R1+2*nt,2)}, v21, s[{SRD_X1}:{SRD_X1+3}], 0 offen offset:{nt*32}")
        a(f"buffer_load_dwordx2 {vr(R2+2*nt,2)}, v21, s[{SRD_X2}:{SRD_X2+3}], 0 offen offset:{nt*32}")
    a_rd256(a, 4, 24, 4096)
    tr_addrs128(a, 12, 24, 'std')
    AB = Banked(a, 4, 4, [80, 84])
    BB = Banked(a, 12, 4, [88, 92])
    chs = []
    for c in range(NCH):
        slot = (c % NS) * 32768
        ar, ao = AB.get(slot); br, bo = BB.get(slot + 16384)
        chs.append((4 if c < 10 else 3, ar, ao, br, bo))
    gemm64_loop(a, chs, 32, 24, 48, stamps=(0, NCH - 1))
    stamp(a)
    a("s_waitcnt vmcnt(0)")
    for nt in range(4):
        c = 32 + 4 * nt
        round4(a, c, 24)
        unpack2(a, 26, 27, R1 + 2 * nt); unpack2(a, 28, 29, R1 + 2 * nt + 1)
        for p in (0, 2): a(f"v_pk_add_f32 {vr(c+p,2)}, {vr(c+p,2)}, {vr(26+p,2)}")
        round4(a, c, 24)
        unpack2(a, 26, 27, R2 + 2 * nt); unpack2(a, 28, 29, R2 + 2 * nt + 1)
        for p in (0, 2): a(f"v_pk_add_f32 {vr(c+p,2)}, {vr(c+p,2)}, {vr(26+p,2)}")
        pack4(a, c, c)
        a(f"buffer_store_dwordx2 {vr(c,2)}, v21, s[{SRD_O}:{SRD_O+3}], 0 offen offset:{nt*32}")
    loader_begin(a)
    PEND.append(srds_ld)
    AV, BV = 16, 20
    a_voff256(a, AV, F * 2, 64, 16, 24)
    b_voff128(a, BV, 24, 128, 'std')
    a(f"s_lshl_b32 s13, s{S_W}, 12")
    a(f"s_lshl_b32 s14, s{S_W}, 10")
    a(f"s_mul_i32 s10, s{S_CT}, {W4C_STRIDE}")
    a(f"s_add_u32 s10, s10, s14")
    if FL('ROT6', 0):
        a(f"s_and_b32 s60, s{S_RT}, 3")
        a(f"s_mul_i32 s60, s60, {FL('ROT6', 0)}")
    else: a("s_mov_b32 s60, 0")
    def issue(c):
        slot = (c % NS) * 32768
        if c < 10:
            a(f"s_add_u32 s8, s60, {c}")
            a(f"s_sub_u32 s9, s8, 10")
            a(f"s_cmp_ge_u32 s8, 10")
            a(f"s_cselect_b32 s8, s9, s8")
        else: a(f"s_mov_b32 s8, 10")
        a(f"s_lshl_b32 s9, s8, 14")
        a(f"s_add_u32 s9, s9, s10")
        a(f"s_lshl_b32 s8, s8, 8")
        for ab in ((1, 0) if FL('BF6', 0) else (0, 1)):
            if ab == 0:
                for t4 in range(4):
                    dma(a, vm, ('ch', c), AV + t4, SRD_A, 's8', 0, (13, slot + t4 * 1024))
            else:
                for i in range(4 if c < 10 else 3):
                    dma(a, vm, ('ch', c), BV, SRD_B, 's9', i * 4096, (14, slot + 16384 + i * 4096))
    loader_ring(a, vm, issue, NCH, NS, NI)
    loader_end(a, (P_WQKV, 512*3072, 12))

def loader_ring(a, vm, issue, NCH, NS, NI, hook=None):
    nxt = 0
    while nxt < min(NI, NCH): issue(nxt); nxt += 1
    for c in range(NCH):
        vm.wait(('ch', c)); a("s_barrier")
        k = 0
        while nxt < NCH and nxt <= c - 1 + NS and k < LOOKAHEAD_STEP:
            issue(nxt); nxt += 1; k += 1
            if nxt == NCH and hook: hook(vm)

LOOKAHEAD_STEP = 1

SLOT96 = 28672
def gemm96_compute(a, orient):
    NS, NCH = 5, 8
    setup_consts(a)
    a_rd128(a, 4, 24, 4096)
    tr_addrs64s(a, 160, 24, 4096)
    AB = Banked(a, 4, 2, [166, 168])
    BB = Banked(a, 160, 6, [170, 176])
    acc = lambda st, nt: 32 + 24 * st + 4 * nt
    def reads(c, j):
        slot = (c % NS) * SLOT96
        L = []
        for st in range(2):
            r, o = AB.get(slot + st * 2048)
            L.append(f"ds_read_b128 {vr(96 + j * 8 + st * 4, 4)}, v{r + j} offset:{o}")
        for nt in range(6):
            for hh in range(2):
                r, o = BB.get(slot + 16384 + j * 2048 + hh * 256)
                L.append(f"ds_read_b64_tr_b16 {vr(112 + j * 24 + nt * 4 + hh * 2, 2)}, v{r + nt} offset:{o}")
        return L
    def step(c, j, nxt):
        z = c == 0 and j == 0
        nxt = list(nxt); issued = 0
        def rd():
            nonlocal issued
            if nxt: a(nxt.pop(0)); issued += 1
        for nt in range(6):
            a(f"s_waitcnt lgkmcnt({10 - 2 * nt + issued})")
            for st in range(2):
                cc = vr(acc(st, nt), 4); w = vr(112 + j * 24 + nt * 4, 4); x = vr(96 + j * 8 + st * 4, 4)
                if orient[nt] == 'T': a(f"v_mfma_f32_16x16x32_bf16 {cc}, {w}, {x}, {'0' if z else cc}")
                else: a(f"v_mfma_f32_16x16x32_bf16 {cc}, {x}, {w}, {'0' if z else cc}")
                rd()
        for st in range(2):
            x = vr(96 + j * 8 + st * 4, 4); SU = vr(80 + 8 * st, 4); G = vr(84 + 8 * st, 4)
            a(f"v_mfma_f32_16x16x32_bf16 {SU}, v[8:11], {x}, {'0' if z else SU}")
            rd()
            a(f"v_mfma_f32_16x16x32_bf16 {G}, {x}, {x}, {'0' if z else G}")
            rd()
        assert not nxt
    for c in range(NCH):
        barrier(a, c in (0, 3, 4, NCH - 1,))
        if c == 0:
            for l in reads(0, 0): a(l)
        else:
            step(c - 1, 1, reads(c, 0))
        step(c, 0, reads(c, 1))
    step(NCH - 1, 1, [])
    stamp(a)
    return acc

def gemm96_loader(a, rs_a, rs_b, col_sgprs, hook=None):
    vm = VM(a)
    NS, NCH, NI = 5, 8, 2
    AV, BV = 16, 18
    a_voff128(a, AV, rs_a, 128, 32, 24)
    b_voff64(a, BV, 24, rs_b)
    a(f"s_lshl_b32 s13, s{S_W}, 12")
    a(f"s_lshl_b32 s14, s{S_W}, 10")
    a(f"s_mul_i32 s10, s{S_W}, {16*rs_b}")
    a(f"s_mov_b32 s11, {16*rs_a}")
    if FL('ROT96', 0):
        a(f"s_and_b32 s60, s{S_RT}, 1")
        a(f"s_mul_i32 s60, s60, {FL('ROT96', 0)}")
    else: a("s_mov_b32 s60, 0")
    def issue(c):
        slot = (c % NS) * SLOT96
        a(f"s_add_u32 s61, s60, {c}")
        a(f"s_and_b32 s61, s61, 7")
        a(f"s_mul_i32 s62, s61, {64*rs_b}")
        a(f"s_add_u32 s62, s62, s10")
        a(f"s_lshl_b32 s61, s61, 7")
        a(f"s_add_u32 s63, s61, s11")
        for ab in ((1, 0) if FL('BF96', 0) else (0, 1)):
            if ab == 0:
                for t in range(4):
                    dma(a, vm, ('ch', c), AV + (t & 1), SRD_A, 's63' if t >= 2 else 's61', 0, (13, slot + t * 1024))
            else:
                for j in range(3):
                    a(f"s_add_u32 s48, s62, s{col_sgprs[j]}")
                    dma(a, vm, ('ch', c), BV, SRD_B, 's48', 0, (14, slot + 16384 + j * 4096))
    loader_ring(a, vm, issue, NCH, NS, NI, hook)

def k5_ln_w3(a):
    vm = VM(a)
    prologue8(a, 240); decode_wg(a, 2)
    def srds_ld():
        srd(a, SRD_A, P_WS, WS_X1, 0x200000)
        srd(a, SRD_B, P_W3, 0, 512 * F * 2)
    def srds_cp():
        srd(a, SRD_O, P_WS, WS_H3, S * F * 2)
        srd(a, SRD_CS, P_WS, WS_CS, 0x5000)
    a(f"s_mul_i32 s12, s{S_CT}, 192")
    a(f"s_add_u32 s8, s12, 64")
    a(f"s_add_u32 s9, s12, 128")
    CSR = 184
    NST = 1 if EPI8 else 2
    def after(vm, sts):
        a("v_lshlrev_b32 v24, 4, v3")
        a(f"s_mul_i32 s6, s{S_CT}, 384")
        a(f"s_add_u32 s6, s6, {CS_W3}")
        for nt in range(6):
            a(f"buffer_load_dwordx4 {vr(CSR+4*nt,4)}, v24, s[{SRD_CS}:{SRD_CS+3}], s6 offen offset:{nt*64}")
            vm.issue('cs')
        for i, st in enumerate(sts):
            row_voff(a, 20 + i, 128, 32, F * 2, with_g=8, st=st)
            a(f"v_add_u32 v{20+i}, s12, v{20+i}")
    split(a)
    kwait(a, srds_cp)
    after(vm, (0,) if EPI8 else (0, 1))
    acc = gemm96_compute(a, 'TTTTTT')
    if EPI8:
        handover_put(a, [56 + 4 * i for i in range(6)] + [88, 92])
        a.label("L_epi")
    MB = (96, 100); RS = (98, 102)
    for st in range(NST):
        ln_finish(a, 80 + 8 * st, 84 + 8 * st, MB[st], RS[st], 24)
        a(f"v_mov_b32 v{RS[st]+1}, v{RS[st]}")
        a(f"v_sub_f32 v{MB[st]}, 0, v{MB[st]}")
        a(f"v_mov_b32 v{MB[st]+1}, v{MB[st]}")
    GC = 104
    a(f"v_mov_b32 v{GC}, {lit(GELU_C0)}"); a(f"v_mov_b32 v{GC+1}, {lit(GELU_C0)}")
    a(f"v_mov_b32 v{GC+2}, {lit(GELU_C1)}"); a(f"v_mov_b32 v{GC+3}, {lit(GELU_C1)}")
    vm.wait('cs')
    for np_ in range(3):
        if np_ == 1:
            a(f"s_cmp_eq_u32 s{S_CT}, 14")
            a("s_cbranch_scc1 L_fin")
        for st in range(NST):
            recs = []
            for q in range(2):
                nt = 2 * np_ + q
                r = Rec()
                c = acc(st, nt)
                fold4(r, c, CSR + 4 * nt, MB[st], RS[st])
                round4(r, c, 24 + 2 * q)
                gelu4(r, c, 108 + 4 * q, GC)
                pack4(r, c, c)
                r(f"buffer_store_dwordx2 {vr(c,2)}, v{20+st}, s[{SRD_O}:{SRD_O+3}], 0 offen offset:{nt*32}")
                recs.append(r)
            interleave(a, recs)
    loader_begin(a)
    PEND.append(srds_ld)
    def hook(vml):
        setup_consts(a)
        after(vml, (1,))
    gemm96_loader(a, 1024, F * 2, (12, 8, 9), hook if EPI8 else None)
    if EPI8:
        handover_get(a, [32 + 4 * i for i in range(6)] + [80, 84])
        a("s_branch L_epi")
    else:
        loader_end(a)

def k1_qkv(a):
    vm = VM(a)
    prologue8(a, 256); decode_wg(a, 2)
    def srds_ld():
        srd_sel(a, SRD_A, P_X, 0, P_WS, WS_XN, 0x200000)
        srd(a, SRD_B, P_WS, WS_WQC, 48 * QS)
    def srds_cp():
        srd(a, SRD_O, P_WS, WS_PHIQ, 0x400000)
        srd(a, SRD_X1, P_WPHI, 0, 32 * 512)
        srd(a, SRD_CS, P_WS, WS_CS, 0x5000)
        a(f"s_mul_i32 s6, s{S_LAYER}, {KV_STRIDE}")
        a(f"s_add_u32 s6, s6, {WS_KV}")
        a(f"s_add_u32 s{SRD_X2}, s{P_WS}, s6")
        a(f"s_addc_u32 s{SRD_X2+1}, s{P_WS+1}, 0")
        a(f"s_mov_b32 s{SRD_X2+2}, {KV_STRIDE}")
        a(f"s_mov_b32 s{SRD_X2+3}, 0x00020000")
    a(f"s_mul_i32 s12, s{S_CT}, {QS}")
    a(f"s_add_u32 s8, s12, {16*QS}")
    a(f"s_add_u32 s9, s12, {32*QS}")
    CSQ = 184
    WP = 204
    def after(vm, st):
        a(f"v_lshlrev_b32 v24, 7, v3")
        a(f"v_lshl_add_u32 v24, v2, 1, v24")
        a(f"s_lshl_b32 s6, s{S_CT}, 10")
        for h in range(2):
            for jj in range(4):
                a(f"buffer_load_ushort v{WP+4*h+jj}, v24, s[{SRD_X1}:{SRD_X1+3}], s6 offen offset:{h*512 + jj*32}")
                vm.issue('cs')
        a("v_lshlrev_b32 v24, 4, v3")
        a("v_lshlrev_b32 v25, 2, v2")
        a(f"s_lshl_b32 s6, s{S_CT}, 7")
        for nt in range(4):
            a(f"buffer_load_dwordx4 {vr(CSQ+4*nt,4)}, v24, s[{SRD_CS}:{SRD_CS+3}], s6 offen offset:{(nt//2)*2048 + (nt%2)*64}")
            vm.issue('cs')
        a(f"s_add_u32 s6, s6, 4096")
        for h in range(2):
            a(f"buffer_load_dword v{CSQ+16+h}, v25, s[{SRD_CS}:{SRD_CS+3}], s6 offen offset:{h*64}")
            vm.issue('cs')
        for i, s_ in enumerate(st):
            row_voff(a, 20 + i, 128, 32, 2048, with_g=8, st=s_)
            a(f"s_lshl_b32 s6, s{S_CT}, 7")
            a(f"v_add_u32 v{20+i}, s6, v{20+i}")
    NST = 1 if EPI8 else 2
    split(a)
    kwait(a, srds_cp)
    after(vm, (0,) if EPI8 else (0, 1))
    accf = gemm96_compute(a, 'TTTTNN')
    if EPI8:
        handover_put(a, [56 + 4 * i for i in range(6)] + [88, 92])
        a.label("L_epi")
    stamp(a)
    MB = (96, 100); RS = (98, 102)
    for st in range(NST):
        ln_finish(a, 80 + 8 * st, 84 + 8 * st, MB[st], RS[st], 24)
    RRS = (104, 112); RRM = (108, 116)
    a("v_lshlrev_b32 v23, 4, v3")
    for r in range(4): a(f"v_add_u32 v{24+r}, {4*r}, v23")
    for st in range(NST):
        for r in range(4):
            a(f"ds_bpermute_b32 v{RRS[st]+r}, v{24+r}, v{RS[st]}")
            a(f"ds_bpermute_b32 v{RRM[st]+r}, v{24+r}, v{MB[st]}")
    for st in range(NST):
        a(f"v_mov_b32 v{RS[st]+1}, v{RS[st]}")
        a(f"v_sub_f32 v{MB[st]}, 0, v{MB[st]}")
        a(f"v_mov_b32 v{MB[st]+1}, v{MB[st]}")
    vm.wait('cs')
    for h in range(2):
        for jj in range(2):
            a(f"v_lshl_or_b32 v{28+2*h+jj}, v{WP+4*h+2*jj+1}, 16, v{WP+4*h+2*jj}")
    a("s_waitcnt lgkmcnt(0)")
    KV = 120; Z = 136
    T = 212
    L2P = 202
    IDN = 22
    a(f"v_mov_b32 v{L2P}, {lit(LOG2E)}"); a(f"v_mov_b32 v{L2P+1}, {lit(LOG2E)}")
    a("v_mov_b32 v24, 0x3f80"); a("v_mov_b32 v25, 0x3f800000")
    for p in range(2):
        a(f"v_cndmask_b32 v{IDN+p}, 0, v24, s[{64+4*p}:{65+4*p}]")
        a(f"v_cndmask_b32 v26, 0, v25, s[{66+4*p}:{67+4*p}]")
        a(f"v_or_b32 v{IDN+p}, v{IDN+p}, v26")
    def red4(r, A, B, C, D, op, mid):
        r(f"v_permlane16_swap_b32 v{A}, v{B}")
        r(f"v_permlane16_swap_b32 v{C}, v{D}")
        r(f"{op} v{A}, v{A}, v{B}")
        r(f"{op} v{C}, v{C}, v{D}")
        r(f"v_permlane32_swap_b32 v{A}, v{C}")
        r(f"{op} v{A}, v{A}, v{C}")
        r(mid)
        r(f"v_mov_b32 v{C}, v{A}")
        r(f"v_permlane32_swap_b32 v{A}, v{C}")
        r(f"v_mov_b32 v{B}, v{A}")
        r(f"v_mov_b32 v{D}, v{C}")
        r(f"v_permlane16_swap_b32 v{A}, v{B}")
        r(f"v_permlane16_swap_b32 v{C}, v{D}")
    def stream(st, h, Bq):
        r = Rec()
        wph = vr(28 + 2 * h, 2)
        c = accf(st, h); ck = accf(st, 2 + h); cv = accf(st, 4 + h)
        P, PK, ENQ, ENK, VB = Bq + 4, Bq + 8, Bq + 12, Bq + 16, Bq + 20
        A, B, C, D = Bq + 22, Bq + 24, Bq + 26, Bq + 28
        fold4(r, c, CSQ + 4 * h, MB[st], RS[st])
        fold4(r, ck, CSQ + 8 + 4 * h, MB[st], RS[st])
        pack4(r, Bq, c); pack4(r, Bq + 2, ck)
        r(f"v_mfma_f32_16x16x16_bf16 {vr(P,4)}, {wph}, {vr(Bq,2)}, 0")
        r(f"v_mfma_f32_16x16x16_bf16 {vr(PK,4)}, {wph}, {vr(Bq+2,2)}, 0")
        sel = "op_sel_hi:[1,0,1]" if h == 0 else "op_sel:[0,1,0] op_sel_hi:[1,1,1]"
        for p in (0, 2):
            r(f"v_pk_fma_f32 {vr(cv+p,2)}, {vr(RRM[st]+p,2)}, {vr(CSQ+16,2)}, {vr(cv+p,2)} {sel} neg_lo:[1,0,0] neg_hi:[1,0,0]")
        for p in (0, 2):
            r(f"v_pk_mul_f32 {vr(cv+p,2)}, {vr(cv+p,2)}, {vr(RRS[st]+p,2)}")
        pack4(r, VB, cv)
        round4(r, P, Bq); round4(r, PK, Bq + 2)
        for X, mx, mn in ((P, A, B), (PK, C, D)):
            r(f"v_max3_f32 v{mx}, v{X}, v{X+1}, v{X+2}")
            r(f"v_max3_f32 v{mn}, -v{X}, -v{X+1}, -v{X+2}")
            r(f"v_max_f32 v{mx}, v{mx}, v{X+3}")
            r(f"v_max_f32_e64 v{mn}, v{mn}, -v{X+3}")
        red4(r, A, B, C, D, 'v_max_f32', f"v_mul_f32 v{A}, {lit(-LOG2E)}, v{A}")
        for X, EN, mx, mn in ((P, ENQ, A, B), (PK, ENK, C, D)):
            for p in (0, 2):
                r(f"v_pk_fma_f32 {vr(EN+p,2)}, {vr(X+p,2)}, {vr(L2P,2)}, {vr(mn,2)} op_sel_hi:[1,1,0] neg_lo:[0,1,0] neg_hi:[0,1,0]")
            for p in (0, 2):
                r(f"v_pk_fma_f32 {vr(X+p,2)}, {vr(X+p,2)}, {vr(L2P,2)}, {vr(mx,2)} op_sel_hi:[1,1,0]")
        for X in (P, ENQ, PK, ENK):
            for q in range(4): r(f"v_exp_f32 v{X+q}, v{X+q}")
        for X, d in ((P, A), (ENQ, B), (PK, C), (ENK, D)):
            r(f"v_pk_add_f32 {vr(d,2)}, {vr(X,2)}, {vr(X+2,2)}")
        for d in (A, B, C, D):
            r(f"v_add_f32 v{d}, v{d}, v{d+1}")
        red4(r, A, B, C, D, 'v_add_f32', f"v_rcp_f32 v{A}, v{A}")
        for X, d in ((PK, C), (ENK, D), (P, A), (ENQ, B)):
            for p in (0, 2):
                r(f"v_pk_mul_f32 {vr(X+p,2)}, {vr(X+p,2)}, {vr(d,2)} op_sel_hi:[1,0]")
        pack4(r, PK, PK); pack4(r, ENK, ENK)
        r(f"v_mfma_f32_16x16x16_bf16 {vr(Bq,4)}, {vr(PK,2)}, {vr(IDN,2)}, 0")
        r(f"v_mfma_f32_16x16x16_bf16 {vr(Bq+24,4)}, {vr(ENK,2)}, {vr(IDN,2)}, 0")
        pack4(r, P, P); pack4(r, ENQ, ENQ)
        r(f"buffer_store_dwordx2 {vr(P,2)}, v{20+st}, s[{SRD_O}:{SRD_O+3}], 0 offen offset:{h*64}")
        r(f"buffer_store_dwordx2 {vr(ENQ,2)}, v{20+st}, s[{SRD_O}:{SRD_O+3}], 0 offen offset:{h*64+32}")
        pack4(r, Bq, Bq); pack4(r, Bq + 24, Bq + 24)
        for sg, ph in ((0, Bq), (1, Bq + 24)):
            kv = KV + (h * 2 + sg) * 4; z = Z + (h * 2 + sg) * 4
            r(f"v_mfma_f32_16x16x16_bf16 {vr(kv,4)}, {vr(VB,2)}, {vr(ph,2)}, {'0' if st == 0 else vr(kv,4)}")
            r(f"v_mfma_f32_16x16x16_bf16 {vr(z,4)}, v[8:9], {vr(ph,2)}, {'0' if st == 0 else vr(z,4)}")
        return r
    stamp(a)
    for st in range(NST):
        interleave(a, [stream(st, 0, 212), stream(st, 1, 152)])
    RED = 3 * SLOT96; REDZ = RED + 32768
    a(f"s_lshl_b32 s6, s101, 12")
    a(f"v_lshlrev_b32 v4, 4, v1")
    a(f"v_add_u32 v4, s6, v4")
    a(f"s_lshl_b32 s6, s101, 10")
    a(f"v_lshlrev_b32 v5, 2, v1")
    a(f"v_add_u32 v5, s6, v5")
    a(f"v_add_u32 v4, {RED}, v4")
    a(f"v_add_u32 v5, {REDZ}, v5")
    for i in range(4):
        a(f"ds_write_b128 v4, {vr(KV+4*i,4)} offset:{i*1024}")
        a(f"ds_write_b32 v5, v{Z+4*i} offset:{i*256}")
    a("s_waitcnt lgkmcnt(0)")
    barrier(a)
    a("s_cmp_ge_u32 s101, 4")
    a("s_cbranch_scc1 L_end")
    a(f"v_lshlrev_b32 v4, 4, v0")
    a(f"v_add_u32 v4, {RED}, v4")
    NW = 8 if EPI8 else 4
    for w in range(NW):
        a(f"ds_read_b128 {vr(T+4*w,4)}, v4 offset:{w*4096}")
    a(f"v_lshrrev_b32 v5, 4, v0")
    a(f"v_lshlrev_b32 v5, 8, v5")
    a(f"v_lshl_add_u32 v5, v2, 2, v5")
    a(f"v_add_u32 v5, {REDZ}, v5")
    for w in range(NW):
        a(f"ds_read_b32 v{T+32+w}, v5 offset:{w*1024}")
    a(f"s_lshr_b32 s6, s{S_W}, 1")
    a(f"s_lshl_b32 s7, s{S_CT}, 1")
    a(f"s_add_u32 s6, s6, s7")
    a(f"s_lshl_b32 s6, s6, 11")
    a(f"s_and_b32 s7, s{S_W}, 1")
    a(f"s_lshl_b32 s7, s7, 6")
    a(f"s_add_u32 s6, s6, s7")
    a(f"v_lshlrev_b32 v6, 9, v3")
    a(f"v_lshl_add_u32 v6, v2, 2, v6")
    a(f"s_lshl_b32 s7, s{S_CT}, 8")
    a(f"s_add_u32 s7, s7, {KVZ_OFF}")
    a(f"v_lshlrev_b32 v7, 2, v0")
    a("s_waitcnt lgkmcnt(0)")
    for d in ((16, 8, 4) if EPI8 else (8, 4)):
        for w in range(0, d, 4):
            for p in (0, 2):
                a(f"v_pk_add_f32 {vr(T+w+p,2)}, {vr(T+w+p,2)}, {vr(T+w+d+p,2)}")
    for d in ((4, 2, 1) if EPI8 else (2, 1)):
        for w in range(d):
            a(f"v_add_f32 v{T+32+w}, v{T+32+w}, v{T+32+w+d}")
    for r in range(4):
        a(f"buffer_atomic_add_f32 v{T+r}, v6, s[{SRD_X2}:{SRD_X2+3}], s6 offen offset:{r*128}")
    a(f"s_cmp_lg_u32 s{S_W}, 0")
    a("s_cbranch_scc1 L_fin")
    a(f"buffer_atomic_add_f32 v{T+32}, v7, s[{SRD_X2}:{SRD_X2+3}], s7 offen")
    loader_begin(a)
    PEND.append(srds_ld)
    def hook(vml):
        setup_consts(a)
        after(vml, (1,))
    gemm96_loader(a, 1024, 64, (12, 8, 9), hook if EPI8 else None)
    if EPI8:
        handover_get(a, [32 + 4 * i for i in range(6)] + [80, 84])
        a("s_branch L_epi")
    else:
        loader_end(a)

import os
_V = os.environ.get('K2V', '0')
K2_KV = {c: (c + 2,) for c in range(6)}
K2_CH = {c: (c + 2,) for c in range(6)}
if _V == '1':
    K2_CH = {0: (2, 3), 1: (4,), 2: (5,), 3: (6,), 4: (7,)}
if _V == '2':
    K2_CH = {0: (2, 3), 1: (4,), 2: (5,), 3: (6,), 4: (7,)}
    K2_KV = {0: (2, 3), 1: (4,), 2: (5,), 3: (6,), 4: (7,)}
if _V == '3':
    K2_CH = {0: (2,), 1: (3, 4), 2: (5,), 3: (6,), 4: (7,)}
def k2_attn_wo(a):
    prologue8(a, 256); decode_wg(a, 4)
    def srds():
        a(f"s_mul_i32 s6, s{S_LAYER}, {KV_STRIDE}")
        a(f"s_add_u32 s6, s6, {WS_KV}")
        a(f"s_add_u32 s{SRD_X2}, s{P_WS}, s6")
        a(f"s_addc_u32 s{SRD_X2+1}, s{P_WS+1}, 0")
        a(f"s_mov_b32 s{SRD_X2+2}, {KV_STRIDE}")
        a(f"s_mov_b32 s{SRD_X2+3}, 0x00020000")
        srd(a, SRD_A, P_WS, WS_PHIQ, 0x400000)
        srd(a, SRD_B, P_WO, 0, 512 * 1024)
        srd(a, SRD_O, P_WS, WS_XA, 0x200000)
        srd_sel(a, SRD_X1, P_X, 0, P_WS, WS_XN, 0x200000)
    NS, NCH, SL = 5, 8, 24576
    KVL = NS * SL; ZL = KVL + 32768
    a(f"s_lshl_b32 s12, s{S_CT}, 7")
    a("v_lshlrev_b32 v8, 4, v0")
    a("v_lshlrev_b32 v9, 3, v0")
    split(a)
    PHB = 80
    KVB = 96
    NUB = 128
    OBS = (64, 68)
    BFS = (160, 176)
    KR = [192 + 4 * i for i in range(8)]; ZR = 224
    RX = 240
    def body(hf):
        vm = VM(a)
        tm = gen.TIMING
        if hf: gen.TIMING = False
        AV, BV = 16, 20
        def ldkv(c):
            a(f"s_mov_b32 s6, {c*8192}")
            a(f"buffer_load_dwordx4 {vr(KR[c],4)}, v8, s[{SRD_X2}:{SRD_X2+3}], s6 offen")
            vm.issue(('kv', c))
        def issue(c):
            slot = (c % NS) * SL
            for t4 in range(4):
                dma(a, vm, ('ch', c), AV + t4, SRD_A, 0, c * 256, (13, slot + t4 * 1024))
            for i in range(2):
                dma(a, vm, ('ch', c), BV, SRD_B, 's10', 0, (14, slot + 16384 + i * 4096))
                a(f"s_add_u32 s10, s10, {32*1024}")
        if hf:
            a_voff256(a, AV, 2048, 64, 16, 24)
            b_voff128(a, BV, 24, 1024, 'k2')
            a(f"s_lshl_b32 s13, s{S_W}, 12")
            a(f"s_lshl_b32 s14, s{S_W}, 10")
            a(f"s_mul_i32 s10, s{S_W}, {8*1024}")
            a(f"s_add_u32 s10, s10, s12")
        row_voff(a, 21, 64, 16, 1024, with_g=8)
        a(f"v_add_u32 v21, s12, v21")
        kwait(a, srds)
        ldkv(0)
        a(f"s_mov_b32 s6, {KVZ_OFF}")
        a(f"buffer_load_dwordx2 {vr(ZR,2)}, v9, s[{SRD_X2}:{SRD_X2+3}], s6 offen")
        vm.issue('z')
        if hf: issue(0)
        ldkv(1)
        if hf: issue(1)
        for q in range(2):
            a(f"buffer_load_dwordx2 {vr(RX+2*q,2)}, v21, s[{SRD_X1}:{SRD_X1+3}], 0 offen offset:{(2*hf+q)*32}")
            vm.issue('rx')
        a_rd256(a, 4, 24, 4096)
        tr_addrs128(a, 12, 24, 'k2')
        AB = Banked(a, 4, 4, [232])
        BB = Banked(a, 12, 4, [236])
        a(f"v_add_u32 v9, {KVL}, v9")
        a("v_lshlrev_b32 v10, 2, v0")
        a(f"v_add_u32 v10, {ZL}, v10")
        a("v_lshlrev_b32 v22, 6, v2")
        a("v_lshl_add_u32 v22, v3, 4, v22")
        a(f"v_add_u32 v22, {KVL}, v22")
        a("v_lshlrev_b32 v23, 4, v3")
        a(f"v_add_u32 v23, {ZL}, v23")
        def stage(c):
            vm.wait(('kv', c))
            q = KR[c]
            pack4(a, q, q)
            a(f"ds_write_b64 v9, {vr(q,2)} offset:{c*4096}")
        vm.wait('z')
        a(f"v_cvt_pk_bf16_f32 v{ZR}, v{ZR}, v{ZR+1}")
        a(f"ds_write_b32 v10, v{ZR}")
        stage(0)
        def wo_mfma(c):
            OB = OBS[c % 2]; BF = BFS[c % 2]
            for nt in range(4):
                cc = vr(32 + 4 * nt, 4)
                a(f"v_mfma_f32_16x16x32_bf16 {cc}, {vr(BF + nt*4, 4)}, {vr(OB,4)}, {'0' if c == 0 else cc}")
        for c in range(NCH):
            slot = (c % NS) * SL
            OB = OBS[c % 2]; BF = BFS[c % 2]
            if hf: vm.wait(('ch', c))
            a("s_waitcnt lgkmcnt(0)")
            barrier(a, c in (0, 3, 4))
            ar, ao = AB.get(slot)
            br, bo = BB.get(slot + 16384)
            for q in range(2):
                hh = 2 * hf + q; h = 4 * c + hh
                a(f"ds_read_b128 {vr(PHB+4*q,4)}, v{ar+hh} offset:{ao}")
                a(f"ds_read_b128 {vr(KVB+8*q,4)}, v22 offset:{h*1024}")
                a(f"ds_read_b128 {vr(KVB+8*q+4,4)}, v23 offset:{h*64}")
            for n_ in K2_KV.get(c, ()): ldkv(n_)
            if hf:
                for n_ in K2_CH.get(c, ()): issue(n_)
            if c: wo_mfma(c - 1)
            for q in range(2):
                a(f"s_waitcnt lgkmcnt({3-3*q})")
                n = NUB + 8 * q
                a(f"v_mfma_f32_16x16x32_bf16 {vr(n,4)}, {vr(KVB+8*q,4)}, {vr(PHB+4*q,4)}, 0")
                a(f"v_mfma_f32_16x16x32_bf16 {vr(n+4,4)}, {vr(KVB+8*q+4,4)}, {vr(PHB+4*q,4)}, 0")
            for nt in range(4):
                for hh in range(2):
                    a(f"ds_read_b64_tr_b16 {vr(BF + nt*4 + hh*2, 2)}, v{br+nt} offset:{bo + hf*4096 + hh*2048}")
            recs = []
            for q in range(2):
                r = Rec()
                n = NUB + 8 * q; t = 24 + 2 * q
                bf16r(r, n + 4, n + 4, t)
                r(f"v_add_f32 v{n+4}, {lit(1e-6)}, v{n+4}")
                bf16r(r, n + 4, n + 4, t)
                r(f"v_rcp_f32 v{n+4}, v{n+4}")
                round4(r, n, t)
                for p in (0, 2): r(f"v_pk_mul_f32 {vr(n+p,2)}, {vr(n+p,2)}, {vr(n+4,2)} op_sel_hi:[1,0]")
                pack4(r, OB + 2 * q, n)
                recs.append(r)
            interleave(a, recs)
            if c + 1 < NCH: stage(c + 1)
        a("s_waitcnt lgkmcnt(0)")
        wo_mfma(NCH - 1)
        stamp(a)
        keep = [32 + 4 * (2 * hf + q) for q in range(2)]
        send = [32 + 4 * (2 * (1 - hf) + q) for q in range(2)]
        pair_exchange(a, hf, send, [48, 52], 3 * SL, 24)
        a("s_waitcnt vmcnt(0) lgkmcnt(0)")
        recs = []
        for q in range(2):
            r = Rec()
            c = keep[q]; t = 112 + 8 * q
            for p in (0, 2): r(f"v_pk_add_f32 {vr(c+p,2)}, {vr(c+p,2)}, {vr(48+4*q+p,2)}")
            round4(r, c, t)
            unpack2(r, t + 2, t + 3, RX + 2 * q); unpack2(r, t + 4, t + 5, RX + 2 * q + 1)
            for p in (0, 2): r(f"v_pk_add_f32 {vr(c+p,2)}, {vr(c+p,2)}, {vr(t+2+p,2)}")
            pack4(r, c, c)
            r(f"buffer_store_dwordx2 {vr(c,2)}, v21, s[{SRD_O}:{SRD_O+3}], 0 offen offset:{(2*hf+q)*32}")
            recs.append(r)
        interleave(a, recs)
        gen.TIMING = tm
    body(0)
    loader_begin(a)
    body(1)
    loader_end(a)

KERNELS = [
    ('k0', k0_init, K0_WGS, 8192, False),
    ('k1', k1_qkv, 256, 5 * SLOT96, True),
    ('k2', k2_attn_wo, 256, 5 * 24576 + 32768 + 2048, True),
    ('k3', k3_ln_w1, 256, 131072, False),
    ('k4', k4_shift_w2, 256, 131072, False),
    ('k5', k5_ln_w3, 240, 5 * SLOT96, False),
    ('k6', k6_w4, 256, 163840, True),
]

def build():
    header = open('cdna_kernels/' + NAME + '.s.ref').read().split('; Override launch')[0]
    launches = [('k0', None)]
    for L in range(2):
        for k in KERNELS[1:]:
            launches.append((k[0], L if k[4] else None))
    info = {k[0]: k for k in KERNELS}
    out = [header.rstrip('\n')]
    def lab(n, L): return f"hh_{n}{'' if L is None else '_l%d' % L}_kernel"
    for n, L in launches:
        k = info[n]
        out.append(f"; @launch kernel={lab(n, L)} grid=({k[2]},1,1) block=({256 if n == 'k0' else 512},1,1) lds={k[3]}")
    out.append('.amdgcn_target "amdgcn-amd-amdhsa--gfx950"')
    out.append('.text')
    descs = []
    for n, fn, nwg, lds, layered in KERNELS:
        a = Asm(); St.n = 0
        fn(a)
        a.label("L_fin")
        if gen.TIMING and n != 'k0':
            a("s_cmp_ge_u32 s101, 4")
            a("s_cbranch_scc1 L_end")
        dump_stamps(a, [k[0] for k in KERNELS].index(n))
        body = a.text().replace('L_', f'L{n}_')
        entries = [(lab(n, 0), 0), (lab(n, 1), 1)] if layered else [(lab(n, None), None)]
        if layered:
            for nm, L in entries:
                out.append(f".globl {nm}\n.p2align 8\n.type {nm},@function\n{nm}:")
                out.append(f"  s_mov_b32 s{S_LAYER}, {L}\n  s_branch L{n}_body")
            out.append(f".p2align 8\nL{n}_body:")
        else:
            nm = entries[0][0]
            out.append(f".globl {nm}\n.p2align 8\n.type {nm},@function\n{nm}:")
        out.append(body.rstrip('\n'))
        out.append(f"L{n}_end:\n  s_endpgm")
        for nm, L in entries: descs.append(nm)
    out.append('.section .rodata,"a"')
    for nm in descs:
        out.append(f""".p2align 6
.amdhsa_kernel {nm}
  .amdhsa_next_free_vgpr 256
  .amdhsa_next_free_sgpr 102
  .amdhsa_accum_offset 256
  .amdhsa_group_segment_fixed_size 0
  .amdhsa_kernarg_size 96
  .amdhsa_user_sgpr_count 2
  .amdhsa_user_sgpr_kernarg_segment_ptr 1
  .amdhsa_system_sgpr_workgroup_id_x 1
.end_amdhsa_kernel""")
    return '\n'.join(out) + '\n'

if __name__ == '__main__':
    if len(sys.argv) > 2 and sys.argv[2] == 'timing': gen.TIMING = True
    txt = build()
    dst = sys.argv[1] if len(sys.argv) > 1 else 'cdna_kernels/' + NAME + '.s'
    open(dst, 'w').write(txt)
    print('wrote', dst, len(txt), 'bytes')
```

```python
import sys
import gen
from gen import (Asm, vr, sr, NAME, S, D, F, H, WS_XA, WS_XB, WS_H, WS_X1, WS_XN, WS_H3, WS_PHIQ, WS_KV,
                 KV_STRIDE, KVZ_OFF, P_X, P_WQKV, P_WPHI, P_WO, P_BX, P_W1, P_W2, P_W3, P_W4, P_OUT, P_DBG, P_WS,
                 SRD_A, SRD_B, SRD_O, SRD_X1, SRD_X2, SRD_X3, S_RT, S_CT, S_W, S_LAYER, LOG2E, lit, prologue, srd,
                 srd_sel, decode_wg, tr_addrs128, tr_addrs64, setup_consts, xlane_sum, bf16r, GELU_C0, GELU_C1,
                 unpack2, row_voff, dpp_allreduce, stamp, dump_stamps, St)

WS_CS = 0x1480000
CS_QKV, CS_W1, CS_W3 = 0x0, 0x2000, 0x3000
SRD_CS = 96

class VM:
    def __init__(self, a): self.a = a; self.q = []
    def issue(self, tag): self.q.append(tag)
    def wait(self, tag):
        idx = [i for i, t in enumerate(self.q) if t == tag]
        if not idx: return
        idx = idx[-1]
        n = len(self.q) - 1 - idx
        self.a(f"s_waitcnt vmcnt({min(n, 63)})")
        self.q = self.q[idx + 1:]
    def wait_all(self):
        self.a("s_waitcnt vmcnt(0)"); self.q = []

PEND = []
import os
def FL(n, d): return int(os.environ.get(n, str(d)))
H3S = FL('H3S', 2816)
def srd_sel(a, dst, base0, off0, base1, off1, size):
    a(f"s_add_u32 s{dst}, s{base0}, {off0}")
    a(f"s_addc_u32 s{dst+1}, s{base0+1}, 0")
    a(f"s_add_u32 s{dst+2}, s{base1}, {off1}")
    a(f"s_addc_u32 s{dst+3}, s{base1+1}, 0")
    a(f"s_cmp_eq_u32 s{S_LAYER}, 0")
    a(f"s_cselect_b32 s{dst}, s{dst}, s{dst+2}")
    a(f"s_cselect_b32 s{dst+1}, s{dst+1}, s{dst+3}")
    a(f"s_mov_b32 s{dst+2}, {size}")
    a(f"s_mov_b32 s{dst+3}, 0x00020000")
def kwait(a, code=None, st=True):
    a("s_waitcnt lgkmcnt(0)")
    if st: stamp(a)
    if code: code()
def prologue8(a, nwg):
    a(f"""
    s_cmp_ge_u32 s2, {nwg}
    s_cbranch_scc1 L_end
    """)
    stamp(a)
    a(f"""
    s_load_dwordx16 s[16:31], s[0:1], 0
    s_load_dwordx8 s[32:39], s[0:1], 64
    v_and_b32 v1, 63, v0
    v_lshrrev_b32 v4, 6, v0
    v_and_b32 v2, 15, v0
    v_readfirstlane_b32 s{S_W}, v4
    v_lshrrev_b32 v3, 4, v1
    """)
    a(f"s_mov_b32 s101, s{S_W}")
    a(f"s_and_b32 s{S_W}, s{S_W}, 3")
def split(a):
    a("s_cmp_ge_u32 s101, 4")
    a("s_cbranch_scc1 L_loader")
def loader_begin(a):
    a("s_branch L_fin")
    a.label("L_loader")
PREFETCH = False
EPI8 = False
def loader_end(a, pf=None):
    if pf and PREFETCH:
        ptr, nbytes, n = pf
        srd(a, SRD_X3, ptr, 0, nbytes)
        a("s_lshr_b32 s6, s2, 3")
        a(f"s_lshl_b32 s6, s6, 2")
        a(f"s_add_u32 s6, s6, s{S_W}")
        a(f"s_mul_i32 s6, s6, {n*1024}")
        a("v_lshlrev_b32 v4, 4, v1")
        for i in range(n):
            if i and i % 4 == 0: a("s_add_u32 s6, s6, 4096")
            a(f"buffer_load_dwordx4 {vr(32+4*i,4)}, v4, s[{SRD_X3}:{SRD_X3+3}], s6 offen offset:{(i%4)*1024}")
        a("s_waitcnt vmcnt(0)")
    a("s_branch L_end")

class Rec:
    def __init__(self): self.l = []
    def __call__(self, text):
        for line in text.strip('\n').split('\n'):
            line = line.strip()
            if line: self.l.append(line)
def interleave(a, recs):
    n = max(len(r.l) for r in recs)
    for i in range(n):
        for r in recs:
            if i < len(r.l): a(r.l[i])

def handover_put(a, regs):
    a(f"s_lshl_b32 s6, s{S_W}, 13")
    a("v_lshlrev_b32 v24, 4, v1")
    a("v_add_u32 v24, s6, v24")
    for i, r in enumerate(regs):
        a(f"ds_write_b128 v24, {vr(r,4)} offset:{i*1024}")
    a("s_waitcnt lgkmcnt(0)")
    a("s_barrier")
def handover_get(a, regs):
    a(f"s_lshl_b32 s6, s{S_W}, 13")
    a("v_lshlrev_b32 v24, 4, v1")
    a("v_add_u32 v24, s6, v24")
    a("s_barrier")
    for i, r in enumerate(regs):
        a(f"ds_read_b128 {vr(r,4)}, v24 offset:{i*1024}")
    a("s_waitcnt vmcnt(0) lgkmcnt(0)")
    a("s_nop 7")

def barrier(a, st=True):
    if st: stamp(a)
    a("s_barrier")
    if st: stamp(a)

def a_voff256(a, dst, rs, rows_per_wg, rows_per_wave, t):
    a(f"s_mul_i32 s6, s{S_RT}, {rows_per_wg}")
    a(f"s_mul_i32 s7, s{S_W}, {rows_per_wave}")
    a(f"s_add_u32 s6, s6, s7")
    a(f"s_mov_b32 s7, {rs}")
    for t4 in range(4):
        a(f"v_add_u32 v{t}, {4*t4}, v3")
        a(f"v_xor_b32 v{t+1}, v{t}, v2")
        a(f"v_add_u32 v{t}, s6, v{t}")
        a(f"v_mul_lo_u32 v{t}, v{t}, s7")
        a(f"v_lshl_add_u32 v{dst+t4}, v{t+1}, 4, v{t}")

def a_voff128(a, dst, rs, rows_per_wg, rows_per_wave, t):
    a(f"s_mul_i32 s6, s{S_RT}, {rows_per_wg}")
    a(f"s_mul_i32 s7, s{S_W}, {rows_per_wave}")
    a(f"s_add_u32 s6, s6, s7")
    a(f"s_mov_b32 s7, {rs}")
    a(f"v_lshrrev_b32 v{t+2}, 3, v1")
    a(f"v_and_b32 v{t+3}, 7, v1")
    for t2 in range(2):
        a(f"v_add_u32 v{t}, {4*t2}, v3")
        a(f"v_xor_b32 v{t+1}, v{t}, v{t+3}")
        a(f"v_add_u32 v{t}, {8*t2}, v{t+2}")
        a(f"v_add_u32 v{t}, s6, v{t}")
        a(f"v_mul_lo_u32 v{t}, v{t}, s7")
        a(f"v_lshl_add_u32 v{dst+t2}, v{t+1}, 4, v{t}")

def a_rd256(a, dst, t, wave_bytes):
    a(f"v_xor_b32 v{t}, v3, v2")
    a(f"v_lshlrev_b32 v{t}, 4, v{t}")
    a(f"v_lshl_add_u32 v{t}, v2, 8, v{t}")
    a(f"s_mul_i32 s6, s{S_W}, {wave_bytes}")
    for j in range(4):
        a(f"v_xor_b32 v{dst+j}, {j << 6}, v{t}")
        a(f"v_add_u32 v{dst+j}, s6, v{dst+j}")

def a_rd128(a, dst, t, wave_bytes):
    a(f"v_lshrrev_b32 v{t}, 1, v2")
    a(f"v_xor_b32 v{t}, v3, v{t}")
    a(f"v_lshlrev_b32 v{t}, 4, v{t}")
    a(f"v_lshl_add_u32 v{t}, v2, 7, v{t}")
    a(f"s_mul_i32 s6, s{S_W}, {wave_bytes}")
    for j in range(2):
        a(f"v_xor_b32 v{dst+j}, {j << 6}, v{t}")
        a(f"v_add_u32 v{dst+j}, s6, v{dst+j}")

def dma(a, vm, tag, voff, srdx, soff, imm, m0_sgpr_expr):
    sg, c = m0_sgpr_expr
    if PEND:
        f = PEND.pop(); kwait(a, f, False)
    a(f"s_add_u32 m0, s{sg}, {c}")
    if imm:
        if soff == 0: a(f"s_mov_b32 s7, {imm}")
        else: a(f"s_add_u32 s7, {soff}, {imm}")
        soff = 's7'
    else:
        a("s_nop 0")
    a(f"buffer_load_dwordx4 v{voff}, s[{srdx}:{srdx+3}], {soff} offen lds")
    vm.issue(tag)

def b_voff128(a, voff, t, rs, swz):
    a(f"v_lshrrev_b32 v{t}, 3, v1")
    a(f"v_and_b32 v{voff}, 7, v1")
    if swz == 'std':
        a(f"v_and_b32 v{t+1}, 2, v{t}")
        a(f"s_and_b32 s6, s{S_W}, 1")
        a(f"s_lshl_b32 s6, s6, 2")
        a(f"v_or_b32 v{t+1}, s6, v{t+1}")
    else:
        a(f"v_and_b32 v{t+1}, 6, v{t}")
    a(f"v_xor_b32 v{voff}, v{voff}, v{t+1}")
    a(f"v_lshlrev_b32 v{voff}, 4, v{voff}")
    a(f"s_mov_b32 s6, {rs}")
    a(f"v_mul_lo_u32 v{t}, v{t}, s6")
    a(f"v_add_u32 v{voff}, v{voff}, v{t}")

def b_voff64(a, voff, t, rs):
    a(f"v_lshrrev_b32 v{t}, 2, v1")
    a(f"v_and_b32 v{voff}, 3, v1")
    a(f"v_lshrrev_b32 v{t+1}, 5, v1")
    a(f"v_lshlrev_b32 v{t+1}, 1, v{t+1}")
    a(f"v_xor_b32 v{voff}, v{voff}, v{t+1}")
    a(f"v_lshlrev_b32 v{voff}, 4, v{voff}")
    a(f"s_mov_b32 s6, {rs}")
    a(f"v_mul_lo_u32 v{t}, v{t}, s6")
    a(f"v_add_u32 v{voff}, v{voff}, v{t}")

def tr_addrs64s(a, dst, vt, sub_bytes):
    a(f"v_lshrrev_b32 v{vt}, 2, v2")
    a(f"v_and_b32 v{vt+1}, 3, v2")
    a(f"v_lshl_add_u32 v{vt+2}, v3, 3, v{vt}")
    a(f"v_and_b32 v{vt+3}, 1, v3")
    a(f"v_lshlrev_b32 v{vt+3}, 1, v{vt+3}")
    a(f"v_lshlrev_b32 v{vt+2}, 6, v{vt+2}")
    a(f"v_and_b32 v{vt+4}, 1, v{vt+1}")
    a(f"v_lshl_add_u32 v{vt+2}, v{vt+4}, 3, v{vt+2}")
    a(f"v_lshrrev_b32 v{vt+1}, 1, v{vt+1}")
    for n2 in range(2):
        a(f"v_or_b32 v{vt+4}, {2*n2}, v{vt+1}")
        a(f"v_xor_b32 v{vt+4}, v{vt+4}, v{vt+3}")
        a(f"v_lshl_add_u32 v{dst+n2}, v{vt+4}, 4, v{vt+2}")
    for j in (1, 2):
        for n2 in range(2):
            a(f"v_add_u32 v{dst+2*j+n2}, {j*sub_bytes}, v{dst+n2}")

def ln_finish(a, SUM, G, mb, rs, t):
    g = t; t0 = t + 1; mean = t + 3
    a(f"v_cndmask_b32 v{g}, 0, v{G}, s[64:65]")
    for r in range(1, 4):
        a(f"v_cndmask_b32 v{g}, v{g}, v{G+r}, s[{64+2*r}:{65+2*r}]")
    a(f"v_mul_f32 v{mean}, {lit(1.0/512)}, v{SUM}")
    xlane_sum(a, g, t0)
    bf16r(a, mb, mean, t0)
    a(f"v_mul_f32 v{g}, {lit(1.0/512)}, v{g}")
    a(f"v_fma_f32 v{g}, -v{mean}, v{mean}, v{g}")
    a(f"v_max_f32 v{g}, 0, v{g}")
    bf16r(a, g, g, t0)
    a(f"v_add_f32 v{g}, {lit(1e-5)}, v{g}")
    bf16r(a, g, g, t0)
    a(f"v_sqrt_f32 v{g}, v{g}")
    bf16r(a, g, g, t0)
    a(f"v_rcp_f32 v{rs}, v{g}")

def gelu4(a, c, t, vc0):
    for p in (0, 2):
        a(f"v_pk_mul_f32 {vr(t+p,2)}, {vr(c+p,2)}, {vr(c+p,2)}")
    for p in (0, 2):
        a(f"v_pk_fma_f32 {vr(t+p,2)}, {vr(t+p,2)}, {vr(vc0+2,2)}, {vr(vc0,2)}")
    for p in (0, 2):
        a(f"v_pk_mul_f32 {vr(t+p,2)}, {vr(t+p,2)}, {vr(c+p,2)}")
    for r in range(4): a(f"v_exp_f32 v{t+r}, v{t+r}")
    for p in (0, 2):
        a(f"v_pk_add_f32 {vr(t+p,2)}, {vr(t+p,2)}, 1.0 op_sel_hi:[1,0]")
    for r in range(4): a(f"v_rcp_f32 v{t+r}, v{t+r}")
    for p in (0, 2):
        a(f"v_pk_mul_f32 {vr(c+p,2)}, {vr(c+p,2)}, {vr(t+p,2)}")

def fold4(a, c, cs, nmb2, rs2):
    for p in (0, 2):
        a(f"v_pk_fma_f32 {vr(c+p,2)}, {vr(cs+p,2)}, {vr(nmb2,2)}, {vr(c+p,2)}")
    for p in (0, 2):
        a(f"v_pk_mul_f32 {vr(c+p,2)}, {vr(c+p,2)}, {vr(rs2,2)}")

def round4(a, c, t):
    a(f"v_cvt_pk_bf16_f32 v{t}, v{c}, v{c+1}")
    a(f"v_cvt_pk_bf16_f32 v{t+1}, v{c+2}, v{c+3}")
    unpack2(a, c, c + 1, t); unpack2(a, c + 2, c + 3, t + 1)

def row_voffw(a, dst, rows_per_wg, rows_per_wave, rs, t, st=0):
    a(f"s_mul_i32 s6, s{S_RT}, {rows_per_wg}")
    a(f"s_mul_i32 s7, s{S_W}, {rows_per_wave}")
    a(f"s_add_u32 s6, s6, s7")
    if st: a(f"s_add_u32 s6, s6, {st * 16}")
    a(f"v_add_u32 v{dst}, s6, v2")
    a(f"s_mov_b32 s7, {rs}")
    a(f"v_mul_lo_u32 v{dst}, v{dst}, s7")
    a(f"v_and_b32 v{t}, 1, v3")
    a(f"v_lshl_add_u32 v{dst}, v{t}, 5, v{dst}")
    a(f"v_lshrrev_b32 v{t}, 1, v3")
    a(f"v_lshl_add_u32 v{dst}, v{t}, 4, v{dst}")
def swap_wide(a, p):
    a(f"v_permlane16_swap_b32 v{p}, v{p+2}")
    a(f"v_permlane16_swap_b32 v{p+1}, v{p+3}")

def pack4(a, dst, c):
    a(f"v_cvt_pk_bf16_f32 v{dst}, v{c}, v{c+1}")
    a(f"v_cvt_pk_bf16_f32 v{dst+1}, v{c+2}, v{c+3}")

import os
PAD = int(os.environ.get('PAD', '4352'))
WS_WQC, WS_W2C, WS_W4C = 0x1500000, 0x1700000, 0x1900000
QS = 32768 + PAD
W2S = 65536 + PAD
W4C_STRIDE = 1536 * 128 + PAD
K0_WGS = 86
def k0_init(a):
    prologue(a, K0_WGS)
    srd(a, SRD_O, P_WS, WS_KV, 2 * KV_STRIDE)
    srd(a, SRD_CS, P_WS, WS_CS, 0x5000)
    a(f"""
    s_cmp_ge_u32 s2, 34
    s_cbranch_scc1 L_nozero
    s_cmp_ge_u32 s2, 17
    s_cselect_b32 s6, {KV_STRIDE - 17 * 4096}, 0
    s_lshl_b32 s7, s2, 12
    s_add_u32 s6, s6, s7
    v_lshlrev_b32 v4, 4, v0
    v_mov_b32 v8, 0
    v_mov_b32 v9, 0
    v_mov_b32 v10, 0
    v_mov_b32 v11, 0
    buffer_store_dwordx4 v[8:11], v4, s[{SRD_O}:{SRD_O+3}], s6 offen
    """)
    a.label("L_nozero")
    a(f"""
    s_mov_b32 s{SRD_B}, s{P_WQKV}
    s_mov_b32 s{SRD_B+1}, s{P_WQKV+1}
    s_mov_b32 s{SRD_B+2}, {512*3072}
    s_mov_b32 s{SRD_B+3}, 0x00020000
    s_mov_b32 s8, 3072
    s_mov_b32 s9, s2
    s_mov_b32 s10, {CS_QKV}
    s_mov_b32 s13, 0
    s_mul_i32 s14, s2, {2*QS}
    s_add_u32 s14, s14, {WS_WQC}
    s_mov_b32 s15, 1
    s_cmp_lt_u32 s2, 24
    s_cbranch_scc1 L_sel
    s_mov_b32 s15, 0
    s_mov_b32 s{SRD_B}, s{P_W1}
    s_mov_b32 s{SRD_B+1}, s{P_W1+1}
    s_mov_b32 s{SRD_B+2}, {512*1024}
    s_mov_b32 s8, 1024
    s_sub_u32 s9, s2, 24
    s_mov_b32 s10, {CS_W1}
    s_cmp_lt_u32 s2, 32
    s_cbranch_scc1 L_sel
    s_mov_b32 s{SRD_B}, s{P_W3}
    s_mov_b32 s{SRD_B+1}, s{P_W3+1}
    s_mov_b32 s{SRD_B+2}, {512*F*2}
    s_mov_b32 s8, {F*2}
    s_sub_u32 s9, s2, 32
    s_mov_b32 s10, {CS_W3}
    s_cmp_lt_u32 s2, 54
    s_cbranch_scc1 L_sel
    s_mov_b32 s15, 2
    s_mov_b32 s{SRD_B}, s{P_W2}
    s_mov_b32 s{SRD_B+1}, s{P_W2+1}
    s_mov_b32 s{SRD_B+2}, {512*1024}
    s_mov_b32 s8, 1024
    s_sub_u32 s9, s2, 54
    s_mul_i32 s14, s9, {W2S}
    s_add_u32 s14, s14, {WS_W2C}
    s_cmp_lt_u32 s2, 62
    s_cbranch_scc1 L_sel
    s_mov_b32 s{SRD_B}, s{P_W4}
    s_mov_b32 s{SRD_B+1}, s{P_W4+1}
    s_mov_b32 s{SRD_B+2}, {F*1024}
    s_sub_u32 s9, s2, 62
    s_lshr_b32 s6, s9, 3
    s_and_b32 s9, s9, 7
    s_lshl_b32 s13, s6, 19
    s_mul_i32 s14, s9, {W4C_STRIDE}
    s_lshl_b32 s6, s6, 16
    s_add_u32 s14, s14, s6
    s_add_u32 s14, s14, {WS_W4C}
    """)
    a.label("L_sel")
    a(f"""
    v_lshrrev_b32 v4, 3, v0
    v_and_b32 v5, 7, v0
    s_lshl_b32 s11, s8, 4
    v_mul_lo_u32 v6, v4, s11
    v_lshl_add_u32 v6, v5, 4, v6
    s_lshl_b32 s12, s9, 7
    s_add_u32 s12, s12, s13
    """)
    for i in range(16):
        a(f"buffer_load_dwordx4 {vr(32+4*i,4)}, v6, s[{SRD_B}:{SRD_B+3}], s12 offen")
        if i < 15: a("s_add_u32 s12, s12, s8")
    a(f"""
    s_add_u32 s{SRD_X1}, s{P_WS}, s14
    s_addc_u32 s{SRD_X1+1}, s{P_WS+1}, 0
    s_mov_b32 s{SRD_X1+2}, {2*QS}
    s_mov_b32 s{SRD_X1+3}, 0x00020000
    v_lshlrev_b32 v7, 11, v4
    v_lshl_add_u32 v7, v5, 4, v7
    v_lshrrev_b32 v12, 2, v5
    v_mul_u32_u24 v12, {QS}, v12
    v_lshl_add_u32 v12, v4, 10, v12
    v_and_b32 v13, 3, v5
    v_lshl_add_u32 v12, v13, 4, v12
    s_cmp_lg_u32 s15, 2
    s_cbranch_scc1 L_sum
    """)
    for i in range(16):
        a(f"s_waitcnt vmcnt({15})")
        a(f"buffer_store_dwordx4 {vr(32+4*i,4)}, v7, s[{SRD_X1}:{SRD_X1+3}], 0 offen offset:{i*128}")
    a("s_branch L_fin")
    a.label("L_sum")
    for r in range(8): a(f"v_mov_b32 v{16+r}, 0")
    for i in range(16):
        a(f"s_waitcnt vmcnt({15-i})")
        for p in range(4):
            unpack2(a, 24, 25, 32 + 4 * i + p)
            a(f"v_pk_add_f32 {vr(16+2*p,2)}, {vr(16+2*p,2)}, v[24:25]")
    a("s_cmp_lg_u32 s15, 1")
    a("s_cbranch_scc1 L_nocopy")
    for i in range(16):
        a(f"buffer_store_dwordx4 {vr(32+4*i,4)}, v12, s[{SRD_X1}:{SRD_X1+3}], 0 offen offset:{i*64}")
    a.label("L_nocopy")
    a("v_lshlrev_b32 v6, 5, v0")
    a("ds_write_b128 v6, v[16:19]")
    a("ds_write_b128 v6, v[20:23] offset:16")
    a("s_waitcnt lgkmcnt(0)")
    a("s_barrier")
    a(f"s_cmp_lg_u32 s{S_W}, 0")
    a("s_cbranch_scc1 L_fin")
    a("v_lshlrev_b32 v6, 2, v1")
    for i in range(32):
        a(f"ds_read_b32 v{100+i}, v6 offset:{i*256}")
    a("s_waitcnt lgkmcnt(0)")
    for st in (16, 8, 4, 2, 1):
        for i in range(st):
            a(f"v_add_f32 v{100+i}, v{100+i}, v{100+st+i}")
    a("s_lshl_b32 s12, s9, 8")
    a("s_add_u32 s12, s12, s10")
    a(f"buffer_store_dword v100, v6, s[{SRD_CS}:{SRD_CS+3}], s12 offen")

def gemm64_chunk(a, steps, ard, brd, aslot, bslot, acc, abuf, bbuf, first, xreg=None, stats=None):
    def lds_off(base_reg, off):
        return base_reg, off
    def reads(j):
        if xreg is None:
            a(f"ds_read_b128 {vr(abuf + (j % 2) * 4, 4)}, v{ard + j} offset:{aslot}")
        for nt in range(4):
            for hh in range(2):
                a(f"ds_read_b64_tr_b16 {vr(bbuf + (j % 2) * 16 + nt * 4 + hh * 2, 2)}, v{brd + nt} offset:{bslot + j * 4096 + hh * 512}")
    per = 8 + (1 if xreg is None else 0)
    reads(0)
    for j in range(steps):
        if j + 1 < steps:
            reads(j + 1); a(f"s_waitcnt lgkmcnt({per})")
        else:
            a("s_waitcnt lgkmcnt(0)")
        x = vr(abuf + (j % 2) * 4, 4) if xreg is None else vr(xreg(j), 4)
        z = first and j == 0
        for nt in range(4):
            c = vr(acc + 4 * nt, 4)
            a(f"v_mfma_f32_16x16x32_bf16 {c}, {vr(bbuf + (j % 2) * 16 + nt * 4, 4)}, {x}, {'0' if z else c}")
        if stats is not None:
            SU, G = stats
            a(f"v_mfma_f32_16x16x32_bf16 {vr(SU,4)}, v[8:11], {x}, {'0' if z else vr(SU,4)}")
            a(f"v_mfma_f32_16x16x32_bf16 {vr(G,4)}, {x}, {x}, {'0' if z else vr(G,4)}")

def gemm64_loop(a, chunks, acc, abuf, bbuf, stats=None, stamps=(), tail=None):
    steps = [(c, j) for c, ch in enumerate(chunks) for j in range(ch[0])]
    def reads(n):
        c, j = steps[n]; _, ar, ao, br, bo = chunks[c]; p = n % 2
        L = [f"ds_read_b128 {vr(abuf + p * 4, 4)}, v{ar + j} offset:{ao}"]
        for nt in range(4):
            for hh in range(2):
                L.append(f"ds_read_b64_tr_b16 {vr(bbuf + p * 16 + nt * 4 + hh * 2, 2)}, v{br + nt} offset:{bo + j * 4096 + hh * 512}")
        return L
    def step(n, nxt):
        z = n == 0; p = n % 2
        nxt = list(nxt); issued = 0
        def rd(k):
            nonlocal issued
            for _ in range(k):
                if nxt: a(nxt.pop(0)); issued += 1
        x = vr(abuf + p * 4, 4)
        per = (2, 2, 2, 1, 1, 1) if stats is not None else (3, 2, 2, 2)
        for nt in range(4):
            a(f"s_waitcnt lgkmcnt({6 - 2 * nt + issued})")
            c = vr(acc + 4 * nt, 4)
            a(f"v_mfma_f32_16x16x32_bf16 {c}, {vr(bbuf + p * 16 + nt * 4, 4)}, {x}, {'0' if z else c}")
            rd(per[nt])
        if stats is not None:
            SU, G = stats
            a(f"v_mfma_f32_16x16x32_bf16 {vr(SU,4)}, v[8:11], {x}, {'0' if z else vr(SU,4)}")
            rd(per[4])
            a(f"v_mfma_f32_16x16x32_bf16 {vr(G,4)}, {x}, {x}, {'0' if z else vr(G,4)}")
            rd(per[5])
        assert not nxt
    for n, (c, j) in enumerate(steps):
        if j == 0:
            barrier(a, c in stamps)
        if n == 0:
            for l in reads(0): a(l)
        else:
            step(n - 1, reads(n))
    step(len(steps) - 1, [])

class Banked:
    def __init__(self, a, base, n, extra):
        self.sets = [base] + extra
        for k, e in enumerate(extra):
            for i in range(n):
                a(f"v_add_u32 v{e+i}, {(k+1) << 16}, v{base+i}")
    def get(self, off):
        return self.sets[off >> 16], off & 0xffff

def k4_shift_w2(a):
    vm = VM(a)
    prologue8(a, 256); decode_wg(a, 4)
    def srds_ld():
        srd(a, SRD_A, P_WS, WS_H, 0x200000)
        srd(a, SRD_B, P_WS, WS_W2C, 8 * W2S)
    def srds_cp():
        srd(a, SRD_O, P_WS, WS_X1, 0x200000)
        srd(a, SRD_X1, P_WS, WS_XB, 0x200000)
    a(f"s_lshl_b32 s12, s{S_CT}, 7")
    split(a)
    row_voff(a, 21, 64, 16, 1024, with_g=8)
    a(f"v_add_u32 v21, s12, v21")
    kwait(a, srds_cp)
    XB = 80
    for nt in range(4):
        a(f"buffer_load_dwordx2 {vr(XB+2*nt,2)}, v21, s[{SRD_X1}:{SRD_X1+3}], 0 offen offset:{nt*32}")
    a_rd256(a, 4, 24, 4096)
    tr_addrs128(a, 12, 24, 'std')
    for nt in range(4): a(f"v_add_u32 v{12+nt}, 0x10000, v{12+nt}")
    gemm64_loop(a, [(4, 4, c * 16384, 12, c * 16384) for c in range(4)], 32, 24, 48, stamps=(0, 1, 2, 3))
    stamp(a)
    a("s_waitcnt vmcnt(0)")
    for nt in range(4):
        c = 32 + 4 * nt
        round4(a, c, 24)
        unpack2(a, 26, 27, XB + 2 * nt); unpack2(a, 28, 29, XB + 2 * nt + 1)
        for p in (0, 2): a(f"v_pk_add_f32 {vr(c+p,2)}, {vr(c+p,2)}, {vr(26+p,2)}")
        pack4(a, c, c)
        a(f"buffer_store_dwordx2 {vr(c,2)}, v21, s[{SRD_O}:{SRD_O+3}], 0 offen offset:{nt*32}")
    loader_begin(a)
    PEND.append(srds_ld)
    AV, BV = 16, 20
    a_voff256(a, AV, 1024, 64, 16, 24)
    b_voff128(a, BV, 24, 128, 'std')
    a(f"s_lshl_b32 s13, s{S_W}, 12")
    a(f"s_lshl_b32 s14, s{S_W}, 10")
    a(f"s_mul_i32 s10, s{S_CT}, {W2S}")
    a(f"s_add_u32 s10, s10, s14")
    if FL('ROT4', 0): a(f"s_mov_b32 s15, s{S_RT}")
    else: a("s_mov_b32 s15, 0")
    def issue(c):
        a(f"s_add_u32 s8, s15, {c}")
        a(f"s_and_b32 s8, s8, 3")
        a(f"s_lshl_b32 s9, s8, 14")
        a(f"s_add_u32 s9, s9, s10")
        a(f"s_mov_b32 s11, {(-1024) & 0xffffffff}")
        for cc, sh in ((1, 1), (2, -2), (3, 2)):
            a(f"s_cmp_eq_u32 s8, {cc}")
            a(f"s_cselect_b32 s11, {(sh * 1024 + cc * 256) & 0xffffffff}, s11")
        for t4 in range(4):
            a(f"v_add_u32 v{88+4*(c%2)+t4}, s11, v{AV+t4}")
        for ab in ((1, 0) if FL('BF4', 0) else (0, 1)):
            if ab == 0:
                for t4 in range(4):
                    dma(a, vm, ('ch', c), 88 + 4 * (c % 2) + t4, SRD_A, 0, 0, (13, c * 16384 + t4 * 1024))
            else:
                for i in range(4):
                    dma(a, vm, ('ch', c), BV, SRD_B, 's9', i * 4096, (14, 65536 + c * 16384 + i * 4096))
    issue(0); issue(1)
    for c in range(4):
        vm.wait(('ch', c)); a("s_barrier")
        if c + 2 < 4: issue(c + 2)
    loader_end(a, (P_W3, 512*F*2, 11))

def pair_exchange(a, hf, send, recv, base, t):
    n = len(send)
    a(f"s_mul_i32 s6, s{S_W}, {2*n*1024}")
    a(f"v_lshlrev_b32 v{t}, 4, v1")
    a(f"v_add_u32 v{t}, s6, v{t}")
    if base: a(f"v_add_u32 v{t}, {base}, v{t}")
    for i, r in enumerate(send):
        a(f"ds_write_b128 v{t}, {vr(r,4)} offset:{(hf*n + i)*1024}")
    a("s_waitcnt lgkmcnt(0)")
    a("s_barrier")
    for i, r in enumerate(recv):
        a(f"ds_read_b128 {vr(r,4)}, v{t} offset:{((1-hf)*n + i)*1024}")

def ln_stats(a, SUM, G, mean, var, t):
    t0 = t
    a(f"v_cndmask_b32 v{var}, 0, v{G}, s[64:65]")
    for r in range(1, 4):
        a(f"v_cndmask_b32 v{var}, v{var}, v{G+r}, s[{64+2*r}:{65+2*r}]")
    a(f"v_mul_f32 v{mean}, {lit(1.0/512)}, v{SUM}")
    xlane_sum(a, var, t0)
    a(f"v_mul_f32 v{var}, {lit(1.0/512)}, v{var}")
    a(f"v_fma_f32 v{var}, -v{mean}, v{mean}, v{var}")
    a(f"v_max_f32 v{var}, 0, v{var}")
def ln_scale(a, var, rs, t):
    bf16r(a, rs, var, t)
    a(f"v_add_f32 v{rs}, {lit(1e-5)}, v{rs}")
    bf16r(a, rs, rs, t)
    a(f"v_sqrt_f32 v{rs}, v{rs}")
    bf16r(a, rs, rs, t)
    a(f"v_rcp_f32 v{rs}, v{rs}")

def k3_ln_w1(a):
    vm = VM(a)
    prologue8(a, 256); decode_wg(a, 4)
    def srds_ld():
        srd(a, SRD_A, P_WS, WS_XA, 0x200000)
        srd(a, SRD_B, P_W1, 0, 512 * 1024)
    def srds_cp():
        srd(a, SRD_A, P_WS, WS_XA, 0x200000)
        srd(a, SRD_O, P_WS, WS_H, 0x200000)
        srd(a, SRD_X1, P_WS, WS_XB, 0x200000)
        srd(a, SRD_CS, P_WS, WS_CS, 0x5000)
    a(f"s_lshl_b32 s12, s{S_CT}, 7")
    split(a)
    CSR = 144
    row_voff(a, 21, 64, 16, 1024, with_g=8)
    a(f"v_add_u32 v21, s12, v21")
    kwait(a, srds_cp)
    RX = 80
    for nt in range(4):
        a(f"buffer_load_dwordx2 {vr(RX+2*nt,2)}, v21, s[{SRD_A}:{SRD_A+3}], 0 offen offset:{nt*32}")
    a("v_lshlrev_b32 v24, 4, v3")
    a(f"s_lshl_b32 s6, s{S_CT}, 8")
    a(f"s_add_u32 s6, s6, {CS_W1}")
    for nt in range(4):
        a(f"buffer_load_dwordx4 {vr(CSR+4*nt,4)}, v24, s[{SRD_CS}:{SRD_CS+3}], s6 offen offset:{nt*64}")
    setup_consts(a)
    a_rd256(a, 4, 24, 4096)
    tr_addrs128(a, 12, 24, 'std')
    for nt in range(4): a(f"v_add_u32 v{12+nt}, 0x10000, v{12+nt}")
    SU, G = 160, 164
    GC = 172
    a(f"v_mov_b32 v{GC}, {lit(GELU_C0)}"); a(f"v_mov_b32 v{GC+1}, {lit(GELU_C0)}")
    a(f"v_mov_b32 v{GC+2}, {lit(GELU_C1)}"); a(f"v_mov_b32 v{GC+3}, {lit(GELU_C1)}")
    gemm64_loop(a, [(4, 4, c * 16384, 12, c * 16384) for c in range(4)], 32, 24, 48, stats=(SU, G), stamps=(0, 1, 2, 3))
    stamp(a)
    MEAN, VAR, MB1, RS1, M2, V2 = 176, 177, 178, 180, 182, 183
    MB, RS = 168, 170
    ln_stats(a, SU, G, MEAN, VAR, 24)
    bf16r(a, MB1, MEAN, 24)
    ln_scale(a, VAR, RS1, 24)
    a(f"v_sub_f32 v{M2}, v{MEAN}, v{MB1}")
    a(f"v_mul_f32 v{V2}, v{VAR}, v{RS1}")
    a(f"v_mul_f32 v{M2}, v{M2}, v{RS1}")
    a(f"v_mul_f32 v{V2}, v{V2}, v{RS1}")
    bf16r(a, M2, M2, 24)
    ln_scale(a, V2, RS, 25)
    a(f"v_mul_f32 v{MB1}, v{MB1}, v{RS1}")
    a(f"v_rcp_f32 v24, v{RS1}")
    a(f"v_add_f32 v{MB}, v{MB1}, v{M2}")
    a(f"v_sub_f32 v{MB1}, 0, v{MB1}")
    a(f"v_mul_f32 v{MB}, v{MB}, v24")
    a(f"v_mul_f32 v{RS}, v{RS}, v{RS1}")
    a(f"v_sub_f32 v{MB}, 0, v{MB}")
    a(f"v_mov_b32 v{RS+1}, v{RS}")
    a(f"v_mov_b32 v{MB+1}, v{MB}")
    a(f"v_mov_b32 v{RS1+1}, v{RS1}")
    a(f"v_mov_b32 v{MB1+1}, v{MB1}")
    a("s_waitcnt vmcnt(0)")
    for np_ in range(2):
        recs = []
        for q in range(2):
            nt = 2 * np_ + q
            r = Rec()
            c = 32 + 4 * nt
            fold4(r, c, CSR + 4 * nt, MB, RS)
            round4(r, c, 24 + 2 * q)
            gelu4(r, c, 184 + 4 * q, GC)
            pack4(r, c, c)
            r(f"buffer_store_dwordx2 {vr(c,2)}, v21, s[{SRD_O}:{SRD_O+3}], 0 offen offset:{nt*32}")
            recs.append(r)
        interleave(a, recs)
    recs = []
    for nt in range(4):
        r = Rec()
        t = 96 + 4 * nt
        unpack2(r, t, t + 1, RX + 2 * nt); unpack2(r, t + 2, t + 3, RX + 2 * nt + 1)
        for p in (0, 2): r(f"v_pk_fma_f32 {vr(t+p,2)}, {vr(t+p,2)}, {vr(RS1,2)}, {vr(MB1,2)}")
        pack4(r, t, t)
        r(f"buffer_store_dwordx2 {vr(t,2)}, v21, s[{SRD_X1}:{SRD_X1+3}], 0 offen offset:{nt*32}")
        recs.append(r)
    interleave(a, recs)
    loader_begin(a)
    PEND.append(srds_ld)
    AV, BV = 16, 20
    a_voff256(a, AV, 1024, 64, 16, 24)
    b_voff128(a, BV, 24, 1024, 'std')
    a(f"s_lshl_b32 s13, s{S_W}, 12")
    a(f"s_lshl_b32 s14, s{S_W}, 10")
    a(f"s_mul_i32 s10, s{S_W}, {8*1024}")
    a(f"s_add_u32 s10, s10, s12")
    ROT = os.environ.get('ROT', '3')
    if ROT == '1': a(f"s_add_u32 s15, s{S_CT}, s{S_RT}")
    elif ROT == '2': a(f"s_mov_b32 s15, s{S_CT}")
    elif ROT == '3': a(f"s_mov_b32 s15, s{S_RT}")
    else: a("s_mov_b32 s15, 0")
    def issue(c):
        a(f"s_add_u32 s8, s15, {c}")
        a(f"s_and_b32 s8, s8, 3")
        a(f"s_lshl_b32 s9, s8, 17")
        a(f"s_add_u32 s9, s9, s10")
        a(f"s_lshl_b32 s8, s8, 8")
        for ab in ((0, 1) if os.environ.get('BF', '1') == '0' else (1, 0)):
            if ab == 0:
                for t4 in range(4):
                    dma(a, vm, ('ch', c), AV + t4, SRD_A, 's8', 0, (13, c * 16384 + t4 * 1024))
            else:
                for i in range(4):
                    dma(a, vm, ('ch', c), BV, SRD_B, 's9', i * 32768, (14, 65536 + c * 16384 + i * 4096))
    issue(0); issue(1)
    for c in range(4):
        vm.wait(('ch', c)); a("s_barrier")
        if c + 2 < 4: issue(c + 2)
    loader_end(a)

def k6_w4(a):
    vm = VM(a)
    prologue8(a, 256); decode_wg(a, 4)
    def srds_ld():
        srd(a, SRD_A, P_WS, WS_H3, S * H3S)
        srd(a, SRD_B, P_WS, WS_W4C, 8 * W4C_STRIDE)
    def srds_cp():
        srd_sel(a, SRD_O, P_WS, WS_XN, P_OUT, 0, 0x200000)
        srd(a, SRD_X1, P_WS, WS_X1, 0x200000)
        srd(a, SRD_X2, P_WS, WS_XA, 0x200000)
    NS, NCH, NI = 5, 11, 2
    a(f"s_lshl_b32 s12, s{S_CT}, 7")
    split(a)
    row_voff(a, 21, 64, 16, 1024, with_g=8)
    a(f"v_add_u32 v21, s12, v21")
    kwait(a, srds_cp)
    R1, R2 = 96, 104
    for nt in range(4):
        a(f"buffer_load_dwordx2 {vr(R1+2*nt,2)}, v21, s[{SRD_X1}:{SRD_X1+3}], 0 offen offset:{nt*32}")
        a(f"buffer_load_dwordx2 {vr(R2+2*nt,2)}, v21, s[{SRD_X2}:{SRD_X2+3}], 0 offen offset:{nt*32}")
    a_rd256(a, 4, 24, 4096)
    tr_addrs128(a, 12, 24, 'std')
    AB = Banked(a, 4, 4, [80, 84])
    BB = Banked(a, 12, 4, [88, 92])
    chs = []
    for c in range(NCH):
        slot = (c % NS) * 32768
        ar, ao = AB.get(slot); br, bo = BB.get(slot + 16384)
        chs.append((4 if c < 10 else 3, ar, ao, br, bo))
    gemm64_loop(a, chs, 32, 24, 48, stamps=(0, NCH - 1))
    stamp(a)
    a("s_waitcnt vmcnt(0)")
    for nt in range(4):
        c = 32 + 4 * nt
        round4(a, c, 24)
        unpack2(a, 26, 27, R1 + 2 * nt); unpack2(a, 28, 29, R1 + 2 * nt + 1)
        for p in (0, 2): a(f"v_pk_add_f32 {vr(c+p,2)}, {vr(c+p,2)}, {vr(26+p,2)}")
        round4(a, c, 24)
        unpack2(a, 26, 27, R2 + 2 * nt); unpack2(a, 28, 29, R2 + 2 * nt + 1)
        for p in (0, 2): a(f"v_pk_add_f32 {vr(c+p,2)}, {vr(c+p,2)}, {vr(26+p,2)}")
        pack4(a, c, c)
        a(f"buffer_store_dwordx2 {vr(c,2)}, v21, s[{SRD_O}:{SRD_O+3}], 0 offen offset:{nt*32}")
    loader_begin(a)
    PEND.append(srds_ld)
    AV, BV = 16, 20
    a_voff256(a, AV, H3S, 64, 16, 24)
    b_voff128(a, BV, 24, 128, 'std')
    a(f"s_lshl_b32 s13, s{S_W}, 12")
    a(f"s_lshl_b32 s14, s{S_W}, 10")
    a(f"s_mul_i32 s10, s{S_CT}, {W4C_STRIDE}")
    a(f"s_add_u32 s10, s10, s14")
    if FL('ROT6', 0):
        a(f"s_and_b32 s60, s{S_RT}, 3")
        a(f"s_mul_i32 s60, s60, {FL('ROT6', 0)}")
    else: a("s_mov_b32 s60, 0")
    def issue(c):
        slot = (c % NS) * 32768
        if c < 10:
            a(f"s_add_u32 s8, s60, {c}")
            a(f"s_sub_u32 s9, s8, 10")
            a(f"s_cmp_ge_u32 s8, 10")
            a(f"s_cselect_b32 s8, s9, s8")
        else: a(f"s_mov_b32 s8, 10")
        a(f"s_lshl_b32 s9, s8, 14")
        a(f"s_add_u32 s9, s9, s10")
        a(f"s_lshl_b32 s8, s8, 8")
        for ab in ((1, 0) if FL('BF6', 0) else (0, 1)):
            if ab == 0:
                for t4 in range(4):
                    dma(a, vm, ('ch', c), AV + t4, SRD_A, 's8', 0, (13, slot + t4 * 1024))
            else:
                for i in range(4 if c < 10 else 3):
                    dma(a, vm, ('ch', c), BV, SRD_B, 's9', i * 4096, (14, slot + 16384 + i * 4096))
    loader_ring(a, vm, issue, NCH, NS, NI)
    loader_end(a, (P_WQKV, 512*3072, 12))

def loader_ring(a, vm, issue, NCH, NS, NI, hook=None):
    nxt = 0
    while nxt < min(NI, NCH): issue(nxt); nxt += 1
    for c in range(NCH):
        vm.wait(('ch', c)); a("s_barrier")
        k = 0
        while nxt < NCH and nxt <= c - 1 + NS and k < LOOKAHEAD_STEP:
            issue(nxt); nxt += 1; k += 1
            if nxt == NCH and hook: hook(vm)

LOOKAHEAD_STEP = 1

SLOT96 = 28672
def gemm96_compute(a, orient):
    NS, NCH = 5, 8
    setup_consts(a)
    a_rd128(a, 4, 24, 4096)
    tr_addrs64s(a, 160, 24, 4096)
    AB = Banked(a, 4, 2, [166, 168])
    BB = Banked(a, 160, 6, [170, 176])
    acc = lambda st, nt: 32 + 24 * st + 4 * nt
    def reads(c, j):
        slot = (c % NS) * SLOT96
        L = []
        for st in range(2):
            r, o = AB.get(slot + st * 2048)
            L.append(f"ds_read_b128 {vr(96 + j * 8 + st * 4, 4)}, v{r + j} offset:{o}")
        for nt in range(6):
            for hh in range(2):
                r, o = BB.get(slot + 16384 + j * 2048 + hh * 256)
                L.append(f"ds_read_b64_tr_b16 {vr(112 + j * 24 + nt * 4 + hh * 2, 2)}, v{r + nt} offset:{o}")
        return L
    def step(c, j, nxt):
        z = c == 0 and j == 0
        nxt = list(nxt); issued = 0
        def rd():
            nonlocal issued
            if nxt: a(nxt.pop(0)); issued += 1
        for nt in range(6):
            a(f"s_waitcnt lgkmcnt({10 - 2 * nt + issued})")
            for st in range(2):
                cc = vr(acc(st, nt), 4); w = vr(112 + j * 24 + nt * 4, 4); x = vr(96 + j * 8 + st * 4, 4)
                if orient[nt] == 'T': a(f"v_mfma_f32_16x16x32_bf16 {cc}, {w}, {x}, {'0' if z else cc}")
                else: a(f"v_mfma_f32_16x16x32_bf16 {cc}, {x}, {w}, {'0' if z else cc}")
                rd()
        for st in range(2):
            x = vr(96 + j * 8 + st * 4, 4); SU = vr(80 + 8 * st, 4); G = vr(84 + 8 * st, 4)
            a(f"v_mfma_f32_16x16x32_bf16 {SU}, v[8:11], {x}, {'0' if z else SU}")
            rd()
            a(f"v_mfma_f32_16x16x32_bf16 {G}, {x}, {x}, {'0' if z else G}")
            rd()
        assert not nxt
    for c in range(NCH):
        barrier(a, c in (0, 3, 4, NCH - 1,))
        if c == 0:
            for l in reads(0, 0): a(l)
        else:
            step(c - 1, 1, reads(c, 0))
        step(c, 0, reads(c, 1))
    step(NCH - 1, 1, [])
    stamp(a)
    return acc

def gemm96_loader(a, rs_a, rs_b, col_sgprs, hook=None):
    vm = VM(a)
    NS, NCH, NI = 5, 8, 2
    AV, BV = 16, 18
    a_voff128(a, AV, rs_a, 128, 32, 24)
    b_voff64(a, BV, 24, rs_b)
    a(f"s_lshl_b32 s13, s{S_W}, 12")
    a(f"s_lshl_b32 s14, s{S_W}, 10")
    a(f"s_mul_i32 s10, s{S_W}, {16*rs_b}")
    a(f"s_mov_b32 s11, {16*rs_a}")
    if FL('ROT96', 0):
        a(f"s_and_b32 s60, s{S_RT}, 1")
        a(f"s_mul_i32 s60, s60, {FL('ROT96', 0)}")
    else: a("s_mov_b32 s60, 0")
    def issue(c):
        slot = (c % NS) * SLOT96
        a(f"s_add_u32 s61, s60, {c}")
        a(f"s_and_b32 s61, s61, 7")
        a(f"s_mul_i32 s62, s61, {64*rs_b}")
        a(f"s_add_u32 s62, s62, s10")
        a(f"s_lshl_b32 s61, s61, 7")
        a(f"s_add_u32 s63, s61, s11")
        for ab in ((1, 0) if FL('BF96', 0) else (0, 1)):
            if ab == 0:
                for t in range(4):
                    dma(a, vm, ('ch', c), AV + (t & 1), SRD_A, 's63' if t >= 2 else 's61', 0, (13, slot + t * 1024))
            else:
                for j in range(3):
                    a(f"s_add_u32 s48, s62, s{col_sgprs[j]}")
                    dma(a, vm, ('ch', c), BV, SRD_B, 's48', 0, (14, slot + 16384 + j * 4096))
    loader_ring(a, vm, issue, NCH, NS, NI, hook)

def k5_ln_w3(a):
    vm = VM(a)
    prologue8(a, 240); decode_wg(a, 2)
    def srds_ld():
        srd(a, SRD_A, P_WS, WS_X1, 0x200000)
        srd(a, SRD_B, P_W3, 0, 512 * F * 2)
    def srds_cp():
        srd(a, SRD_O, P_WS, WS_H3, S * H3S)
        srd(a, SRD_CS, P_WS, WS_CS, 0x5000)
    a(f"s_mul_i32 s12, s{S_CT}, 192")
    a(f"s_add_u32 s8, s12, 64")
    a(f"s_add_u32 s9, s12, 128")
    CSR = 184
    NST = 1 if EPI8 else 2
    def after(vm, sts):
        a("v_lshlrev_b32 v24, 4, v3")
        a(f"s_mul_i32 s6, s{S_CT}, 384")
        a(f"s_add_u32 s6, s6, {CS_W3}")
        for nt in range(6):
            a(f"buffer_load_dwordx4 {vr(CSR+4*nt,4)}, v24, s[{SRD_CS}:{SRD_CS+3}], s6 offen offset:{nt*64}")
            vm.issue('cs')
        for i, st in enumerate(sts):
            row_voffw(a, 20 + i, 128, 32, H3S, 25, st=st)
            a(f"v_add_u32 v{20+i}, s12, v{20+i}")
    split(a)
    kwait(a, srds_cp)
    after(vm, (0,) if EPI8 else (0, 1))
    acc = gemm96_compute(a, 'TTTTTT')
    if EPI8:
        handover_put(a, [56 + 4 * i for i in range(6)] + [88, 92])
        a.label("L_epi")
    MB = (96, 100); RS = (98, 102)
    for st in range(NST):
        ln_finish(a, 80 + 8 * st, 84 + 8 * st, MB[st], RS[st], 24)
        a(f"v_mov_b32 v{RS[st]+1}, v{RS[st]}")
        a(f"v_sub_f32 v{MB[st]}, 0, v{MB[st]}")
        a(f"v_mov_b32 v{MB[st]+1}, v{MB[st]}")
    GC = 104
    a(f"v_mov_b32 v{GC}, {lit(GELU_C0)}"); a(f"v_mov_b32 v{GC+1}, {lit(GELU_C0)}")
    a(f"v_mov_b32 v{GC+2}, {lit(GELU_C1)}"); a(f"v_mov_b32 v{GC+3}, {lit(GELU_C1)}")
    vm.wait('cs')
    for np_ in range(3):
        if np_ == 1:
            a(f"s_cmp_eq_u32 s{S_CT}, 14")
            a("s_cbranch_scc1 L_fin")
        for st in range(NST):
            recs = []
            c0 = acc(st, 2 * np_)
            for q in range(2):
                nt = 2 * np_ + q
                r = Rec()
                c = acc(st, nt)
                fold4(r, c, CSR + 4 * nt, MB[st], RS[st])
                round4(r, c, 24 + 2 * q)
                gelu4(r, c, 108 + 4 * q, GC)
                pack4(r, 116 + 4 * st + 2 * q, c)
                recs.append(r)
            interleave(a, recs)
            swap_wide(a, 116 + 4 * st)
            a(f"buffer_store_dwordx4 {vr(116+4*st,4)}, v{20+st}, s[{SRD_O}:{SRD_O+3}], 0 offen offset:{np_*64}")
    loader_begin(a)
    PEND.append(srds_ld)
    def hook(vml):
        setup_consts(a)
        after(vml, (1,))
    gemm96_loader(a, 1024, F * 2, (12, 8, 9), hook if EPI8 else None)
    if EPI8:
        handover_get(a, [32 + 4 * i for i in range(6)] + [80, 84])
        a("s_branch L_epi")
    else:
        loader_end(a)

def k1_qkv(a):
    vm = VM(a)
    prologue8(a, 256); decode_wg(a, 2)
    def srds_ld():
        srd_sel(a, SRD_A, P_X, 0, P_WS, WS_XN, 0x200000)
        srd(a, SRD_B, P_WS, WS_WQC, 48 * QS)
    def srds_cp():
        srd(a, SRD_O, P_WS, WS_PHIQ, 0x400000)
        srd(a, SRD_X1, P_WPHI, 0, 32 * 512)
        srd(a, SRD_CS, P_WS, WS_CS, 0x5000)
        a(f"s_mul_i32 s6, s{S_LAYER}, {KV_STRIDE}")
        a(f"s_add_u32 s6, s6, {WS_KV}")
        a(f"s_add_u32 s{SRD_X2}, s{P_WS}, s6")
        a(f"s_addc_u32 s{SRD_X2+1}, s{P_WS+1}, 0")
        a(f"s_mov_b32 s{SRD_X2+2}, {KV_STRIDE}")
        a(f"s_mov_b32 s{SRD_X2+3}, 0x00020000")
    a(f"s_mul_i32 s12, s{S_CT}, {QS}")
    a(f"s_add_u32 s8, s12, {16*QS}")
    a(f"s_add_u32 s9, s12, {32*QS}")
    CSQ = 184
    WP = 204
    def after(vm, st):
        a(f"v_lshlrev_b32 v24, 7, v3")
        a(f"v_lshl_add_u32 v24, v2, 1, v24")
        a(f"s_lshl_b32 s6, s{S_CT}, 10")
        for h in range(2):
            for jj in range(4):
                a(f"buffer_load_ushort v{WP+4*h+jj}, v24, s[{SRD_X1}:{SRD_X1+3}], s6 offen offset:{h*512 + jj*32}")
                vm.issue('cs')
        a("v_lshlrev_b32 v24, 4, v3")
        a("v_lshlrev_b32 v25, 2, v2")
        a(f"s_lshl_b32 s6, s{S_CT}, 7")
        for nt in range(4):
            a(f"buffer_load_dwordx4 {vr(CSQ+4*nt,4)}, v24, s[{SRD_CS}:{SRD_CS+3}], s6 offen offset:{(nt//2)*2048 + (nt%2)*64}")
            vm.issue('cs')
        a(f"s_add_u32 s6, s6, 4096")
        for h in range(2):
            a(f"buffer_load_dword v{CSQ+16+h}, v25, s[{SRD_CS}:{SRD_CS+3}], s6 offen offset:{h*64}")
            vm.issue('cs')
        for i, s_ in enumerate(st):
            row_voff(a, 20 + i, 128, 32, 2048, with_g=8, st=s_)
            a(f"s_lshl_b32 s6, s{S_CT}, 7")
            a(f"v_add_u32 v{20+i}, s6, v{20+i}")
    NST = 1 if EPI8 else 2
    split(a)
    kwait(a, srds_cp)
    after(vm, (0,) if EPI8 else (0, 1))
    accf = gemm96_compute(a, 'TTTTNN')
    if EPI8:
        handover_put(a, [56 + 4 * i for i in range(6)] + [88, 92])
        a.label("L_epi")
    stamp(a)
    MB = (96, 100); RS = (98, 102)
    for st in range(NST):
        ln_finish(a, 80 + 8 * st, 84 + 8 * st, MB[st], RS[st], 24)
    RRS = (104, 112); RRM = (108, 116)
    a("v_lshlrev_b32 v23, 4, v3")
    for r in range(4): a(f"v_add_u32 v{24+r}, {4*r}, v23")
    for st in range(NST):
        for r in range(4):
            a(f"ds_bpermute_b32 v{RRS[st]+r}, v{24+r}, v{RS[st]}")
            a(f"ds_bpermute_b32 v{RRM[st]+r}, v{24+r}, v{MB[st]}")
    for st in range(NST):
        a(f"v_mov_b32 v{RS[st]+1}, v{RS[st]}")
        a(f"v_sub_f32 v{MB[st]}, 0, v{MB[st]}")
        a(f"v_mov_b32 v{MB[st]+1}, v{MB[st]}")
    vm.wait('cs')
    for h in range(2):
        for jj in range(2):
            a(f"v_lshl_or_b32 v{28+2*h+jj}, v{WP+4*h+2*jj+1}, 16, v{WP+4*h+2*jj}")
    a("s_waitcnt lgkmcnt(0)")
    KV = 120; Z = 136
    T = 212
    L2P = 202
    IDN = 22
    a(f"v_mov_b32 v{L2P}, {lit(LOG2E)}"); a(f"v_mov_b32 v{L2P+1}, {lit(LOG2E)}")
    a("v_mov_b32 v24, 0x3f80"); a("v_mov_b32 v25, 0x3f800000")
    for p in range(2):
        a(f"v_cndmask_b32 v{IDN+p}, 0, v24, s[{64+4*p}:{65+4*p}]")
        a(f"v_cndmask_b32 v26, 0, v25, s[{66+4*p}:{67+4*p}]")
        a(f"v_or_b32 v{IDN+p}, v{IDN+p}, v26")
    def red4(r, A, B, C, D, op, mid):
        r(f"v_permlane16_swap_b32 v{A}, v{B}")
        r(f"v_permlane16_swap_b32 v{C}, v{D}")
        r(f"{op} v{A}, v{A}, v{B}")
        r(f"{op} v{C}, v{C}, v{D}")
        r(f"v_permlane32_swap_b32 v{A}, v{C}")
        r(f"{op} v{A}, v{A}, v{C}")
        r(mid)
        r(f"v_mov_b32 v{C}, v{A}")
        r(f"v_permlane32_swap_b32 v{A}, v{C}")
        r(f"v_mov_b32 v{B}, v{A}")
        r(f"v_mov_b32 v{D}, v{C}")
        r(f"v_permlane16_swap_b32 v{A}, v{B}")
        r(f"v_permlane16_swap_b32 v{C}, v{D}")
    def stream(st, h, Bq):
        r = Rec()
        wph = vr(28 + 2 * h, 2)
        c = accf(st, h); ck = accf(st, 2 + h); cv = accf(st, 4 + h)
        P, PK, ENQ, ENK, VB = Bq + 4, Bq + 8, Bq + 12, Bq + 16, Bq + 20
        A, B, C, D = Bq + 22, Bq + 24, Bq + 26, Bq + 28
        fold4(r, c, CSQ + 4 * h, MB[st], RS[st])
        fold4(r, ck, CSQ + 8 + 4 * h, MB[st], RS[st])
        pack4(r, Bq, c); pack4(r, Bq + 2, ck)
        r(f"v_mfma_f32_16x16x16_bf16 {vr(P,4)}, {wph}, {vr(Bq,2)}, 0")
        r(f"v_mfma_f32_16x16x16_bf16 {vr(PK,4)}, {wph}, {vr(Bq+2,2)}, 0")
        sel = "op_sel_hi:[1,0,1]" if h == 0 else "op_sel:[0,1,0] op_sel_hi:[1,1,1]"
        for p in (0, 2):
            r(f"v_pk_fma_f32 {vr(cv+p,2)}, {vr(RRM[st]+p,2)}, {vr(CSQ+16,2)}, {vr(cv+p,2)} {sel} neg_lo:[1,0,0] neg_hi:[1,0,0]")
        for p in (0, 2):
            r(f"v_pk_mul_f32 {vr(cv+p,2)}, {vr(cv+p,2)}, {vr(RRS[st]+p,2)}")
        pack4(r, VB, cv)
        round4(r, P, Bq); round4(r, PK, Bq + 2)
        for X, mx, mn in ((P, A, B), (PK, C, D)):
            r(f"v_max3_f32 v{mx}, v{X}, v{X+1}, v{X+2}")
            r(f"v_max3_f32 v{mn}, -v{X}, -v{X+1}, -v{X+2}")
            r(f"v_max_f32 v{mx}, v{mx}, v{X+3}")
            r(f"v_max_f32_e64 v{mn}, v{mn}, -v{X+3}")
        red4(r, A, B, C, D, 'v_max_f32', f"v_mul_f32 v{A}, {lit(-LOG2E)}, v{A}")
        for X, EN, mx, mn in ((P, ENQ, A, B), (PK, ENK, C, D)):
            for p in (0, 2):
                r(f"v_pk_fma_f32 {vr(EN+p,2)}, {vr(X+p,2)}, {vr(L2P,2)}, {vr(mn,2)} op_sel_hi:[1,1,0] neg_lo:[0,1,0] neg_hi:[0,1,0]")
            for p in (0, 2):
                r(f"v_pk_fma_f32 {vr(X+p,2)}, {vr(X+p,2)}, {vr(L2P,2)}, {vr(mx,2)} op_sel_hi:[1,1,0]")
        for X in (P, ENQ, PK, ENK):
            for q in range(4): r(f"v_exp_f32 v{X+q}, v{X+q}")
        for X, d in ((P, A), (ENQ, B), (PK, C), (ENK, D)):
            r(f"v_pk_add_f32 {vr(d,2)}, {vr(X,2)}, {vr(X+2,2)}")
        for d in (A, B, C, D):
            r(f"v_add_f32 v{d}, v{d}, v{d+1}")
        red4(r, A, B, C, D, 'v_add_f32', f"v_rcp_f32 v{A}, v{A}")
        for X, d in ((PK, C), (ENK, D), (P, A), (ENQ, B)):
            for p in (0, 2):
                r(f"v_pk_mul_f32 {vr(X+p,2)}, {vr(X+p,2)}, {vr(d,2)} op_sel_hi:[1,0]")
        pack4(r, PK, PK); pack4(r, ENK, ENK)
        r(f"v_mfma_f32_16x16x16_bf16 {vr(Bq,4)}, {vr(PK,2)}, {vr(IDN,2)}, 0")
        r(f"v_mfma_f32_16x16x16_bf16 {vr(Bq+24,4)}, {vr(ENK,2)}, {vr(IDN,2)}, 0")
        pack4(r, P, P); pack4(r, ENQ, ENQ)
        r(f"buffer_store_dwordx2 {vr(P,2)}, v{20+st}, s[{SRD_O}:{SRD_O+3}], 0 offen offset:{h*64}")
        r(f"buffer_store_dwordx2 {vr(ENQ,2)}, v{20+st}, s[{SRD_O}:{SRD_O+3}], 0 offen offset:{h*64+32}")
        pack4(r, Bq, Bq); pack4(r, Bq + 24, Bq + 24)
        for sg, ph in ((0, Bq), (1, Bq + 24)):
            kv = KV + (h * 2 + sg) * 4; z = Z + (h * 2 + sg) * 4
            r(f"v_mfma_f32_16x16x16_bf16 {vr(kv,4)}, {vr(VB,2)}, {vr(ph,2)}, {'0' if st == 0 else vr(kv,4)}")
            r(f"v_mfma_f32_16x16x16_bf16 {vr(z,4)}, v[8:9], {vr(ph,2)}, {'0' if st == 0 else vr(z,4)}")
        return r
    stamp(a)
    for st in range(NST):
        interleave(a, [stream(st, 0, 212), stream(st, 1, 152)])
    RED = 3 * SLOT96; REDZ = RED + 32768
    a(f"s_lshl_b32 s6, s101, 12")
    a(f"v_lshlrev_b32 v4, 4, v1")
    a(f"v_add_u32 v4, s6, v4")
    a(f"s_lshl_b32 s6, s101, 10")
    a(f"v_lshlrev_b32 v5, 2, v1")
    a(f"v_add_u32 v5, s6, v5")
    a(f"v_add_u32 v4, {RED}, v4")
    a(f"v_add_u32 v5, {REDZ}, v5")
    for i in range(4):
        a(f"ds_write_b128 v4, {vr(KV+4*i,4)} offset:{i*1024}")
        a(f"ds_write_b32 v5, v{Z+4*i} offset:{i*256}")
    a("s_waitcnt lgkmcnt(0)")
    barrier(a)
    a("s_cmp_ge_u32 s101, 4")
    a("s_cbranch_scc1 L_end")
    a(f"v_lshlrev_b32 v4, 4, v0")
    a(f"v_add_u32 v4, {RED}, v4")
    NW = 8 if EPI8 else 4
    for w in range(NW):
        a(f"ds_read_b128 {vr(T+4*w,4)}, v4 offset:{w*4096}")
    a(f"v_lshrrev_b32 v5, 4, v0")
    a(f"v_lshlrev_b32 v5, 8, v5")
    a(f"v_lshl_add_u32 v5, v2, 2, v5")
    a(f"v_add_u32 v5, {REDZ}, v5")
    for w in range(NW):
        a(f"ds_read_b32 v{T+32+w}, v5 offset:{w*1024}")
    a(f"s_lshr_b32 s6, s{S_W}, 1")
    a(f"s_lshl_b32 s7, s{S_CT}, 1")
    a(f"s_add_u32 s6, s6, s7")
    a(f"s_lshl_b32 s6, s6, 11")
    a(f"s_and_b32 s7, s{S_W}, 1")
    a(f"s_lshl_b32 s7, s7, 6")
    a(f"s_add_u32 s6, s6, s7")
    a(f"v_lshlrev_b32 v6, 9, v3")
    a(f"v_lshl_add_u32 v6, v2, 2, v6")
    a(f"s_lshl_b32 s7, s{S_CT}, 8")
    a(f"s_add_u32 s7, s7, {KVZ_OFF}")
    a(f"v_lshlrev_b32 v7, 2, v0")
    a("s_waitcnt lgkmcnt(0)")
    for d in ((16, 8, 4) if EPI8 else (8, 4)):
        for w in range(0, d, 4):
            for p in (0, 2):
                a(f"v_pk_add_f32 {vr(T+w+p,2)}, {vr(T+w+p,2)}, {vr(T+w+d+p,2)}")
    for d in ((4, 2, 1) if EPI8 else (2, 1)):
        for w in range(d):
            a(f"v_add_f32 v{T+32+w}, v{T+32+w}, v{T+32+w+d}")
    for r in range(4):
        a(f"buffer_atomic_add_f32 v{T+r}, v6, s[{SRD_X2}:{SRD_X2+3}], s6 offen offset:{r*128}")
    a(f"s_cmp_lg_u32 s{S_W}, 0")
    a("s_cbranch_scc1 L_fin")
    a(f"buffer_atomic_add_f32 v{T+32}, v7, s[{SRD_X2}:{SRD_X2+3}], s7 offen")
    loader_begin(a)
    PEND.append(srds_ld)
    def hook(vml):
        setup_consts(a)
        after(vml, (1,))
    gemm96_loader(a, 1024, 64, (12, 8, 9), hook if EPI8 else None)
    if EPI8:
        handover_get(a, [32 + 4 * i for i in range(6)] + [80, 84])
        a("s_branch L_epi")
    else:
        loader_end(a)

import os
_V = os.environ.get('K2V', '0')
K2_KV = {c: (c + 2,) for c in range(6)}
K2_CH = {c: (c + 2,) for c in range(6)}
if _V == '1':
    K2_CH = {0: (2, 3), 1: (4,), 2: (5,), 3: (6,), 4: (7,)}
if _V == '2':
    K2_CH = {0: (2, 3), 1: (4,), 2: (5,), 3: (6,), 4: (7,)}
    K2_KV = {0: (2, 3), 1: (4,), 2: (5,), 3: (6,), 4: (7,)}
if _V == '3':
    K2_CH = {0: (2,), 1: (3, 4), 2: (5,), 3: (6,), 4: (7,)}
def k2_attn_wo(a):
    prologue8(a, 256); decode_wg(a, 4)
    def srds():
        a(f"s_mul_i32 s6, s{S_LAYER}, {KV_STRIDE}")
        a(f"s_add_u32 s6, s6, {WS_KV}")
        a(f"s_add_u32 s{SRD_X2}, s{P_WS}, s6")
        a(f"s_addc_u32 s{SRD_X2+1}, s{P_WS+1}, 0")
        a(f"s_mov_b32 s{SRD_X2+2}, {KV_STRIDE}")
        a(f"s_mov_b32 s{SRD_X2+3}, 0x00020000")
        srd(a, SRD_A, P_WS, WS_PHIQ, 0x400000)
        srd(a, SRD_B, P_WO, 0, 512 * 1024)
        srd(a, SRD_O, P_WS, WS_XA, 0x200000)
        srd_sel(a, SRD_X1, P_X, 0, P_WS, WS_XN, 0x200000)
    NS, NCH, SL = 5, 8, 24576
    KVL = NS * SL; ZL = KVL + 32768
    a(f"s_lshl_b32 s12, s{S_CT}, 7")
    a("v_lshlrev_b32 v8, 4, v0")
    a("v_lshlrev_b32 v9, 3, v0")
    split(a)
    PHB = 80
    KVB = 96
    NUB = 128
    OBS = (64, 68)
    BFS = (160, 176)
    KR = [192 + 4 * i for i in range(8)]; ZR = 224
    RX = 240
    def body(hf):
        vm = VM(a)
        tm = gen.TIMING
        if hf: gen.TIMING = False
        AV, BV = 16, 20
        def ldkv(c):
            a(f"s_mov_b32 s6, {c*8192}")
            a(f"buffer_load_dwordx4 {vr(KR[c],4)}, v8, s[{SRD_X2}:{SRD_X2+3}], s6 offen")
            vm.issue(('kv', c))
        def issue(c):
            slot = (c % NS) * SL
            for t4 in range(4):
                dma(a, vm, ('ch', c), AV + t4, SRD_A, 0, c * 256, (13, slot + t4 * 1024))
            for i in range(2):
                dma(a, vm, ('ch', c), BV, SRD_B, 's10', 0, (14, slot + 16384 + i * 4096))
                a(f"s_add_u32 s10, s10, {32*1024}")
        if hf:
            a_voff256(a, AV, 2048, 64, 16, 24)
            b_voff128(a, BV, 24, 1024, 'k2')
            a(f"s_lshl_b32 s13, s{S_W}, 12")
            a(f"s_lshl_b32 s14, s{S_W}, 10")
            a(f"s_mul_i32 s10, s{S_W}, {8*1024}")
            a(f"s_add_u32 s10, s10, s12")
        row_voff(a, 21, 64, 16, 1024, with_g=8)
        a(f"v_add_u32 v21, s12, v21")
        kwait(a, srds)
        ldkv(0)
        a(f"s_mov_b32 s6, {KVZ_OFF}")
        a(f"buffer_load_dwordx2 {vr(ZR,2)}, v9, s[{SRD_X2}:{SRD_X2+3}], s6 offen")
        vm.issue('z')
        if hf: issue(0)
        ldkv(1)
        if hf: issue(1)
        for q in range(2):
            a(f"buffer_load_dwordx2 {vr(RX+2*q,2)}, v21, s[{SRD_X1}:{SRD_X1+3}], 0 offen offset:{(2*hf+q)*32}")
            vm.issue('rx')
        a_rd256(a, 4, 24, 4096)
        tr_addrs128(a, 12, 24, 'k2')
        AB = Banked(a, 4, 4, [232])
        BB = Banked(a, 12, 4, [236])
        a(f"v_add_u32 v9, {KVL}, v9")
        a("v_lshlrev_b32 v10, 2, v0")
        a(f"v_add_u32 v10, {ZL}, v10")
        a("v_lshlrev_b32 v22, 6, v2")
        a("v_lshl_add_u32 v22, v3, 4, v22")
        a(f"v_add_u32 v22, {KVL}, v22")
        a("v_lshlrev_b32 v23, 4, v3")
        a(f"v_add_u32 v23, {ZL}, v23")
        def stage(c):
            vm.wait(('kv', c))
            q = KR[c]
            pack4(a, q, q)
            a(f"ds_write_b64 v9, {vr(q,2)} offset:{c*4096}")
        vm.wait('z')
        a(f"v_cvt_pk_bf16_f32 v{ZR}, v{ZR}, v{ZR+1}")
        a(f"ds_write_b32 v10, v{ZR}")
        stage(0)
        def wo_mfma(c):
            OB = OBS[c % 2]; BF = BFS[c % 2]
            for nt in range(4):
                cc = vr(32 + 4 * nt, 4)
                a(f"v_mfma_f32_16x16x32_bf16 {cc}, {vr(BF + nt*4, 4)}, {vr(OB,4)}, {'0' if c == 0 else cc}")
        for c in range(NCH):
            slot = (c % NS) * SL
            OB = OBS[c % 2]; BF = BFS[c % 2]
            if hf: vm.wait(('ch', c))
            a("s_waitcnt lgkmcnt(0)")
            barrier(a, c in (0, 3, 4))
            ar, ao = AB.get(slot)
            br, bo = BB.get(slot + 16384)
            for q in range(2):
                hh = 2 * hf + q; h = 4 * c + hh
                a(f"ds_read_b128 {vr(PHB+4*q,4)}, v{ar+hh} offset:{ao}")
                a(f"ds_read_b128 {vr(KVB+8*q,4)}, v22 offset:{h*1024}")
                a(f"ds_read_b128 {vr(KVB+8*q+4,4)}, v23 offset:{h*64}")
            for n_ in K2_KV.get(c, ()): ldkv(n_)
            if hf:
                for n_ in K2_CH.get(c, ()): issue(n_)
            if c: wo_mfma(c - 1)
            for q in range(2):
                a(f"s_waitcnt lgkmcnt({3-3*q})")
                n = NUB + 8 * q
                a(f"v_mfma_f32_16x16x32_bf16 {vr(n,4)}, {vr(KVB+8*q,4)}, {vr(PHB+4*q,4)}, 0")
                a(f"v_mfma_f32_16x16x32_bf16 {vr(n+4,4)}, {vr(KVB+8*q+4,4)}, {vr(PHB+4*q,4)}, 0")
            for nt in range(4):
                for hh in range(2):
                    a(f"ds_read_b64_tr_b16 {vr(BF + nt*4 + hh*2, 2)}, v{br+nt} offset:{bo + hf*4096 + hh*2048}")
            recs = []
            for q in range(2):
                r = Rec()
                n = NUB + 8 * q; t = 24 + 2 * q
                bf16r(r, n + 4, n + 4, t)
                r(f"v_add_f32 v{n+4}, {lit(1e-6)}, v{n+4}")
                bf16r(r, n + 4, n + 4, t)
                r(f"v_rcp_f32 v{n+4}, v{n+4}")
                round4(r, n, t)
                for p in (0, 2): r(f"v_pk_mul_f32 {vr(n+p,2)}, {vr(n+p,2)}, {vr(n+4,2)} op_sel_hi:[1,0]")
                pack4(r, OB + 2 * q, n)
                recs.append(r)
            interleave(a, recs)
            if c + 1 < NCH: stage(c + 1)
        a("s_waitcnt lgkmcnt(0)")
        wo_mfma(NCH - 1)
        stamp(a)
        keep = [32 + 4 * (2 * hf + q) for q in range(2)]
        send = [32 + 4 * (2 * (1 - hf) + q) for q in range(2)]
        pair_exchange(a, hf, send, [48, 52], 3 * SL, 24)
        a("s_waitcnt vmcnt(0) lgkmcnt(0)")
        recs = []
        for q in range(2):
            r = Rec()
            c = keep[q]; t = 112 + 8 * q
            for p in (0, 2): r(f"v_pk_add_f32 {vr(c+p,2)}, {vr(c+p,2)}, {vr(48+4*q+p,2)}")
            round4(r, c, t)
            unpack2(r, t + 2, t + 3, RX + 2 * q); unpack2(r, t + 4, t + 5, RX + 2 * q + 1)
            for p in (0, 2): r(f"v_pk_add_f32 {vr(c+p,2)}, {vr(c+p,2)}, {vr(t+2+p,2)}")
            pack4(r, c, c)
            r(f"buffer_store_dwordx2 {vr(c,2)}, v21, s[{SRD_O}:{SRD_O+3}], 0 offen offset:{(2*hf+q)*32}")
            recs.append(r)
        interleave(a, recs)
        gen.TIMING = tm
    body(0)
    loader_begin(a)
    body(1)
    loader_end(a)

KERNELS = [
    ('k0', k0_init, K0_WGS, 8192, False),
    ('k1', k1_qkv, 256, 5 * SLOT96, True),
    ('k2', k2_attn_wo, 256, 5 * 24576 + 32768 + 2048, True),
    ('k3', k3_ln_w1, 256, 131072, False),
    ('k4', k4_shift_w2, 256, 131072, False),
    ('k5', k5_ln_w3, 240, 5 * SLOT96, False),
    ('k6', k6_w4, 256, 163840, True),
]

def build():
    header = open('cdna_kernels/' + NAME + '.s.ref').read().split('; Override launch')[0]
    launches = [('k0', None)]
    for L in range(2):
        for k in KERNELS[1:]:
            launches.append((k[0], L if k[4] else None))
    info = {k[0]: k for k in KERNELS}
    out = [header.rstrip('\n')]
    def lab(n, L): return f"hh_{n}{'' if L is None else '_l%d' % L}_kernel"
    for n, L in launches:
        k = info[n]
        out.append(f"; @launch kernel={lab(n, L)} grid=({k[2]},1,1) block=({256 if n == 'k0' else 512},1,1) lds={k[3]}")
    out.append('.amdgcn_target "amdgcn-amd-amdhsa--gfx950"')
    out.append('.text')
    descs = []
    for n, fn, nwg, lds, layered in KERNELS:
        a = Asm(); St.n = 0
        fn(a)
        a.label("L_fin")
        if gen.TIMING and n != 'k0':
            a("s_cmp_ge_u32 s101, 4")
            a("s_cbranch_scc1 L_end")
        dump_stamps(a, [k[0] for k in KERNELS].index(n))
        body = a.text().replace('L_', f'L{n}_')
        entries = [(lab(n, 0), 0), (lab(n, 1), 1)] if layered else [(lab(n, None), None)]
        if layered:
            for nm, L in entries:
                out.append(f".globl {nm}\n.p2align 8\n.type {nm},@function\n{nm}:")
                out.append(f"  s_mov_b32 s{S_LAYER}, {L}\n  s_branch L{n}_body")
            out.append(f".p2align 8\nL{n}_body:")
        else:
            nm = entries[0][0]
            out.append(f".globl {nm}\n.p2align 8\n.type {nm},@function\n{nm}:")
        out.append(body.rstrip('\n'))
        out.append(f"L{n}_end:\n  s_endpgm")
        for nm, L in entries: descs.append(nm)
    out.append('.section .rodata,"a"')
    for nm in descs:
        out.append(f""".p2align 6
.amdhsa_kernel {nm}
  .amdhsa_next_free_vgpr 256
  .amdhsa_next_free_sgpr 102
  .amdhsa_accum_offset 256
  .amdhsa_group_segment_fixed_size 0
  .amdhsa_kernarg_size 96
  .amdhsa_user_sgpr_count 2
  .amdhsa_user_sgpr_kernarg_segment_ptr 1
  .amdhsa_system_sgpr_workgroup_id_x 1
.end_amdhsa_kernel""")
    return '\n'.join(out) + '\n'

if __name__ == '__main__':
    if len(sys.argv) > 2 and sys.argv[2] == 'timing': gen.TIMING = True
    txt = build()
    dst = sys.argv[1] if len(sys.argv) > 1 else 'cdna_kernels/' + NAME + '.s'
    open(dst, 'w').write(txt)
    print('wrote', dst, len(txt), 'bytes')
```

```python
import sys
import gen
from gen import (Asm, vr, sr, NAME, S, D, F, H, WS_XA, WS_XB, WS_H, WS_X1, WS_XN, WS_H3, WS_PHIQ, WS_KV,
                 KV_STRIDE, KVZ_OFF, P_X, P_WQKV, P_WPHI, P_WO, P_BX, P_W1, P_W2, P_W3, P_W4, P_OUT, P_DBG, P_WS,
                 SRD_A, SRD_B, SRD_O, SRD_X1, SRD_X2, SRD_X3, S_RT, S_CT, S_W, S_LAYER, LOG2E, lit, prologue, srd,
                 srd_sel, decode_wg, tr_addrs128, tr_addrs64, setup_consts, xlane_sum, bf16r, GELU_C0, GELU_C1,
                 unpack2, row_voff, dpp_allreduce, stamp, dump_stamps, St)

WS_CS = 0x1480000
CS_QKV, CS_W1, CS_W3 = 0x0, 0x2000, 0x3000
CS_P1 = 0x8000
CS_SIZE = 0x10000
SRD_CS = 96

class VM:
    def __init__(self, a): self.a = a; self.q = []
    def issue(self, tag): self.q.append(tag)
    def wait(self, tag):
        idx = [i for i, t in enumerate(self.q) if t == tag]
        if not idx: return
        idx = idx[-1]
        n = len(self.q) - 1 - idx
        self.a(f"s_waitcnt vmcnt({min(n, 63)})")
        self.q = self.q[idx + 1:]
    def wait_all(self):
        self.a("s_waitcnt vmcnt(0)"); self.q = []

PEND = []
import os
def FL(n, d): return int(os.environ.get(n, str(d)))
H3S = FL('H3S', 2816)
def srd_sel(a, dst, base0, off0, base1, off1, size):
    a(f"s_add_u32 s{dst}, s{base0}, {off0}")
    a(f"s_addc_u32 s{dst+1}, s{base0+1}, 0")
    a(f"s_add_u32 s{dst+2}, s{base1}, {off1}")
    a(f"s_addc_u32 s{dst+3}, s{base1+1}, 0")
    a(f"s_cmp_eq_u32 s{S_LAYER}, 0")
    a(f"s_cselect_b32 s{dst}, s{dst}, s{dst+2}")
    a(f"s_cselect_b32 s{dst+1}, s{dst+1}, s{dst+3}")
    a(f"s_mov_b32 s{dst+2}, {size}")
    a(f"s_mov_b32 s{dst+3}, 0x00020000")
def kwait(a, code=None, st=True):
    a("s_waitcnt lgkmcnt(0)")
    if st: stamp(a)
    if code: code()
def prologue8(a, nwg):
    a(f"""
    s_cmp_ge_u32 s2, {nwg}
    s_cbranch_scc1 L_end
    """)
    stamp(a)
    a(f"""
    s_load_dwordx16 s[16:31], s[0:1], 0
    s_load_dwordx8 s[32:39], s[0:1], 64
    v_and_b32 v1, 63, v0
    v_lshrrev_b32 v4, 6, v0
    v_and_b32 v2, 15, v0
    v_readfirstlane_b32 s{S_W}, v4
    v_lshrrev_b32 v3, 4, v1
    """)
    a(f"s_mov_b32 s101, s{S_W}")
    a(f"s_and_b32 s{S_W}, s{S_W}, 3")
def split(a):
    a("s_cmp_ge_u32 s101, 4")
    a("s_cbranch_scc1 L_loader")
def loader_begin(a):
    a("s_branch L_fin")
    a.label("L_loader")
PREFETCH = False
EPI8 = False
def loader_end(a, pf=None):
    if pf and PREFETCH:
        ptr, nbytes, n = pf
        srd(a, SRD_X3, ptr, 0, nbytes)
        a("s_lshr_b32 s6, s2, 3")
        a(f"s_lshl_b32 s6, s6, 2")
        a(f"s_add_u32 s6, s6, s{S_W}")
        a(f"s_mul_i32 s6, s6, {n*1024}")
        a("v_lshlrev_b32 v4, 4, v1")
        for i in range(n):
            if i and i % 4 == 0: a("s_add_u32 s6, s6, 4096")
            a(f"buffer_load_dwordx4 {vr(32+4*i,4)}, v4, s[{SRD_X3}:{SRD_X3+3}], s6 offen offset:{(i%4)*1024}")
        a("s_waitcnt vmcnt(0)")
    a("s_branch L_end")

class Rec:
    def __init__(self): self.l = []
    def __call__(self, text):
        for line in text.strip('\n').split('\n'):
            line = line.strip()
            if line: self.l.append(line)
def interleave(a, recs):
    n = max(len(r.l) for r in recs)
    for i in range(n):
        for r in recs:
            if i < len(r.l): a(r.l[i])

def handover_put(a, regs):
    a(f"s_lshl_b32 s6, s{S_W}, 13")
    a("v_lshlrev_b32 v24, 4, v1")
    a("v_add_u32 v24, s6, v24")
    for i, r in enumerate(regs):
        a(f"ds_write_b128 v24, {vr(r,4)} offset:{i*1024}")
    a("s_waitcnt lgkmcnt(0)")
    a("s_barrier")
def handover_get(a, regs):
    a(f"s_lshl_b32 s6, s{S_W}, 13")
    a("v_lshlrev_b32 v24, 4, v1")
    a("v_add_u32 v24, s6, v24")
    a("s_barrier")
    for i, r in enumerate(regs):
        a(f"ds_read_b128 {vr(r,4)}, v24 offset:{i*1024}")
    a("s_waitcnt vmcnt(0) lgkmcnt(0)")
    a("s_nop 7")

def barrier(a, st=True):
    if st: stamp(a)
    a("s_barrier")
    if st: stamp(a)

def a_voff256(a, dst, rs, rows_per_wg, rows_per_wave, t):
    a(f"s_mul_i32 s6, s{S_RT}, {rows_per_wg}")
    a(f"s_mul_i32 s7, s{S_W}, {rows_per_wave}")
    a(f"s_add_u32 s6, s6, s7")
    a(f"s_mov_b32 s7, {rs}")
    for t4 in range(4):
        a(f"v_add_u32 v{t}, {4*t4}, v3")
        a(f"v_xor_b32 v{t+1}, v{t}, v2")
        a(f"v_add_u32 v{t}, s6, v{t}")
        a(f"v_mul_lo_u32 v{t}, v{t}, s7")
        a(f"v_lshl_add_u32 v{dst+t4}, v{t+1}, 4, v{t}")

def a_voff128(a, dst, rs, rows_per_wg, rows_per_wave, t):
    a(f"s_mul_i32 s6, s{S_RT}, {rows_per_wg}")
    a(f"s_mul_i32 s7, s{S_W}, {rows_per_wave}")
    a(f"s_add_u32 s6, s6, s7")
    a(f"s_mov_b32 s7, {rs}")
    a(f"v_lshrrev_b32 v{t+2}, 3, v1")
    a(f"v_and_b32 v{t+3}, 7, v1")
    for t2 in range(2):
        a(f"v_add_u32 v{t}, {4*t2}, v3")
        a(f"v_xor_b32 v{t+1}, v{t}, v{t+3}")
        a(f"v_add_u32 v{t}, {8*t2}, v{t+2}")
        a(f"v_add_u32 v{t}, s6, v{t}")
        a(f"v_mul_lo_u32 v{t}, v{t}, s7")
        a(f"v_lshl_add_u32 v{dst+t2}, v{t+1}, 4, v{t}")

def a_rd256(a, dst, t, wave_bytes):
    a(f"v_xor_b32 v{t}, v3, v2")
    a(f"v_lshlrev_b32 v{t}, 4, v{t}")
    a(f"v_lshl_add_u32 v{t}, v2, 8, v{t}")
    a(f"s_mul_i32 s6, s{S_W}, {wave_bytes}")
    for j in range(4):
        a(f"v_xor_b32 v{dst+j}, {j << 6}, v{t}")
        a(f"v_add_u32 v{dst+j}, s6, v{dst+j}")

def a_rd128(a, dst, t, wave_bytes):
    a(f"v_lshrrev_b32 v{t}, 1, v2")
    a(f"v_xor_b32 v{t}, v3, v{t}")
    a(f"v_lshlrev_b32 v{t}, 4, v{t}")
    a(f"v_lshl_add_u32 v{t}, v2, 7, v{t}")
    a(f"s_mul_i32 s6, s{S_W}, {wave_bytes}")
    for j in range(2):
        a(f"v_xor_b32 v{dst+j}, {j << 6}, v{t}")
        a(f"v_add_u32 v{dst+j}, s6, v{dst+j}")

def dma(a, vm, tag, voff, srdx, soff, imm, m0_sgpr_expr):
    sg, c = m0_sgpr_expr
    if PEND:
        f = PEND.pop(); kwait(a, f, False)
    a(f"s_add_u32 m0, s{sg}, {c}")
    if imm:
        if soff == 0: a(f"s_mov_b32 s7, {imm}")
        else: a(f"s_add_u32 s7, {soff}, {imm}")
        soff = 's7'
    else:
        a("s_nop 0")
    a(f"buffer_load_dwordx4 v{voff}, s[{srdx}:{srdx+3}], {soff} offen lds")
    vm.issue(tag)

def b_voff128(a, voff, t, rs, swz):
    a(f"v_lshrrev_b32 v{t}, 3, v1")
    a(f"v_and_b32 v{voff}, 7, v1")
    if swz == 'std':
        a(f"v_and_b32 v{t+1}, 2, v{t}")
        a(f"s_and_b32 s6, s{S_W}, 1")
        a(f"s_lshl_b32 s6, s6, 2")
        a(f"v_or_b32 v{t+1}, s6, v{t+1}")
    else:
        a(f"v_and_b32 v{t+1}, 6, v{t}")
    a(f"v_xor_b32 v{voff}, v{voff}, v{t+1}")
    a(f"v_lshlrev_b32 v{voff}, 4, v{voff}")
    a(f"s_mov_b32 s6, {rs}")
    a(f"v_mul_lo_u32 v{t}, v{t}, s6")
    a(f"v_add_u32 v{voff}, v{voff}, v{t}")

def b_voff64(a, voff, t, rs):
    a(f"v_lshrrev_b32 v{t}, 2, v1")
    a(f"v_and_b32 v{voff}, 3, v1")
    a(f"v_lshrrev_b32 v{t+1}, 5, v1")
    a(f"v_lshlrev_b32 v{t+1}, 1, v{t+1}")
    a(f"v_xor_b32 v{voff}, v{voff}, v{t+1}")
    a(f"v_lshlrev_b32 v{voff}, 4, v{voff}")
    a(f"s_mov_b32 s6, {rs}")
    a(f"v_mul_lo_u32 v{t}, v{t}, s6")
    a(f"v_add_u32 v{voff}, v{voff}, v{t}")

def tr_addrs64s(a, dst, vt, sub_bytes):
    a(f"v_lshrrev_b32 v{vt}, 2, v2")
    a(f"v_and_b32 v{vt+1}, 3, v2")
    a(f"v_lshl_add_u32 v{vt+2}, v3, 3, v{vt}")
    a(f"v_and_b32 v{vt+3}, 1, v3")
    a(f"v_lshlrev_b32 v{vt+3}, 1, v{vt+3}")
    a(f"v_lshlrev_b32 v{vt+2}, 6, v{vt+2}")
    a(f"v_and_b32 v{vt+4}, 1, v{vt+1}")
    a(f"v_lshl_add_u32 v{vt+2}, v{vt+4}, 3, v{vt+2}")
    a(f"v_lshrrev_b32 v{vt+1}, 1, v{vt+1}")
    for n2 in range(2):
        a(f"v_or_b32 v{vt+4}, {2*n2}, v{vt+1}")
        a(f"v_xor_b32 v{vt+4}, v{vt+4}, v{vt+3}")
        a(f"v_lshl_add_u32 v{dst+n2}, v{vt+4}, 4, v{vt+2}")
    for j in (1, 2):
        for n2 in range(2):
            a(f"v_add_u32 v{dst+2*j+n2}, {j*sub_bytes}, v{dst+n2}")

def ln_finish(a, SUM, G, mb, rs, t):
    g = t; t0 = t + 1; mean = t + 3
    a(f"v_cndmask_b32 v{g}, 0, v{G}, s[64:65]")
    for r in range(1, 4):
        a(f"v_cndmask_b32 v{g}, v{g}, v{G+r}, s[{64+2*r}:{65+2*r}]")
    a(f"v_mul_f32 v{mean}, {lit(1.0/512)}, v{SUM}")
    xlane_sum(a, g, t0)
    bf16r(a, mb, mean, t0)
    a(f"v_mul_f32 v{g}, {lit(1.0/512)}, v{g}")
    a(f"v_fma_f32 v{g}, -v{mean}, v{mean}, v{g}")
    a(f"v_max_f32 v{g}, 0, v{g}")
    bf16r(a, g, g, t0)
    a(f"v_add_f32 v{g}, {lit(1e-5)}, v{g}")
    bf16r(a, g, g, t0)
    a(f"v_sqrt_f32 v{g}, v{g}")
    bf16r(a, g, g, t0)
    a(f"v_rcp_f32 v{rs}, v{g}")

def gelu4(a, c, t, vc0):
    for p in (0, 2):
        a(f"v_pk_mul_f32 {vr(t+p,2)}, {vr(c+p,2)}, {vr(c+p,2)}")
    for p in (0, 2):
        a(f"v_pk_fma_f32 {vr(t+p,2)}, {vr(t+p,2)}, {vr(vc0+2,2)}, {vr(vc0,2)}")
    for p in (0, 2):
        a(f"v_pk_mul_f32 {vr(t+p,2)}, {vr(t+p,2)}, {vr(c+p,2)}")
    for r in range(4): a(f"v_exp_f32 v{t+r}, v{t+r}")
    for p in (0, 2):
        a(f"v_pk_add_f32 {vr(t+p,2)}, {vr(t+p,2)}, 1.0 op_sel_hi:[1,0]")
    for r in range(4): a(f"v_rcp_f32 v{t+r}, v{t+r}")
    for p in (0, 2):
        a(f"v_pk_mul_f32 {vr(c+p,2)}, {vr(c+p,2)}, {vr(t+p,2)}")

def fold4(a, c, cs, nmb2, rs2):
    for p in (0, 2):
        a(f"v_pk_fma_f32 {vr(c+p,2)}, {vr(cs+p,2)}, {vr(nmb2,2)}, {vr(c+p,2)}")
    for p in (0, 2):
        a(f"v_pk_mul_f32 {vr(c+p,2)}, {vr(c+p,2)}, {vr(rs2,2)}")

def round4(a, c, t):
    a(f"v_cvt_pk_bf16_f32 v{t}, v{c}, v{c+1}")
    a(f"v_cvt_pk_bf16_f32 v{t+1}, v{c+2}, v{c+3}")
    unpack2(a, c, c + 1, t); unpack2(a, c + 2, c + 3, t + 1)

def row_voffw(a, dst, rows_per_wg, rows_per_wave, rs, t, st=0):
    a(f"s_mul_i32 s6, s{S_RT}, {rows_per_wg}")
    a(f"s_mul_i32 s7, s{S_W}, {rows_per_wave}")
    a(f"s_add_u32 s6, s6, s7")
    if st: a(f"s_add_u32 s6, s6, {st * 16}")
    a(f"v_add_u32 v{dst}, s6, v2")
    a(f"s_mov_b32 s7, {rs}")
    a(f"v_mul_lo_u32 v{dst}, v{dst}, s7")
    a(f"v_and_b32 v{t}, 1, v3")
    a(f"v_lshl_add_u32 v{dst}, v{t}, 5, v{dst}")
    a(f"v_lshrrev_b32 v{t}, 1, v3")
    a(f"v_lshl_add_u32 v{dst}, v{t}, 4, v{dst}")
def swap_wide(a, p):
    a(f"v_permlane16_swap_b32 v{p}, v{p+2}")
    a(f"v_permlane16_swap_b32 v{p+1}, v{p+3}")

def pack4(a, dst, c):
    a(f"v_cvt_pk_bf16_f32 v{dst}, v{c}, v{c+1}")
    a(f"v_cvt_pk_bf16_f32 v{dst+1}, v{c+2}, v{c+3}")

import os
PAD = int(os.environ.get('PAD', '4352'))
WS_WQC, WS_W2C, WS_W4C = 0x1500000, 0x1700000, 0x1900000
QS = 32768 + PAD
W2S = 65536 + PAD
W4C_STRIDE = 1536 * 128 + PAD
K0_WGS = 86
def k0_init(a):
    prologue(a, K0_WGS)
    srd(a, SRD_O, P_WS, WS_KV, 2 * KV_STRIDE)
    srd(a, SRD_CS, P_WS, WS_CS, 0x5000)
    a(f"""
    s_cmp_ge_u32 s2, 34
    s_cbranch_scc1 L_nozero
    s_cmp_ge_u32 s2, 17
    s_cselect_b32 s6, {KV_STRIDE - 17 * 4096}, 0
    s_lshl_b32 s7, s2, 12
    s_add_u32 s6, s6, s7
    v_lshlrev_b32 v4, 4, v0
    v_mov_b32 v8, 0
    v_mov_b32 v9, 0
    v_mov_b32 v10, 0
    v_mov_b32 v11, 0
    buffer_store_dwordx4 v[8:11], v4, s[{SRD_O}:{SRD_O+3}], s6 offen
    """)
    a.label("L_nozero")
    a(f"""
    s_mov_b32 s{SRD_B}, s{P_WQKV}
    s_mov_b32 s{SRD_B+1}, s{P_WQKV+1}
    s_mov_b32 s{SRD_B+2}, {512*3072}
    s_mov_b32 s{SRD_B+3}, 0x00020000
    s_mov_b32 s8, 3072
    s_mov_b32 s9, s2
    s_mov_b32 s10, {CS_QKV}
    s_mov_b32 s13, 0
    s_mul_i32 s14, s2, {2*QS}
    s_add_u32 s14, s14, {WS_WQC}
    s_mov_b32 s15, 1
    s_cmp_lt_u32 s2, 24
    s_cbranch_scc1 L_sel
    s_mov_b32 s15, 0
    s_mov_b32 s{SRD_B}, s{P_W1}
    s_mov_b32 s{SRD_B+1}, s{P_W1+1}
    s_mov_b32 s{SRD_B+2}, {512*1024}
    s_mov_b32 s8, 1024
    s_sub_u32 s9, s2, 24
    s_mov_b32 s10, {CS_W1}
    s_cmp_lt_u32 s2, 32
    s_cbranch_scc1 L_sel
    s_mov_b32 s{SRD_B}, s{P_W3}
    s_mov_b32 s{SRD_B+1}, s{P_W3+1}
    s_mov_b32 s{SRD_B+2}, {512*F*2}
    s_mov_b32 s8, {F*2}
    s_sub_u32 s9, s2, 32
    s_mov_b32 s10, {CS_W3}
    s_cmp_lt_u32 s2, 54
    s_cbranch_scc1 L_sel
    s_mov_b32 s15, 2
    s_mov_b32 s{SRD_B}, s{P_W2}
    s_mov_b32 s{SRD_B+1}, s{P_W2+1}
    s_mov_b32 s{SRD_B+2}, {512*1024}
    s_mov_b32 s8, 1024
    s_sub_u32 s9, s2, 54
    s_mul_i32 s14, s9, {W2S}
    s_add_u32 s14, s14, {WS_W2C}
    s_cmp_lt_u32 s2, 62
    s_cbranch_scc1 L_sel
    s_mov_b32 s{SRD_B}, s{P_W4}
    s_mov_b32 s{SRD_B+1}, s{P_W4+1}
    s_mov_b32 s{SRD_B+2}, {F*1024}
    s_sub_u32 s9, s2, 62
    s_lshr_b32 s6, s9, 3
    s_and_b32 s9, s9, 7
    s_lshl_b32 s13, s6, 19
    s_mul_i32 s14, s9, {W4C_STRIDE}
    s_lshl_b32 s6, s6, 16
    s_add_u32 s14, s14, s6
    s_add_u32 s14, s14, {WS_W4C}
    """)
    a.label("L_sel")
    a(f"""
    v_lshrrev_b32 v4, 3, v0
    v_and_b32 v5, 7, v0
    s_lshl_b32 s11, s8, 4
    v_mul_lo_u32 v6, v4, s11
    v_lshl_add_u32 v6, v5, 4, v6
    s_lshl_b32 s12, s9, 7
    s_add_u32 s12, s12, s13
    """)
    for i in range(16):
        a(f"buffer_load_dwordx4 {vr(32+4*i,4)}, v6, s[{SRD_B}:{SRD_B+3}], s12 offen")
        if i < 15: a("s_add_u32 s12, s12, s8")
    a(f"""
    s_add_u32 s{SRD_X1}, s{P_WS}, s14
    s_addc_u32 s{SRD_X1+1}, s{P_WS+1}, 0
    s_mov_b32 s{SRD_X1+2}, {2*QS}
    s_mov_b32 s{SRD_X1+3}, 0x00020000
    v_lshlrev_b32 v7, 11, v4
    v_lshl_add_u32 v7, v5, 4, v7
    v_lshrrev_b32 v12, 2, v5
    v_mul_u32_u24 v12, {QS}, v12
    v_lshl_add_u32 v12, v4, 10, v12
    v_and_b32 v13, 3, v5
    v_lshl_add_u32 v12, v13, 4, v12
    s_cmp_lg_u32 s15, 2
    s_cbranch_scc1 L_sum
    """)
    for i in range(16):
        a(f"s_waitcnt vmcnt({15})")
        a(f"buffer_store_dwordx4 {vr(32+4*i,4)}, v7, s[{SRD_X1}:{SRD_X1+3}], 0 offen offset:{i*128}")
    a("s_branch L_fin")
    a.label("L_sum")
    for r in range(8): a(f"v_mov_b32 v{16+r}, 0")
    for i in range(16):
        a(f"s_waitcnt vmcnt({15-i})")
        for p in range(4):
            unpack2(a, 24, 25, 32 + 4 * i + p)
            a(f"v_pk_add_f32 {vr(16+2*p,2)}, {vr(16+2*p,2)}, v[24:25]")
    a("s_cmp_lg_u32 s15, 1")
    a("s_cbranch_scc1 L_nocopy")
    for i in range(16):
        a(f"buffer_store_dwordx4 {vr(32+4*i,4)}, v12, s[{SRD_X1}:{SRD_X1+3}], 0 offen offset:{i*64}")
    a.label("L_nocopy")
    a("v_lshlrev_b32 v6, 5, v0")
    a("ds_write_b128 v6, v[16:19]")
    a("ds_write_b128 v6, v[20:23] offset:16")
    a("s_waitcnt lgkmcnt(0)")
    a("s_barrier")
    a(f"s_cmp_lg_u32 s{S_W}, 0")
    a("s_cbranch_scc1 L_fin")
    a("v_lshlrev_b32 v6, 2, v1")
    for i in range(32):
        a(f"ds_read_b32 v{100+i}, v6 offset:{i*256}")
    a("s_waitcnt lgkmcnt(0)")
    for st in (16, 8, 4, 2, 1):
        for i in range(st):
            a(f"v_add_f32 v{100+i}, v{100+i}, v{100+st+i}")
    a("s_lshl_b32 s12, s9, 8")
    a("s_add_u32 s12, s12, s10")
    a(f"buffer_store_dword v100, v6, s[{SRD_CS}:{SRD_CS+3}], s12 offen")

def gemm64_chunk(a, steps, ard, brd, aslot, bslot, acc, abuf, bbuf, first, xreg=None, stats=None):
    def lds_off(base_reg, off):
        return base_reg, off
    def reads(j):
        if xreg is None:
            a(f"ds_read_b128 {vr(abuf + (j % 2) * 4, 4)}, v{ard + j} offset:{aslot}")
        for nt in range(4):
            for hh in range(2):
                a(f"ds_read_b64_tr_b16 {vr(bbuf + (j % 2) * 16 + nt * 4 + hh * 2, 2)}, v{brd + nt} offset:{bslot + j * 4096 + hh * 512}")
    per = 8 + (1 if xreg is None else 0)
    reads(0)
    for j in range(steps):
        if j + 1 < steps:
            reads(j + 1); a(f"s_waitcnt lgkmcnt({per})")
        else:
            a("s_waitcnt lgkmcnt(0)")
        x = vr(abuf + (j % 2) * 4, 4) if xreg is None else vr(xreg(j), 4)
        z = first and j == 0
        for nt in range(4):
            c = vr(acc + 4 * nt, 4)
            a(f"v_mfma_f32_16x16x32_bf16 {c}, {vr(bbuf + (j % 2) * 16 + nt * 4, 4)}, {x}, {'0' if z else c}")
        if stats is not None:
            SU, G = stats
            a(f"v_mfma_f32_16x16x32_bf16 {vr(SU,4)}, v[8:11], {x}, {'0' if z else vr(SU,4)}")
            a(f"v_mfma_f32_16x16x32_bf16 {vr(G,4)}, {x}, {x}, {'0' if z else vr(G,4)}")

def gemm64_loop(a, chunks, acc, abuf, bbuf, stats=None, stamps=(), tail=None, hooks={}):
    steps = [(c, j) for c, ch in enumerate(chunks) for j in range(ch[0])]
    def reads(n):
        c, j = steps[n]; _, ar, ao, br, bo = chunks[c]; p = n % 2
        L = [f"ds_read_b128 {vr(abuf + p * 4, 4)}, v{ar + j} offset:{ao}"]
        for nt in range(4):
            for hh in range(2):
                L.append(f"ds_read_b64_tr_b16 {vr(bbuf + p * 16 + nt * 4 + hh * 2, 2)}, v{br + nt} offset:{bo + j * 4096 + hh * 512}")
        return L
    def step(n, nxt):
        z = n == 0; p = n % 2
        nxt = list(nxt); issued = 0
        def rd(k):
            nonlocal issued
            for _ in range(k):
                if nxt: a(nxt.pop(0)); issued += 1
        x = vr(abuf + p * 4, 4)
        per = (2, 2, 2, 1, 1, 1) if stats is not None else (3, 2, 2, 2)
        for nt in range(4):
            a(f"s_waitcnt lgkmcnt({6 - 2 * nt + issued})")
            c = vr(acc + 4 * nt, 4)
            a(f"v_mfma_f32_16x16x32_bf16 {c}, {vr(bbuf + p * 16 + nt * 4, 4)}, {x}, {'0' if z else c}")
            rd(per[nt])
        if stats is not None:
            SU, G = stats
            a(f"v_mfma_f32_16x16x32_bf16 {vr(SU,4)}, v[8:11], {x}, {'0' if z else vr(SU,4)}")
            rd(per[4])
            a(f"v_mfma_f32_16x16x32_bf16 {vr(G,4)}, {x}, {x}, {'0' if z else vr(G,4)}")
            rd(per[5])
        assert not nxt
    for n, (c, j) in enumerate(steps):
        if j == 0:
            barrier(a, c in stamps)
            if c in hooks: hooks[c]()
        if n == 0:
            for l in reads(0): a(l)
        else:
            step(n - 1, reads(n))
    step(len(steps) - 1, [])

class Banked:
    def __init__(self, a, base, n, extra):
        self.sets = [base] + extra
        for k, e in enumerate(extra):
            for i in range(n):
                a(f"v_add_u32 v{e+i}, {(k+1) << 16}, v{base+i}")
    def get(self, off):
        return self.sets[off >> 16], off & 0xffff

def k4_shift_w2(a):
    vm = VM(a)
    prologue8(a, 256); decode_wg(a, 4)
    def srds_ld():
        srd(a, SRD_A, P_WS, WS_H, 0x200000)
        srd(a, SRD_B, P_WS, WS_W2C, 8 * W2S)
    def srds_cp():
        srd(a, SRD_O, P_WS, WS_X1, 0x200000)
        srd(a, SRD_X1, P_WS, WS_XB, 0x200000)
    a(f"s_lshl_b32 s12, s{S_CT}, 7")
    split(a)
    row_voff(a, 21, 64, 16, 1024, with_g=8)
    a(f"v_add_u32 v21, s12, v21")
    kwait(a, srds_cp)
    XB = 80
    for nt in range(4):
        a(f"buffer_load_dwordx2 {vr(XB+2*nt,2)}, v21, s[{SRD_X1}:{SRD_X1+3}], 0 offen offset:{nt*32}")
    a_rd256(a, 4, 24, 4096)
    tr_addrs128(a, 12, 24, 'std')
    for nt in range(4): a(f"v_add_u32 v{12+nt}, 0x10000, v{12+nt}")
    gemm64_loop(a, [(4, 4, c * 16384, 12, c * 16384) for c in range(4)], 32, 24, 48, stamps=(0, 1, 2, 3))
    stamp(a)
    a("s_waitcnt vmcnt(0)")
    for nt in range(4):
        c = 32 + 4 * nt
        round4(a, c, 24)
        unpack2(a, 26, 27, XB + 2 * nt); unpack2(a, 28, 29, XB + 2 * nt + 1)
        for p in (0, 2): a(f"v_pk_add_f32 {vr(c+p,2)}, {vr(c+p,2)}, {vr(26+p,2)}")
        pack4(a, c, c)
        a(f"buffer_store_dwordx2 {vr(c,2)}, v21, s[{SRD_O}:{SRD_O+3}], 0 offen offset:{nt*32}")
    loader_begin(a)
    PEND.append(srds_ld)
    AV, BV = 16, 20
    a_voff256(a, AV, 1024, 64, 16, 24)
    b_voff128(a, BV, 24, 128, 'std')
    a(f"s_lshl_b32 s13, s{S_W}, 12")
    a(f"s_lshl_b32 s14, s{S_W}, 10")
    a(f"s_mul_i32 s10, s{S_CT}, {W2S}")
    a(f"s_add_u32 s10, s10, s14")
    if FL('ROT4', 0): a(f"s_mov_b32 s15, s{S_RT}")
    else: a("s_mov_b32 s15, 0")
    def issue(c):
        a(f"s_add_u32 s8, s15, {c}")
        a(f"s_and_b32 s8, s8, 3")
        a(f"s_lshl_b32 s9, s8, 14")
        a(f"s_add_u32 s9, s9, s10")
        a(f"s_mov_b32 s11, {(-1024) & 0xffffffff}")
        for cc, sh in ((1, 1), (2, -2), (3, 2)):
            a(f"s_cmp_eq_u32 s8, {cc}")
            a(f"s_cselect_b32 s11, {(sh * 1024 + cc * 256) & 0xffffffff}, s11")
        for t4 in range(4):
            a(f"v_add_u32 v{88+4*(c%2)+t4}, s11, v{AV+t4}")
        for ab in ((1, 0) if FL('BF4', 0) else (0, 1)):
            if ab == 0:
                for t4 in range(4):
                    dma(a, vm, ('ch', c), 88 + 4 * (c % 2) + t4, SRD_A, 0, 0, (13, c * 16384 + t4 * 1024))
            else:
                for i in range(4):
                    dma(a, vm, ('ch', c), BV, SRD_B, 's9', i * 4096, (14, 65536 + c * 16384 + i * 4096))
    issue(0); issue(1)
    for c in range(4):
        vm.wait(('ch', c)); a("s_barrier")
        if c + 2 < 4: issue(c + 2)
    loader_end(a, (P_W3, 512*F*2, 11))

def pair_exchange(a, hf, send, recv, base, t):
    n = len(send)
    a(f"s_mul_i32 s6, s{S_W}, {2*n*1024}")
    a(f"v_lshlrev_b32 v{t}, 4, v1")
    a(f"v_add_u32 v{t}, s6, v{t}")
    if base: a(f"v_add_u32 v{t}, {base}, v{t}")
    for i, r in enumerate(send):
        a(f"ds_write_b128 v{t}, {vr(r,4)} offset:{(hf*n + i)*1024}")
    a("s_waitcnt lgkmcnt(0)")
    a("s_barrier")
    for i, r in enumerate(recv):
        a(f"ds_read_b128 {vr(r,4)}, v{t} offset:{((1-hf)*n + i)*1024}")

def ln_stats(a, SUM, G, mean, var, t):
    t0 = t
    a(f"v_cndmask_b32 v{var}, 0, v{G}, s[64:65]")
    for r in range(1, 4):
        a(f"v_cndmask_b32 v{var}, v{var}, v{G+r}, s[{64+2*r}:{65+2*r}]")
    a(f"v_mul_f32 v{mean}, {lit(1.0/512)}, v{SUM}")
    xlane_sum(a, var, t0)
    a(f"v_mul_f32 v{var}, {lit(1.0/512)}, v{var}")
    a(f"v_fma_f32 v{var}, -v{mean}, v{mean}, v{var}")
    a(f"v_max_f32 v{var}, 0, v{var}")
def ln_scale(a, var, rs, t):
    bf16r(a, rs, var, t)
    a(f"v_add_f32 v{rs}, {lit(1e-5)}, v{rs}")
    bf16r(a, rs, rs, t)
    a(f"v_sqrt_f32 v{rs}, v{rs}")
    bf16r(a, rs, rs, t)
    a(f"v_rcp_f32 v{rs}, v{rs}")

def k3_ln_w1(a):
    vm = VM(a)
    prologue8(a, 256); decode_wg(a, 4)
    def srds_ld():
        srd(a, SRD_A, P_WS, WS_XA, 0x200000)
        srd(a, SRD_B, P_W1, 0, 512 * 1024)
    def srds_cp():
        srd(a, SRD_A, P_WS, WS_XA, 0x200000)
        srd(a, SRD_O, P_WS, WS_H, 0x200000)
        srd(a, SRD_X1, P_WS, WS_XB, 0x200000)
        srd(a, SRD_CS, P_WS, WS_CS, CS_SIZE)
    a(f"s_lshl_b32 s12, s{S_CT}, 7")
    split(a)
    CSR = 144; CSR2 = 200
    row_voff(a, 21, 64, 16, 1024, with_g=8)
    a(f"v_add_u32 v21, s12, v21")
    kwait(a, srds_cp)
    RX = 80
    for nt in range(4):
        a(f"buffer_load_dwordx2 {vr(RX+2*nt,2)}, v21, s[{SRD_A}:{SRD_A+3}], 0 offen offset:{nt*32}")
    a("v_lshlrev_b32 v24, 4, v3")
    a(f"s_lshl_b32 s6, s{S_CT}, 8")
    a(f"s_add_u32 s6, s6, {CS_W1}")
    for nt in range(4):
        a(f"buffer_load_dwordx4 {vr(CSR+4*nt,4)}, v24, s[{SRD_CS}:{SRD_CS+3}], s6 offen offset:{nt*64}")
    a(f"s_add_u32 s6, s6, {CS_P1}")
    for nt in range(4):
        a(f"buffer_load_dwordx4 {vr(CSR2+4*nt,4)}, v24, s[{SRD_CS}:{SRD_CS+3}], s6 offen offset:{nt*64}")
    def addcs():
        a("s_waitcnt vmcnt(0)")
        for i in range(0, 16, 2): a(f"v_pk_add_f32 {vr(CSR+i,2)}, {vr(CSR+i,2)}, {vr(CSR2+i,2)}")
    setup_consts(a)
    a_rd256(a, 4, 24, 4096)
    tr_addrs128(a, 12, 24, 'std')
    for nt in range(4): a(f"v_add_u32 v{12+nt}, 0x10000, v{12+nt}")
    SU, G = 160, 164
    GC = 172
    a(f"v_mov_b32 v{GC}, {lit(GELU_C0)}"); a(f"v_mov_b32 v{GC+1}, {lit(GELU_C0)}")
    a(f"v_mov_b32 v{GC+2}, {lit(GELU_C1)}"); a(f"v_mov_b32 v{GC+3}, {lit(GELU_C1)}")
    gemm64_loop(a, [(4, 4, c * 16384, 12, c * 16384) for c in range(4)], 32, 24, 48, stats=(SU, G), stamps=(0, 1, 2, 3), hooks={2: addcs})
    stamp(a)
    MEAN, VAR, MB1, RS1, M2, V2 = 176, 177, 178, 180, 182, 183
    MB, RS = 168, 170
    ln_stats(a, SU, G, MEAN, VAR, 24)
    bf16r(a, MB1, MEAN, 24)
    ln_scale(a, VAR, RS1, 24)
    a(f"v_sub_f32 v{M2}, v{MEAN}, v{MB1}")
    a(f"v_mul_f32 v{V2}, v{VAR}, v{RS1}")
    a(f"v_mul_f32 v{M2}, v{M2}, v{RS1}")
    a(f"v_mul_f32 v{V2}, v{V2}, v{RS1}")
    bf16r(a, M2, M2, 24)
    ln_scale(a, V2, RS, 25)
    a(f"v_mul_f32 v{MB1}, v{MB1}, v{RS1}")
    a(f"v_rcp_f32 v24, v{RS1}")
    a(f"v_add_f32 v{MB}, v{MB1}, v{M2}")
    a(f"v_sub_f32 v{MB1}, 0, v{MB1}")
    a(f"v_mul_f32 v{MB}, v{MB}, v24")
    a(f"v_mul_f32 v{RS}, v{RS}, v{RS1}")
    a(f"v_sub_f32 v{MB}, 0, v{MB}")
    a(f"v_mov_b32 v{RS+1}, v{RS}")
    a(f"v_mov_b32 v{MB+1}, v{MB}")
    a(f"v_mov_b32 v{RS1+1}, v{RS1}")
    a(f"v_mov_b32 v{MB1+1}, v{MB1}")
    a("s_waitcnt vmcnt(0)")
    for np_ in range(2):
        recs = []
        for q in range(2):
            nt = 2 * np_ + q
            r = Rec()
            c = 32 + 4 * nt
            fold4(r, c, CSR + 4 * nt, MB, RS)
            round4(r, c, 24 + 2 * q)
            gelu4(r, c, 184 + 4 * q, GC)
            pack4(r, c, c)
            r(f"buffer_store_dwordx2 {vr(c,2)}, v21, s[{SRD_O}:{SRD_O+3}], 0 offen offset:{nt*32}")
            recs.append(r)
        interleave(a, recs)
    recs = []
    for nt in range(4):
        r = Rec()
        t = 96 + 4 * nt
        unpack2(r, t, t + 1, RX + 2 * nt); unpack2(r, t + 2, t + 3, RX + 2 * nt + 1)
        for p in (0, 2): r(f"v_pk_fma_f32 {vr(t+p,2)}, {vr(t+p,2)}, {vr(RS1,2)}, {vr(MB1,2)}")
        pack4(r, t, t)
        r(f"buffer_store_dwordx2 {vr(t,2)}, v21, s[{SRD_X1}:{SRD_X1+3}], 0 offen offset:{nt*32}")
        recs.append(r)
    interleave(a, recs)
    loader_begin(a)
    PEND.append(srds_ld)
    AV, BV = 16, 20
    a_voff256(a, AV, 1024, 64, 16, 24)
    b_voff128(a, BV, 24, 1024, 'std')
    a(f"s_lshl_b32 s13, s{S_W}, 12")
    a(f"s_lshl_b32 s14, s{S_W}, 10")
    a(f"s_mul_i32 s10, s{S_W}, {8*1024}")
    a(f"s_add_u32 s10, s10, s12")
    ROT = os.environ.get('ROT', '3')
    if ROT == '1': a(f"s_add_u32 s15, s{S_CT}, s{S_RT}")
    elif ROT == '2': a(f"s_mov_b32 s15, s{S_CT}")
    elif ROT == '3': a(f"s_mov_b32 s15, s{S_RT}")
    else: a("s_mov_b32 s15, 0")
    def issue(c):
        a(f"s_add_u32 s8, s15, {c}")
        a(f"s_and_b32 s8, s8, 3")
        a(f"s_lshl_b32 s9, s8, 17")
        a(f"s_add_u32 s9, s9, s10")
        a(f"s_lshl_b32 s8, s8, 8")
        for ab in ((0, 1) if os.environ.get('BF', '1') == '0' else (1, 0)):
            if ab == 0:
                for t4 in range(4):
                    dma(a, vm, ('ch', c), AV + t4, SRD_A, 's8', 0, (13, c * 16384 + t4 * 1024))
            else:
                for i in range(4):
                    dma(a, vm, ('ch', c), BV, SRD_B, 's9', i * 32768, (14, 65536 + c * 16384 + i * 4096))
    issue(0); issue(1)
    for c in range(4):
        vm.wait(('ch', c)); a("s_barrier")
        if c + 2 < 4: issue(c + 2)
    loader_end(a)

def k6_w4(a):
    vm = VM(a)
    prologue8(a, 256); decode_wg(a, 4)
    def srds_ld():
        srd(a, SRD_A, P_WS, WS_H3, S * H3S)
        srd(a, SRD_B, P_WS, WS_W4C, 8 * W4C_STRIDE)
    def srds_cp():
        srd_sel(a, SRD_O, P_WS, WS_XN, P_OUT, 0, 0x200000)
        srd(a, SRD_X1, P_WS, WS_X1, 0x200000)
        srd(a, SRD_X2, P_WS, WS_XA, 0x200000)
    NS, NCH, NI = 5, 11, 2
    a(f"s_lshl_b32 s12, s{S_CT}, 7")
    split(a)
    row_voff(a, 21, 64, 16, 1024, with_g=8)
    a(f"v_add_u32 v21, s12, v21")
    kwait(a, srds_cp)
    R1, R2 = 96, 104
    for nt in range(4):
        a(f"buffer_load_dwordx2 {vr(R1+2*nt,2)}, v21, s[{SRD_X1}:{SRD_X1+3}], 0 offen offset:{nt*32}")
        a(f"buffer_load_dwordx2 {vr(R2+2*nt,2)}, v21, s[{SRD_X2}:{SRD_X2+3}], 0 offen offset:{nt*32}")
    a_rd256(a, 4, 24, 4096)
    tr_addrs128(a, 12, 24, 'std')
    AB = Banked(a, 4, 4, [80, 84])
    BB = Banked(a, 12, 4, [88, 92])
    chs = []
    for c in range(NCH):
        slot = (c % NS) * 32768
        ar, ao = AB.get(slot); br, bo = BB.get(slot + 16384)
        chs.append((4 if c < 10 else 3, ar, ao, br, bo))
    gemm64_loop(a, chs, 32, 24, 48, stamps=(0, NCH - 1))
    stamp(a)
    a("s_waitcnt vmcnt(0)")
    for nt in range(4):
        c = 32 + 4 * nt
        round4(a, c, 24)
        unpack2(a, 26, 27, R1 + 2 * nt); unpack2(a, 28, 29, R1 + 2 * nt + 1)
        for p in (0, 2): a(f"v_pk_add_f32 {vr(c+p,2)}, {vr(c+p,2)}, {vr(26+p,2)}")
        round4(a, c, 24)
        unpack2(a, 26, 27, R2 + 2 * nt); unpack2(a, 28, 29, R2 + 2 * nt + 1)
        for p in (0, 2): a(f"v_pk_add_f32 {vr(c+p,2)}, {vr(c+p,2)}, {vr(26+p,2)}")
        pack4(a, c, c)
        a(f"buffer_store_dwordx2 {vr(c,2)}, v21, s[{SRD_O}:{SRD_O+3}], 0 offen offset:{nt*32}")
    loader_begin(a)
    PEND.append(srds_ld)
    AV, BV = 16, 20
    a_voff256(a, AV, H3S, 64, 16, 24)
    b_voff128(a, BV, 24, 128, 'std')
    a(f"s_lshl_b32 s13, s{S_W}, 12")
    a(f"s_lshl_b32 s14, s{S_W}, 10")
    a(f"s_mul_i32 s10, s{S_CT}, {W4C_STRIDE}")
    a(f"s_add_u32 s10, s10, s14")
    if FL('ROT6', 0):
        a(f"s_and_b32 s60, s{S_RT}, 3")
        a(f"s_mul_i32 s60, s60, {FL('ROT6', 0)}")
    else: a("s_mov_b32 s60, 0")
    def issue(c):
        slot = (c % NS) * 32768
        if c < 10:
            a(f"s_add_u32 s8, s60, {c}")
            a(f"s_sub_u32 s9, s8, 10")
            a(f"s_cmp_ge_u32 s8, 10")
            a(f"s_cselect_b32 s8, s9, s8")
        else: a(f"s_mov_b32 s8, 10")
        a(f"s_lshl_b32 s9, s8, 14")
        a(f"s_add_u32 s9, s9, s10")
        a(f"s_lshl_b32 s8, s8, 8")
        for ab in ((1, 0) if FL('BF6', 0) else (0, 1)):
            if ab == 0:
                for t4 in range(4):
                    dma(a, vm, ('ch', c), AV + t4, SRD_A, 's8', 0, (13, slot + t4 * 1024))
            else:
                for i in range(4 if c < 10 else 3):
                    dma(a, vm, ('ch', c), BV, SRD_B, 's9', i * 4096, (14, slot + 16384 + i * 4096))
    loader_ring(a, vm, issue, NCH, NS, NI)
    loader_end(a, (P_WQKV, 512*3072, 12))

def loader_ring(a, vm, issue, NCH, NS, NI, hook=None, per=None):
    nxt = 0
    while nxt < min(NI, NCH): issue(nxt); nxt += 1
    for c in range(NCH):
        vm.wait(('ch', c)); a("s_barrier")
        k = 0
        while nxt < NCH and nxt <= c - 1 + NS and k < LOOKAHEAD_STEP:
            issue(nxt); nxt += 1; k += 1
            if nxt == NCH and hook: hook(vm)
        if per: per(c)

LOOKAHEAD_STEP = 1

SLOT96 = 28672
def gemm96_compute(a, orient, hooks={}):
    NS, NCH = 5, 8
    setup_consts(a)
    a_rd128(a, 4, 24, 4096)
    tr_addrs64s(a, 160, 24, 4096)
    AB = Banked(a, 4, 2, [166, 168])
    BB = Banked(a, 160, 6, [170, 176])
    acc = lambda st, nt: 32 + 24 * st + 4 * nt
    def reads(c, j):
        slot = (c % NS) * SLOT96
        L = []
        for st in range(2):
            r, o = AB.get(slot + st * 2048)
            L.append(f"ds_read_b128 {vr(96 + j * 8 + st * 4, 4)}, v{r + j} offset:{o}")
        for nt in range(6):
            for hh in range(2):
                r, o = BB.get(slot + 16384 + j * 2048 + hh * 256)
                L.append(f"ds_read_b64_tr_b16 {vr(112 + j * 24 + nt * 4 + hh * 2, 2)}, v{r + nt} offset:{o}")
        return L
    def step(c, j, nxt):
        z = c == 0 and j == 0
        nxt = list(nxt); issued = 0
        def rd():
            nonlocal issued
            if nxt: a(nxt.pop(0)); issued += 1
        for nt in range(6):
            a(f"s_waitcnt lgkmcnt({10 - 2 * nt + issued})")
            for st in range(2):
                cc = vr(acc(st, nt), 4); w = vr(112 + j * 24 + nt * 4, 4); x = vr(96 + j * 8 + st * 4, 4)
                if orient[nt] == 'T': a(f"v_mfma_f32_16x16x32_bf16 {cc}, {w}, {x}, {'0' if z else cc}")
                else: a(f"v_mfma_f32_16x16x32_bf16 {cc}, {x}, {w}, {'0' if z else cc}")
                rd()
        for st in range(2):
            x = vr(96 + j * 8 + st * 4, 4); SU = vr(80 + 8 * st, 4); G = vr(84 + 8 * st, 4)
            a(f"v_mfma_f32_16x16x32_bf16 {SU}, v[8:11], {x}, {'0' if z else SU}")
            rd()
            a(f"v_mfma_f32_16x16x32_bf16 {G}, {x}, {x}, {'0' if z else G}")
            rd()
        assert not nxt
    for c in range(NCH):
        barrier(a, c in (0, 3, 4, NCH - 1,))
        if c in hooks: hooks[c]()
        if c == 0:
            for l in reads(0, 0): a(l)
        else:
            step(c - 1, 1, reads(c, 0))
        step(c, 0, reads(c, 1))
    step(NCH - 1, 1, [])
    stamp(a)
    return acc

def gemm96_loader(a, rs_a, rs_b, col_sgprs, hook=None, per=None, pre=None):
    vm = VM(a)
    NS, NCH, NI = 5, 8, 2
    AV, BV = 16, 18
    a_voff128(a, AV, rs_a, 128, 32, 24)
    b_voff64(a, BV, 24, rs_b)
    a(f"s_lshl_b32 s13, s{S_W}, 12")
    a(f"s_lshl_b32 s14, s{S_W}, 10")
    a(f"s_mul_i32 s10, s{S_W}, {16*rs_b}")
    a(f"s_mov_b32 s11, {16*rs_a}")
    if FL('ROT96', 0):
        a(f"s_and_b32 s60, s{S_RT}, 1")
        a(f"s_mul_i32 s60, s60, {FL('ROT96', 0)}")
    else: a("s_mov_b32 s60, 0")
    def issue(c):
        slot = (c % NS) * SLOT96
        a(f"s_add_u32 s61, s60, {c}")
        a(f"s_and_b32 s61, s61, 7")
        a(f"s_mul_i32 s62, s61, {64*rs_b}")
        a(f"s_add_u32 s62, s62, s10")
        a(f"s_lshl_b32 s61, s61, 7")
        a(f"s_add_u32 s63, s61, s11")
        for ab in ((1, 0) if FL('BF96', 0) else (0, 1)):
            if ab == 0:
                for t in range(4):
                    dma(a, vm, ('ch', c), AV + (t & 1), SRD_A, 's63' if t >= 2 else 's61', 0, (13, slot + t * 1024))
            else:
                for j in range(3):
                    a(f"s_add_u32 s48, s62, s{col_sgprs[j]}")
                    dma(a, vm, ('ch', c), BV, SRD_B, 's48', 0, (14, slot + 16384 + j * 4096))
    if pre:
        issue0 = issue
        def issue(c):
            issue0(c)
            if c == NI - 1: pre()
    loader_ring(a, vm, issue, NCH, NS, NI, hook, per)

def k5_ln_w3(a):
    vm = VM(a)
    prologue8(a, 240); decode_wg(a, 2)
    def srds_ld():
        srd(a, SRD_A, P_WS, WS_X1, 0x200000)
        srd(a, SRD_B, P_W3, 0, 512 * F * 2)
    def srds_cp():
        srd(a, SRD_O, P_WS, WS_H3, S * H3S)
        srd(a, SRD_CS, P_WS, WS_CS, CS_SIZE)
    a(f"s_mul_i32 s12, s{S_CT}, 192")
    a(f"s_add_u32 s8, s12, 64")
    a(f"s_add_u32 s9, s12, 128")
    CSR = 184; CSR2 = 208
    NST = 1 if EPI8 else 2
    def addcs():
        vm.wait('cs')
        for i in range(0, 24, 2): a(f"v_pk_add_f32 {vr(CSR+i,2)}, {vr(CSR+i,2)}, {vr(CSR2+i,2)}")
    def after(vm, sts):
        a("v_lshlrev_b32 v24, 4, v3")
        a(f"s_mul_i32 s6, s{S_CT}, 384")
        a(f"s_add_u32 s6, s6, {CS_W3}")
        for nt in range(6):
            a(f"buffer_load_dwordx4 {vr(CSR+4*nt,4)}, v24, s[{SRD_CS}:{SRD_CS+3}], s6 offen offset:{nt*64}")
            vm.issue('cs')
        a(f"s_add_u32 s6, s6, {CS_P1}")
        for nt in range(6):
            a(f"buffer_load_dwordx4 {vr(CSR2+4*nt,4)}, v24, s[{SRD_CS}:{SRD_CS+3}], s6 offen offset:{nt*64}")
            vm.issue('cs')
        for i, st in enumerate(sts):
            row_voffw(a, 20 + i, 128, 32, H3S, 25, st=st)
            a(f"v_add_u32 v{20+i}, s12, v{20+i}")
    split(a)
    kwait(a, srds_cp)
    after(vm, (0,) if EPI8 else (0, 1))
    acc = gemm96_compute(a, 'TTTTTT', hooks={3: addcs})
    if EPI8:
        handover_put(a, [56 + 4 * i for i in range(6)] + [88, 92])
        a.label("L_epi")
    MB = (96, 100); RS = (98, 102)
    for st in range(NST):
        ln_finish(a, 80 + 8 * st, 84 + 8 * st, MB[st], RS[st], 24)
        a(f"v_mov_b32 v{RS[st]+1}, v{RS[st]}")
        a(f"v_sub_f32 v{MB[st]}, 0, v{MB[st]}")
        a(f"v_mov_b32 v{MB[st]+1}, v{MB[st]}")
    GC = 104
    a(f"v_mov_b32 v{GC}, {lit(GELU_C0)}"); a(f"v_mov_b32 v{GC+1}, {lit(GELU_C0)}")
    a(f"v_mov_b32 v{GC+2}, {lit(GELU_C1)}"); a(f"v_mov_b32 v{GC+3}, {lit(GELU_C1)}")
    vm.wait('cs')
    for np_ in range(3):
        if np_ == 1:
            a(f"s_cmp_eq_u32 s{S_CT}, 14")
            a("s_cbranch_scc1 L_fin")
        for st in range(NST):
            recs = []
            c0 = acc(st, 2 * np_)
            for q in range(2):
                nt = 2 * np_ + q
                r = Rec()
                c = acc(st, nt)
                fold4(r, c, CSR + 4 * nt, MB[st], RS[st])
                round4(r, c, 24 + 2 * q)
                gelu4(r, c, 108 + 4 * q, GC)
                pack4(r, 116 + 4 * st + 2 * q, c)
                recs.append(r)
            interleave(a, recs)
            swap_wide(a, 116 + 4 * st)
            a(f"buffer_store_dwordx4 {vr(116+4*st,4)}, v{20+st}, s[{SRD_O}:{SRD_O+3}], 0 offen offset:{np_*64}")
    loader_begin(a)
    PEND.append(srds_ld)
    def hook(vml):
        setup_consts(a)
        after(vml, (1,))
    gemm96_loader(a, 1024, F * 2, (12, 8, 9), hook if EPI8 else None)
    if EPI8:
        handover_get(a, [32 + 4 * i for i in range(6)] + [80, 84])
        a("s_branch L_epi")
    else:
        loader_end(a)

CSL = 5 * SLOT96
JOBL = CSL + 1024
K1A_LDS = JOBL + 16384
SC = ' sc1' if FL('SC1', 1) else ''
def k1_l0_jobs(a):
    S4, S2, SQ, SD, ST = 64, 68, 76, 80, 84
    a("s_lshl_b32 s60, s2, 2")
    a(f"s_add_u32 s60, s60, s{S_W}")
    srd(a, S4, P_W4, 0, F * 1024)
    srd(a, SD, P_WS, WS_WQC, WS_W4C + 8 * W4C_STRIDE - WS_WQC)
    a("v_lshrrev_b32 v28, 3, v1")
    a("v_and_b32 v29, 7, v1")
    a("v_lshlrev_b32 v30, 4, v29")
    a("v_lshl_add_u32 v31, v28, 10, v30")
    a("v_mul_u32_u24 v32, 3072, v28")
    a("v_add_u32 v32, v32, v30")
    a("v_lshlrev_b32 v33, 4, v1")
    a("v_lshrrev_b32 v34, 2, v29")
    a(f"v_mul_u32_u24 v34, {QS}, v34")
    a("v_lshl_add_u32 v34, v28, 6, v34")
    a("v_and_b32 v35, 3, v1")
    a("v_lshl_add_u32 v34, v35, 4, v34")
    a("s_lshr_b32 s6, s60, 3"); a("s_and_b32 s7, s60, 7")
    a("s_lshl_b32 s61, s6, 13"); a("s_lshl_b32 s62, s7, 7"); a("s_add_u32 s61, s61, s62")
    a(f"buffer_load_dwordx4 v[40:43], v31, s[{S4}:{S4+3}], s61 offen")
    a(f"s_mul_i32 s88, s7, {W4C_STRIDE}"); a("s_lshl_b32 s6, s6, 10"); a("s_add_u32 s88, s88, s6")
    a(f"s_add_u32 s88, s88, {WS_W4C - WS_WQC}")
    a("s_lshr_b32 s6, s60, 4"); a("s_and_b32 s7, s60, 15")
    a(f"s_mul_i32 s61, s6, {8*3072}"); a("s_lshl_b32 s62, s7, 7"); a("s_add_u32 s61, s61, s62")
    a(f"buffer_load_dwordx4 v[44:47], v32, s[{SRD_B}:{SRD_B+3}], s61 offen")
    a(f"s_mul_i32 s89, s7, {2*QS}"); a("s_lshl_b32 s6, s6, 9"); a("s_add_u32 s89, s89, s6")
    a("s_cmp_ge_u32 s7, 8")
    a("s_cbranch_scc1 L_nob2")
    a(f"buffer_load_dwordx4 v[48:51], v32, s[{SRD_B}:{SRD_B+3}], s61 offen offset:2048")
    a.label("L_nob2")
    a("s_cmp_ge_u32 s60, 864")
    a("s_cbranch_scc1 L_noa2")
    srd(a, S2, P_W2, 0, 512 * 1024)
    a("s_sub_u32 s63, s60, 352")
    a(f"s_mov_b32 s90, {W2S}")
    a(f"s_mov_b32 s91, {WS_W2C - WS_WQC}")
    a("s_cmp_ge_u32 s60, 352")
    a("s_cbranch_scc1 L_a2w2")
    srd(a, S2, P_W4, 0, F * 1024)
    a("s_add_u32 s63, s60, 1024")
    a(f"s_mov_b32 s90, {W4C_STRIDE}")
    a(f"s_mov_b32 s91, {WS_W4C - WS_WQC}")
    a.label("L_a2w2")
    a("s_lshr_b32 s6, s63, 3"); a("s_and_b32 s7, s63, 7")
    a("s_lshl_b32 s61, s6, 13"); a("s_lshl_b32 s62, s7, 7"); a("s_add_u32 s61, s61, s62")
    a(f"buffer_load_dwordx4 v[52:55], v31, s[{S2}:{S2+3}], s61 offen")
    a("s_mul_i32 s90, s7, s90"); a("s_lshl_b32 s6, s6, 10"); a("s_add_u32 s90, s90, s6")
    a("s_add_u32 s90, s90, s91")
    a.label("L_noa2")
    a(f"s_cmp_lg_u32 s{S_W}, 3")
    a("s_cbranch_scc1 L_noc")
    a("s_cmp_ge_u32 s2, 118")
    a("s_cbranch_scc1 L_noc")
    srd(a, ST, P_W1, 0, 512 * 1024)
    a("s_lshr_b32 s6, s2, 1")
    a("s_mov_b32 s61, 1024")
    a(f"s_mov_b32 s92, {WS_CS + CS_W1}")
    a("s_cmp_lt_u32 s6, 16")
    a("s_cbranch_scc1 L_cw1")
    srd(a, ST, P_W3, 0, 512 * F * 2)
    a("s_sub_u32 s6, s6, 16")
    a(f"s_mov_b32 s61, {F*2}")
    a(f"s_mov_b32 s92, {WS_CS + CS_W3}")
    a.label("L_cw1")
    a("s_lshl_b32 s7, s6, 7"); a("s_add_u32 s92, s92, s7")
    a("s_and_b32 s7, s2, 1")
    a(f"s_mul_i32 s62, s7, {CS_P1}"); a("s_add_u32 s92, s92, s62")
    a("s_lshl_b32 s62, s61, 8"); a("s_mul_i32 s62, s62, s7")
    a("s_lshl_b32 s6, s6, 6"); a("s_add_u32 s62, s62, s6")
    a("v_lshrrev_b32 v24, 2, v1")
    a("v_and_b32 v36, 3, v1")
    a("v_lshrrev_b32 v25, 5, v1")
    a("v_lshlrev_b32 v25, 1, v25")
    a("v_xor_b32 v36, v36, v25")
    a("v_lshlrev_b32 v36, 4, v36")
    a("v_mul_lo_u32 v24, v24, s61")
    a("v_add_u32 v36, v36, v24")
    a("s_lshl_b32 s61, s61, 4")
    for i in range(16):
        a(f"s_mov_b32 m0, {JOBL + i*1024}")
        a("s_nop 0")
        a(f"buffer_load_dwordx4 v36, s[{ST}:{ST+3}], s62 offen lds")
        if i < 15: a("s_add_u32 s62, s62, s61")
    a.label("L_noc")
    a("s_cmp_ge_u32 s60, 68")
    a("s_cbranch_scc1 L_nod")
    srd(a, SQ, P_WS, WS_KV + KV_STRIDE, KV_STRIDE)
    for i in range(4): a(f"v_mov_b32 v{56+i}, 0")
    a("s_lshl_b32 s6, s60, 10")
    a(f"buffer_store_dwordx4 v[56:59], v33, s[{SQ}:{SQ+3}], s6 offen{SC}")
    a.label("L_nod")
    a(f"s_cmp_lg_u32 s{S_RT}, 0")
    a("s_cbranch_scc1 L_noe")
    a(f"s_cmp_lg_u32 s{S_W}, 0")
    a("s_cbranch_scc1 L_noe")
    srd(a, SQ, P_WS, WS_CS, CS_SIZE)
    a(f"v_add_u32 v24, {CSL}, v33")
    a("ds_read_b128 v[60:63], v24")
    a("ds_read_b128 v[64:67], v24 offset:384")
    a("v_lshlrev_b32 v25, 11, v28")
    a("v_add_u32 v25, v25, v30")
    a(f"s_lshl_b32 s6, s{S_CT}, 7")
    a("s_waitcnt lgkmcnt(0)")
    a("v_pk_add_f32 v[60:61], v[60:61], v[64:65]")
    a("v_pk_add_f32 v[62:63], v[62:63], v[66:67]")
    a("s_mov_b64 exec, 0xffffff")
    a(f"buffer_store_dwordx4 v[60:63], v25, s[{SQ}:{SQ+3}], s6 offen{SC}")
    a("s_mov_b64 exec, -1")
    a.label("L_noe")
    a("s_waitcnt vmcnt(0)")
    a(f"buffer_store_dwordx4 v[40:43], v33, s[{SD}:{SD+3}], s88 offen{SC}")
    a(f"buffer_store_dwordx4 v[44:47], v34, s[{SD}:{SD+3}], s89 offen{SC}")
    a("s_and_b32 s7, s60, 15")
    a("s_cmp_ge_u32 s7, 8")
    a("s_cbranch_scc1 L_nob2s")
    a(f"s_add_u32 s89, s89, {32*QS}")
    a(f"buffer_store_dwordx4 v[48:51], v34, s[{SD}:{SD+3}], s89 offen{SC}")
    a.label("L_nob2s")
    a("s_cmp_ge_u32 s60, 864")
    a("s_cbranch_scc1 L_noa2s")
    a(f"buffer_store_dwordx4 v[52:55], v33, s[{SD}:{SD+3}], s90 offen{SC}")
    a.label("L_noa2s")
    a(f"s_cmp_lg_u32 s{S_W}, 3")
    a("s_cbranch_scc1 L_end")
    a("s_cmp_ge_u32 s2, 118")
    a("s_cbranch_scc1 L_end")
    tr_addrs64s(a, 160, 24, 4096)
    for n2 in range(2): a(f"v_add_u32 v{160+n2}, {JOBL}, v{160+n2}")
    for j in range(8):
        for n2 in range(2):
            for hh in range(2):
                a(f"ds_read_b64_tr_b16 {vr(64 + j*8 + n2*4 + hh*2, 2)}, v{160+n2} offset:{j*2048 + hh*256}")
        if j >= 2:
            a(f"s_waitcnt lgkmcnt(8)")
            for n2 in range(2):
                c = vr(40 + 4*n2, 4)
                a(f"v_mfma_f32_16x16x32_bf16 {c}, {vr(64 + (j-2)*8 + n2*4, 4)}, v[8:11], {'0' if j == 2 else c}")
    for j in (6, 7):
        a(f"s_waitcnt lgkmcnt({4*(7-j)})")
        for n2 in range(2):
            c = vr(40 + 4*n2, 4)
            a(f"v_mfma_f32_16x16x32_bf16 {c}, {vr(64 + j*8 + n2*4, 4)}, v[8:11], {c}")
    srd(a, SQ, P_WS, 0, WS_CS + CS_SIZE)
    a("v_lshlrev_b32 v24, 4, v3")
    a("s_mov_b32 exec_lo, 0x00010001")
    a("s_mov_b32 exec_hi, 0x00010001")
    for n2 in range(2):
        a(f"buffer_store_dwordx4 {vr(40+4*n2,4)}, v24, s[{SQ}:{SQ+3}], s92 offen offset:{n2*64}{SC}")
    a("s_branch L_end")

def k1_qkv(a, L0):
    vm = VM(a)
    prologue8(a, 256); decode_wg(a, 2)
    SRD_DBG = SRD_CS
    def srds_ld():
        if L0:
            srd(a, SRD_A, P_X, 0, 0x200000)
            srd(a, SRD_B, P_WQKV, 0, 512 * 3072)
        else:
            srd(a, SRD_A, P_WS, WS_XN, 0x200000)
            srd(a, SRD_B, P_WS, WS_WQC, 48 * QS)
    def srds_cp():
        srd(a, SRD_O, P_WS, WS_PHIQ, 0x400000)
        srd(a, SRD_X1, P_WPHI, 0, 32 * 512)
        if L0: srd(a, SRD_DBG, P_DBG, 0, 256)
        else: srd(a, SRD_CS, P_WS, WS_CS, CS_SIZE)
        srd(a, SRD_X2, P_WS, WS_KV + (0 if L0 else KV_STRIDE), KV_STRIDE)
    if L0:
        a(f"s_lshl_b32 s12, s{S_CT}, 6")
        a(f"s_add_u32 s8, s12, 1024")
        a(f"s_add_u32 s9, s12, 2048")
    else:
        a(f"s_mul_i32 s12, s{S_CT}, {QS}")
        a(f"s_add_u32 s8, s12, {16*QS}")
        a(f"s_add_u32 s9, s12, {32*QS}")
    CSQ = 184
    WP = 204
    TK = 250
    STK = 100
    def ticket():
        a(f"s_cmp_lg_u32 s{S_W}, 0")
        a("s_cbranch_scc1 L_tk0")
        a(f"v_mov_b32 v{TK}, 1")
        a(f"v_mov_b32 v{TK+1}, 0")
        a(f"s_lshl_b32 s6, s{S_CT}, 2")
        a("s_mov_b64 exec, 1")
        a(f"buffer_atomic_add v{TK}, v{TK+1}, s[{SRD_DBG}:{SRD_DBG+3}], s6 offen sc0")
        a("s_mov_b64 exec, -1")
        a.label("L_tk0")
    def h_zero():
        a(f"s_mov_b32 s{STK}, 1")
        a(f"s_cmp_lg_u32 s{S_W}, 0")
        a("s_cbranch_scc1 L_tk1")
        a("s_waitcnt vmcnt(0)")
        a(f"v_readfirstlane_b32 s{STK}, v{TK}")
        a(f"s_cmp_lg_u32 s{STK}, 0")
        a("s_cbranch_scc1 L_tk1")
        for i in range(4): a(f"v_mov_b32 v{TK+2+i}, 0")
        a(f"v_lshlrev_b32 v{TK+1}, 4, v1")
        a(f"s_lshl_b32 s6, s{S_CT}, 12")
        for i in range(4):
            a(f"buffer_store_dwordx4 {vr(TK+2,4)}, v{TK+1}, s[{SRD_X2}:{SRD_X2+3}], s6 offen offset:{i*1024} sc1")
        a(f"s_lshl_b32 s6, s{S_CT}, 8")
        a(f"s_add_u32 s6, s6, {KVZ_OFF}")
        a("s_mov_b64 exec, 0xffff")
        a(f"buffer_store_dwordx4 {vr(TK+2,4)}, v{TK+1}, s[{SRD_X2}:{SRD_X2+3}], s6 offen sc1")
        a("s_mov_b64 exec, -1")
        a.label("L_tk1")
    def h_flag():
        a(f"s_cmp_lg_u32 s{STK}, 0")
        a("s_cbranch_scc1 L_tk2")
        a("s_waitcnt vmcnt(0)")
        a(f"v_mov_b32 v{TK}, 1")
        a(f"v_mov_b32 v{TK+1}, 0")
        a(f"s_lshl_b32 s6, s{S_CT}, 2")
        a("s_mov_b64 exec, 1")
        a(f"buffer_store_dword v{TK}, v{TK+1}, s[{SRD_DBG}:{SRD_DBG+3}], s6 offen offset:64 sc1")
        a("s_mov_b64 exec, -1")
        a.label("L_tk2")
    def after(vm, st):
        if L0: ticket()
        a(f"v_lshlrev_b32 v24, 7, v3")
        a(f"v_lshl_add_u32 v24, v2, 1, v24")
        a(f"s_lshl_b32 s6, s{S_CT}, 10")
        for h in range(2):
            for jj in range(4):
                a(f"buffer_load_ushort v{WP+4*h+jj}, v24, s[{SRD_X1}:{SRD_X1+3}], s6 offen offset:{h*512 + jj*32}")
                vm.issue('cs')
        if not L0:
            a("v_lshlrev_b32 v24, 4, v3")
            a("v_lshlrev_b32 v25, 2, v2")
            a(f"s_lshl_b32 s6, s{S_CT}, 7")
            for nt in range(4):
                a(f"buffer_load_dwordx4 {vr(CSQ+4*nt,4)}, v24, s[{SRD_CS}:{SRD_CS+3}], s6 offen offset:{(nt//2)*2048 + (nt%2)*64}")
                vm.issue('cs')
            a(f"s_add_u32 s6, s6, 4096")
            for h in range(2):
                a(f"buffer_load_dword v{CSQ+16+h}, v25, s[{SRD_CS}:{SRD_CS+3}], s6 offen offset:{h*64}")
                vm.issue('cs')
        for i, s_ in enumerate(st):
            row_voff(a, 20 + i, 128, 32, 2048, with_g=8, st=s_)
            a(f"s_lshl_b32 s6, s{S_CT}, 7")
            a(f"v_add_u32 v{20+i}, s6, v{20+i}")
    NST = 1 if EPI8 else 2
    split(a)
    kwait(a, srds_cp)
    after(vm, (0,) if EPI8 else (0, 1))
    accf = gemm96_compute(a, 'TTTTNN', hooks=({1: h_zero, 3: h_flag} if L0 else {}))
    if EPI8:
        handover_put(a, [56 + 4 * i for i in range(6)] + [88, 92])
        a.label("L_epi")
    stamp(a)
    if L0:
        a("s_barrier")
        a("v_lshlrev_b32 v24, 4, v3")
        a("v_lshlrev_b32 v25, 2, v2")
        a(f"v_add_u32 v24, {CSL}, v24")
        a(f"v_add_u32 v25, {CSL}, v25")
        for pp, base in ((0, CSQ), (1, 212)):
            for nt in range(4):
                a(f"ds_read_b128 {vr(base+4*nt,4)}, v24 offset:{pp*384 + nt*64}")
            for h in range(2):
                a(f"ds_read_b32 v{base+16+h}, v25 offset:{pp*384 + (4+h)*64}")
    MB = (96, 100); RS = (98, 102)
    for st in range(NST):
        ln_finish(a, 80 + 8 * st, 84 + 8 * st, MB[st], RS[st], 24)
    RRS = (104, 112); RRM = (108, 116)
    a("v_lshlrev_b32 v23, 4, v3")
    for r in range(4): a(f"v_add_u32 v{24+r}, {4*r}, v23")
    for st in range(NST):
        for r in range(4):
            a(f"ds_bpermute_b32 v{RRS[st]+r}, v{24+r}, v{RS[st]}")
            a(f"ds_bpermute_b32 v{RRM[st]+r}, v{24+r}, v{MB[st]}")
    for st in range(NST):
        a(f"v_mov_b32 v{RS[st]+1}, v{RS[st]}")
        a(f"v_sub_f32 v{MB[st]}, 0, v{MB[st]}")
        a(f"v_mov_b32 v{MB[st]+1}, v{MB[st]}")
    if L0:
        a("s_waitcnt vmcnt(0)"); vm.q = []
        a(f"v_mov_b32 v{TK+1}, 0")
        a(f"s_cmp_lg_u32 s{S_W}, 0")
        a("s_cbranch_scc1 L_tk3")
        a(f"s_lshl_b32 s6, s{S_CT}, 2")
        a(f"buffer_load_dword v{TK}, v{TK+1}, s[{SRD_DBG}:{SRD_DBG+3}], s6 offen offset:64 sc1")
        a.label("L_tk3")
    else:
        vm.wait('cs')
    for h in range(2):
        for jj in range(2):
            a(f"v_lshl_or_b32 v{28+2*h+jj}, v{WP+4*h+2*jj+1}, 16, v{WP+4*h+2*jj}")
    a("s_waitcnt lgkmcnt(0)")
    if L0:
        for i in range(0, 18, 2): a(f"v_pk_add_f32 {vr(CSQ+i,2)}, {vr(CSQ+i,2)}, {vr(212+i,2)}")
    KV = 120; Z = 136
    T = 212
    L2P = 202
    IDN = 22
    a(f"v_mov_b32 v{L2P}, {lit(LOG2E)}"); a(f"v_mov_b32 v{L2P+1}, {lit(LOG2E)}")
    a("v_mov_b32 v24, 0x3f80"); a("v_mov_b32 v25, 0x3f800000")
    for p in range(2):
        a(f"v_cndmask_b32 v{IDN+p}, 0, v24, s[{64+4*p}:{65+4*p}]")
        a(f"v_cndmask_b32 v26, 0, v25, s[{66+4*p}:{67+4*p}]")
        a(f"v_or_b32 v{IDN+p}, v{IDN+p}, v26")
    def red4(r, A, B, C, D, op, mid):
        r(f"v_permlane16_swap_b32 v{A}, v{B}")
        r(f"v_permlane16_swap_b32 v{C}, v{D}")
        r(f"{op} v{A}, v{A}, v{B}")
        r(f"{op} v{C}, v{C}, v{D}")
        r(f"v_permlane32_swap_b32 v{A}, v{C}")
        r(f"{op} v{A}, v{A}, v{C}")
        r(mid)
        r(f"v_mov_b32 v{C}, v{A}")
        r(f"v_permlane32_swap_b32 v{A}, v{C}")
        r(f"v_mov_b32 v{B}, v{A}")
        r(f"v_mov_b32 v{D}, v{C}")
        r(f"v_permlane16_swap_b32 v{A}, v{B}")
        r(f"v_permlane16_swap_b32 v{C}, v{D}")
    def stream(st, h, Bq):
        r = Rec()
        wph = vr(28 + 2 * h, 2)
        c = accf(st, h); ck = accf(st, 2 + h); cv = accf(st, 4 + h)
        P, PK, ENQ, ENK, VB = Bq + 4, Bq + 8, Bq + 12, Bq + 16, Bq + 20
        A, B, C, D = Bq + 22, Bq + 24, Bq + 26, Bq + 28
        fold4(r, c, CSQ + 4 * h, MB[st], RS[st])
        fold4(r, ck, CSQ + 8 + 4 * h, MB[st], RS[st])
        pack4(r, Bq, c); pack4(r, Bq + 2, ck)
        r(f"v_mfma_f32_16x16x16_bf16 {vr(P,4)}, {wph}, {vr(Bq,2)}, 0")
        r(f"v_mfma_f32_16x16x16_bf16 {vr(PK,4)}, {wph}, {vr(Bq+2,2)}, 0")
        sel = "op_sel_hi:[1,0,1]" if h == 0 else "op_sel:[0,1,0] op_sel_hi:[1,1,1]"
        for p in (0, 2):
            r(f"v_pk_fma_f32 {vr(cv+p,2)}, {vr(RRM[st]+p,2)}, {vr(CSQ+16,2)}, {vr(cv+p,2)} {sel} neg_lo:[1,0,0] neg_hi:[1,0,0]")
        for p in (0, 2):
            r(f"v_pk_mul_f32 {vr(cv+p,2)}, {vr(cv+p,2)}, {vr(RRS[st]+p,2)}")
        pack4(r, VB, cv)
        round4(r, P, Bq); round4(r, PK, Bq + 2)
        for X, mx, mn in ((P, A, B), (PK, C, D)):
            r(f"v_max3_f32 v{mx}, v{X}, v{X+1}, v{X+2}")
            r(f"v_max3_f32 v{mn}, -v{X}, -v{X+1}, -v{X+2}")
            r(f"v_max_f32 v{mx}, v{mx}, v{X+3}")
            r(f"v_max_f32_e64 v{mn}, v{mn}, -v{X+3}")
        red4(r, A, B, C, D, 'v_max_f32', f"v_mul_f32 v{A}, {lit(-LOG2E)}, v{A}")
        for X, EN, mx, mn in ((P, ENQ, A, B), (PK, ENK, C, D)):
            for p in (0, 2):
                r(f"v_pk_fma_f32 {vr(EN+p,2)}, {vr(X+p,2)}, {vr(L2P,2)}, {vr(mn,2)} op_sel_hi:[1,1,0] neg_lo:[0,1,0] neg_hi:[0,1,0]")
            for p in (0, 2):
                r(f"v_pk_fma_f32 {vr(X+p,2)}, {vr(X+p,2)}, {vr(L2P,2)}, {vr(mx,2)} op_sel_hi:[1,1,0]")
        for X in (P, ENQ, PK, ENK):
            for q in range(4): r(f"v_exp_f32 v{X+q}, v{X+q}")
        for X, d in ((P, A), (ENQ, B), (PK, C), (ENK, D)):
            r(f"v_pk_add_f32 {vr(d,2)}, {vr(X,2)}, {vr(X+2,2)}")
        for d in (A, B, C, D):
            r(f"v_add_f32 v{d}, v{d}, v{d+1}")
        red4(r, A, B, C, D, 'v_add_f32', f"v_rcp_f32 v{A}, v{A}")
        for X, d in ((PK, C), (ENK, D), (P, A), (ENQ, B)):
            for p in (0, 2):
                r(f"v_pk_mul_f32 {vr(X+p,2)}, {vr(X+p,2)}, {vr(d,2)} op_sel_hi:[1,0]")
        pack4(r, PK, PK); pack4(r, ENK, ENK)
        r(f"v_mfma_f32_16x16x16_bf16 {vr(Bq,4)}, {vr(PK,2)}, {vr(IDN,2)}, 0")
        r(f"v_mfma_f32_16x16x16_bf16 {vr(Bq+24,4)}, {vr(ENK,2)}, {vr(IDN,2)}, 0")
        pack4(r, P, P); pack4(r, ENQ, ENQ)
        r(f"buffer_store_dwordx2 {vr(P,2)}, v{20+st}, s[{SRD_O}:{SRD_O+3}], 0 offen offset:{h*64}")
        r(f"buffer_store_dwordx2 {vr(ENQ,2)}, v{20+st}, s[{SRD_O}:{SRD_O+3}], 0 offen offset:{h*64+32}")
        pack4(r, Bq, Bq); pack4(r, Bq + 24, Bq + 24)
        for sg, ph in ((0, Bq), (1, Bq + 24)):
            kv = KV + (h * 2 + sg) * 4; z = Z + (h * 2 + sg) * 4
            r(f"v_mfma_f32_16x16x16_bf16 {vr(kv,4)}, {vr(VB,2)}, {vr(ph,2)}, {'0' if st == 0 else vr(kv,4)}")
            r(f"v_mfma_f32_16x16x16_bf16 {vr(z,4)}, v[8:9], {vr(ph,2)}, {'0' if st == 0 else vr(z,4)}")
        return r
    stamp(a)
    for st in range(NST):
        interleave(a, [stream(st, 0, 212), stream(st, 1, 152)])
    RED = 3 * SLOT96; REDZ = RED + 32768
    a(f"s_lshl_b32 s6, s101, 12")
    a(f"v_lshlrev_b32 v4, 4, v1")
    a(f"v_add_u32 v4, s6, v4")
    a(f"s_lshl_b32 s6, s101, 10")
    a(f"v_lshlrev_b32 v5, 2, v1")
    a(f"v_add_u32 v5, s6, v5")
    a(f"v_add_u32 v4, {RED}, v4")
    a(f"v_add_u32 v5, {REDZ}, v5")
    for i in range(4):
        a(f"ds_write_b128 v4, {vr(KV+4*i,4)} offset:{i*1024}")
        a(f"ds_write_b32 v5, v{Z+4*i} offset:{i*256}")
    if L0:
        a(f"s_cmp_lg_u32 s{S_W}, 0")
        a("s_cbranch_scc1 L_tk5")
        a("s_waitcnt vmcnt(8)")
        a(f"s_mov_b32 s7, 0x400000")
        a.label("L_tk4")
        a(f"v_readfirstlane_b32 s6, v{TK}")
        a("s_cmp_lg_u32 s6, 0")
        a("s_cbranch_scc1 L_tk5")
        a("s_sub_u32 s7, s7, 1")
        a("s_cmp_eq_u32 s7, 0")
        a("s_cbranch_scc1 L_tk5")
        a("s_sleep 8")
        a(f"s_lshl_b32 s6, s{S_CT}, 2")
        a(f"buffer_load_dword v{TK}, v{TK+1}, s[{SRD_DBG}:{SRD_DBG+3}], s6 offen offset:64 sc1")
        a("s_waitcnt vmcnt(0)")
        a("s_branch L_tk4")
        a.label("L_tk5")
    a("s_waitcnt lgkmcnt(0)")
    barrier(a)
    a("s_cmp_ge_u32 s101, 4")
    a("s_cbranch_scc1 L_end")
    a(f"v_lshlrev_b32 v4, 4, v0")
    a(f"v_add_u32 v4, {RED}, v4")
    NW = 8 if EPI8 else 4
    for w in range(NW):
        a(f"ds_read_b128 {vr(T+4*w,4)}, v4 offset:{w*4096}")
    a(f"v_lshrrev_b32 v5, 4, v0")
    a(f"v_lshlrev_b32 v5, 8, v5")
    a(f"v_lshl_add_u32 v5, v2, 2, v5")
    a(f"v_add_u32 v5, {REDZ}, v5")
    for w in range(NW):
        a(f"ds_read_b32 v{T+32+w}, v5 offset:{w*1024}")
    a(f"s_lshr_b32 s6, s{S_W}, 1")
    a(f"s_lshl_b32 s7, s{S_CT}, 1")
    a(f"s_add_u32 s6, s6, s7")
    a(f"s_lshl_b32 s6, s6, 11")
    a(f"s_and_b32 s7, s{S_W}, 1")
    a(f"s_lshl_b32 s7, s7, 6")
    a(f"s_add_u32 s6, s6, s7")
    a(f"v_lshlrev_b32 v6, 9, v3")
    a(f"v_lshl_add_u32 v6, v2, 2, v6")
    a(f"s_lshl_b32 s7, s{S_CT}, 8")
    a(f"s_add_u32 s7, s7, {KVZ_OFF}")
    a(f"v_lshlrev_b32 v7, 2, v0")
    a("s_waitcnt lgkmcnt(0)")
    for d in ((16, 8, 4) if EPI8 else (8, 4)):
        for w in range(0, d, 4):
            for p in (0, 2):
                a(f"v_pk_add_f32 {vr(T+w+p,2)}, {vr(T+w+p,2)}, {vr(T+w+d+p,2)}")
    for d in ((4, 2, 1) if EPI8 else (2, 1)):
        for w in range(d):
            a(f"v_add_f32 v{T+32+w}, v{T+32+w}, v{T+32+w+d}")
    for r in range(4):
        a(f"buffer_atomic_add_f32 v{T+r}, v6, s[{SRD_X2}:{SRD_X2+3}], s6 offen offset:{r*128}")
    a(f"s_cmp_lg_u32 s{S_W}, 0")
    a("s_cbranch_scc1 L_fin")
    a(f"buffer_atomic_add_f32 v{T+32}, v7, s[{SRD_X2}:{SRD_X2+3}], s7 offen")
    loader_begin(a)
    PEND.append(srds_ld)
    def hook(vml):
        setup_consts(a)
        after(vml, (1,))
    if L0:
        def pre():
            for i in range(4): a(f"v_mov_b32 v{8+i}, 0x3f803f80")
            tr_addrs64s(a, 160, 24, 4096)
            a(f"s_cmp_lt_u32 s{S_W}, 2")
            a("s_cbranch_scc1 L_lo3")
            for i in range(3): a(f"v_mov_b32 v{160+i}, v{163+i}")
            a.label("L_lo3")
            a(f"s_and_b32 s6, s{S_W}, 1")
            a("s_lshl_b32 s6, s6, 11")
            for i in range(3): a(f"v_add_u32 v{160+i}, s6, v{160+i}")
            pre.BB = Banked(a, 160, 3, [164, 168])
        def per(c):
            slot = (c % 5) * SLOT96
            for i in range(3):
                for hh in range(2):
                    r, o = pre.BB.get(slot + 16384 + hh * 256)
                    a(f"ds_read_b64_tr_b16 {vr(112 + i*4 + hh*2, 2)}, v{r+i} offset:{o}")
            for i in range(3):
                a(f"s_waitcnt lgkmcnt({4-2*i})")
                cc = vr(128 + 4*i, 4)
                a(f"v_mfma_f32_16x16x32_bf16 {cc}, {vr(112+4*i,4)}, v[8:11], {'0' if c == 0 else cc}")
        gemm96_loader(a, 1024, 3072, (12, 8, 9), None, per, pre)
        a(f"s_and_b32 s6, s{S_W}, 1")
        a("s_mul_i32 s6, s6, 384")
        a(f"s_lshr_b32 s7, s{S_W}, 1")
        a("s_mul_i32 s7, s7, 192")
        a("s_add_u32 s6, s6, s7")
        a(f"s_add_u32 s6, s6, {CSL}")
        a("v_lshlrev_b32 v24, 4, v3")
        a("v_add_u32 v24, s6, v24")
        a("s_mov_b32 exec_lo, 0x00010001")
        a("s_mov_b32 exec_hi, 0x00010001")
        for i in range(3):
            a(f"ds_write_b128 v24, {vr(128+4*i,4)} offset:{i*64}")
        a("s_mov_b64 exec, -1")
        a("s_waitcnt lgkmcnt(0)")
        a("s_barrier")
        k1_l0_jobs(a)
    else:
        gemm96_loader(a, 1024, 64, (12, 8, 9), None)
        loader_end(a)

import os
_V = os.environ.get('K2V', '0')
K2_KV = {c: (c + 2,) for c in range(6)}
K2_CH = {c: (c + 2,) for c in range(6)}
if _V == '1':
    K2_CH = {0: (2, 3), 1: (4,), 2: (5,), 3: (6,), 4: (7,)}
if _V == '2':
    K2_CH = {0: (2, 3), 1: (4,), 2: (5,), 3: (6,), 4: (7,)}
    K2_KV = {0: (2, 3), 1: (4,), 2: (5,), 3: (6,), 4: (7,)}
if _V == '3':
    K2_CH = {0: (2,), 1: (3, 4), 2: (5,), 3: (6,), 4: (7,)}
def k2_attn_wo(a):
    prologue8(a, 256); decode_wg(a, 4)
    def srds():
        a(f"s_mul_i32 s6, s{S_LAYER}, {KV_STRIDE}")
        a(f"s_add_u32 s6, s6, {WS_KV}")
        a(f"s_add_u32 s{SRD_X2}, s{P_WS}, s6")
        a(f"s_addc_u32 s{SRD_X2+1}, s{P_WS+1}, 0")
        a(f"s_mov_b32 s{SRD_X2+2}, {KV_STRIDE}")
        a(f"s_mov_b32 s{SRD_X2+3}, 0x00020000")
        srd(a, SRD_A, P_WS, WS_PHIQ, 0x400000)
        srd(a, SRD_B, P_WO, 0, 512 * 1024)
        srd(a, SRD_O, P_WS, WS_XA, 0x200000)
        srd_sel(a, SRD_X1, P_X, 0, P_WS, WS_XN, 0x200000)
    NS, NCH, SL = 5, 8, 24576
    KVL = NS * SL; ZL = KVL + 32768
    a(f"s_lshl_b32 s12, s{S_CT}, 7")
    a("v_lshlrev_b32 v8, 4, v0")
    a("v_lshlrev_b32 v9, 3, v0")
    split(a)
    PHB = 80
    KVB = 96
    NUB = 128
    OBS = (64, 68)
    BFS = (160, 176)
    KR = [192 + 4 * i for i in range(8)]; ZR = 224
    RX = 240
    def body(hf):
        vm = VM(a)
        tm = gen.TIMING
        if hf: gen.TIMING = False
        AV, BV = 16, 20
        def ldkv(c):
            a(f"s_mov_b32 s6, {c*8192}")
            a(f"buffer_load_dwordx4 {vr(KR[c],4)}, v8, s[{SRD_X2}:{SRD_X2+3}], s6 offen")
            vm.issue(('kv', c))
        def issue(c):
            slot = (c % NS) * SL
            for t4 in range(4):
                dma(a, vm, ('ch', c), AV + t4, SRD_A, 0, c * 256, (13, slot + t4 * 1024))
            for i in range(2):
                dma(a, vm, ('ch', c), BV, SRD_B, 's10', 0, (14, slot + 16384 + i * 4096))
                a(f"s_add_u32 s10, s10, {32*1024}")
        if hf:
            a_voff256(a, AV, 2048, 64, 16, 24)
            b_voff128(a, BV, 24, 1024, 'k2')
            a(f"s_lshl_b32 s13, s{S_W}, 12")
            a(f"s_lshl_b32 s14, s{S_W}, 10")
            a(f"s_mul_i32 s10, s{S_W}, {8*1024}")
            a(f"s_add_u32 s10, s10, s12")
        row_voff(a, 21, 64, 16, 1024, with_g=8)
        a(f"v_add_u32 v21, s12, v21")
        kwait(a, srds)
        ldkv(0)
        a(f"s_mov_b32 s6, {KVZ_OFF}")
        a(f"buffer_load_dwordx2 {vr(ZR,2)}, v9, s[{SRD_X2}:{SRD_X2+3}], s6 offen")
        vm.issue('z')
        if hf: issue(0)
        ldkv(1)
        if hf: issue(1)
        for q in range(2):
            a(f"buffer_load_dwordx2 {vr(RX+2*q,2)}, v21, s[{SRD_X1}:{SRD_X1+3}], 0 offen offset:{(2*hf+q)*32}")
            vm.issue('rx')
        a_rd256(a, 4, 24, 4096)
        tr_addrs128(a, 12, 24, 'k2')
        AB = Banked(a, 4, 4, [232])
        BB = Banked(a, 12, 4, [236])
        a(f"v_add_u32 v9, {KVL}, v9")
        a("v_lshlrev_b32 v10, 2, v0")
        a(f"v_add_u32 v10, {ZL}, v10")
        a("v_lshlrev_b32 v22, 6, v2")
        a("v_lshl_add_u32 v22, v3, 4, v22")
        a(f"v_add_u32 v22, {KVL}, v22")
        a("v_lshlrev_b32 v23, 4, v3")
        a(f"v_add_u32 v23, {ZL}, v23")
        def stage(c):
            vm.wait(('kv', c))
            q = KR[c]
            pack4(a, q, q)
            a(f"ds_write_b64 v9, {vr(q,2)} offset:{c*4096}")
        vm.wait('z')
        a(f"v_cvt_pk_bf16_f32 v{ZR}, v{ZR}, v{ZR+1}")
        a(f"ds_write_b32 v10, v{ZR}")
        stage(0)
        def wo_mfma(c):
            OB = OBS[c % 2]; BF = BFS[c % 2]
            for nt in range(4):
                cc = vr(32 + 4 * nt, 4)
                a(f"v_mfma_f32_16x16x32_bf16 {cc}, {vr(BF + nt*4, 4)}, {vr(OB,4)}, {'0' if c == 0 else cc}")
        for c in range(NCH):
            slot = (c % NS) * SL
            OB = OBS[c % 2]; BF = BFS[c % 2]
            if hf: vm.wait(('ch', c))
            a("s_waitcnt lgkmcnt(0)")
            barrier(a, c in (0, 3, 4))
            ar, ao = AB.get(slot)
            br, bo = BB.get(slot + 16384)
            for q in range(2):
                hh = 2 * hf + q; h = 4 * c + hh
                a(f"ds_read_b128 {vr(PHB+4*q,4)}, v{ar+hh} offset:{ao}")
                a(f"ds_read_b128 {vr(KVB+8*q,4)}, v22 offset:{h*1024}")
                a(f"ds_read_b128 {vr(KVB+8*q+4,4)}, v23 offset:{h*64}")
            for n_ in K2_KV.get(c, ()): ldkv(n_)
            if hf:
                for n_ in K2_CH.get(c, ()): issue(n_)
            if c: wo_mfma(c - 1)
            for q in range(2):
                a(f"s_waitcnt lgkmcnt({3-3*q})")
                n = NUB + 8 * q
                a(f"v_mfma_f32_16x16x32_bf16 {vr(n,4)}, {vr(KVB+8*q,4)}, {vr(PHB+4*q,4)}, 0")
                a(f"v_mfma_f32_16x16x32_bf16 {vr(n+4,4)}, {vr(KVB+8*q+4,4)}, {vr(PHB+4*q,4)}, 0")
            for nt in range(4):
                for hh in range(2):
                    a(f"ds_read_b64_tr_b16 {vr(BF + nt*4 + hh*2, 2)}, v{br+nt} offset:{bo + hf*4096 + hh*2048}")
            recs = []
            for q in range(2):
                r = Rec()
                n = NUB + 8 * q; t = 24 + 2 * q
                bf16r(r, n + 4, n + 4, t)
                r(f"v_add_f32 v{n+4}, {lit(1e-6)}, v{n+4}")
                bf16r(r, n + 4, n + 4, t)
                r(f"v_rcp_f32 v{n+4}, v{n+4}")
                round4(r, n, t)
                for p in (0, 2): r(f"v_pk_mul_f32 {vr(n+p,2)}, {vr(n+p,2)}, {vr(n+4,2)} op_sel_hi:[1,0]")
                pack4(r, OB + 2 * q, n)
                recs.append(r)
            interleave(a, recs)
            if c + 1 < NCH: stage(c + 1)
        a("s_waitcnt lgkmcnt(0)")
        wo_mfma(NCH - 1)
        stamp(a)
        keep = [32 + 4 * (2 * hf + q) for q in range(2)]
        send = [32 + 4 * (2 * (1 - hf) + q) for q in range(2)]
        pair_exchange(a, hf, send, [48, 52], 3 * SL, 24)
        a("s_waitcnt vmcnt(0) lgkmcnt(0)")
        recs = []
        for q in range(2):
            r = Rec()
            c = keep[q]; t = 112 + 8 * q
            for p in (0, 2): r(f"v_pk_add_f32 {vr(c+p,2)}, {vr(c+p,2)}, {vr(48+4*q+p,2)}")
            round4(r, c, t)
            unpack2(r, t + 2, t + 3, RX + 2 * q); unpack2(r, t + 4, t + 5, RX + 2 * q + 1)
            for p in (0, 2): r(f"v_pk_add_f32 {vr(c+p,2)}, {vr(c+p,2)}, {vr(t+2+p,2)}")
            pack4(r, c, c)
            r(f"buffer_store_dwordx2 {vr(c,2)}, v21, s[{SRD_O}:{SRD_O+3}], 0 offen offset:{(2*hf+q)*32}")
            recs.append(r)
        interleave(a, recs)
        gen.TIMING = tm
    body(0)
    loader_begin(a)
    body(1)
    loader_end(a)

KERNELS = [
    ('k1a', lambda a: k1_qkv(a, True), 256, K1A_LDS, False),
    ('k1b', lambda a: k1_qkv(a, False), 256, 5 * SLOT96, False),
    ('k2', k2_attn_wo, 256, 5 * 24576 + 32768 + 2048, True),
    ('k3', k3_ln_w1, 256, 131072, False),
    ('k4', k4_shift_w2, 256, 131072, False),
    ('k5', k5_ln_w3, 240, 5 * SLOT96, False),
    ('k6', k6_w4, 256, 163840, True),
]

def build():
    header = open('cdna_kernels/' + NAME + '.s.ref').read().split('; Override launch')[0]
    launches = []
    for L in range(2):
        for k in [KERNELS[L]] + KERNELS[2:]:
            launches.append((k[0], L if k[4] else None))
    info = {k[0]: k for k in KERNELS}
    out = [header.rstrip('\n')]
    def lab(n, L): return f"hh_{n}{'' if L is None else '_l%d' % L}_kernel"
    for n, L in launches:
        k = info[n]
        out.append(f"; @launch kernel={lab(n, L)} grid=({k[2]},1,1) block=({256 if n == 'k0' else 512},1,1) lds={k[3]}")
    out.append('.amdgcn_target "amdgcn-amd-amdhsa--gfx950"')
    out.append('.text')
    descs = []
    for n, fn, nwg, lds, layered in KERNELS:
        a = Asm(); St.n = 0
        fn(a)
        a.label("L_fin")
        if gen.TIMING and n != 'k0':
            a("s_cmp_ge_u32 s101, 4")
            a("s_cbranch_scc1 L_end")
        dump_stamps(a, [k[0] for k in KERNELS].index(n))
        body = a.text().replace('L_', f'L{n}_')
        entries = [(lab(n, 0), 0), (lab(n, 1), 1)] if layered else [(lab(n, None), None)]
        if layered:
            for nm, L in entries:
                out.append(f".globl {nm}\n.p2align 8\n.type {nm},@function\n{nm}:")
                out.append(f"  s_mov_b32 s{S_LAYER}, {L}\n  s_branch L{n}_body")
            out.append(f".p2align 8\nL{n}_body:")
        else:
            nm = entries[0][0]
            out.append(f".globl {nm}\n.p2align 8\n.type {nm},@function\n{nm}:")
        out.append(body.rstrip('\n'))
        out.append(f"L{n}_end:\n  s_endpgm")
        for nm, L in entries: descs.append(nm)
    out.append('.section .rodata,"a"')
    for nm in descs:
        out.append(f""".p2align 6
.amdhsa_kernel {nm}
  .amdhsa_next_free_vgpr 256
  .amdhsa_next_free_sgpr 102
  .amdhsa_accum_offset 256
  .amdhsa_group_segment_fixed_size 0
  .amdhsa_kernarg_size 96
  .amdhsa_user_sgpr_count 2
  .amdhsa_user_sgpr_kernarg_segment_ptr 1
  .amdhsa_system_sgpr_workgroup_id_x 1
.end_amdhsa_kernel""")
    return '\n'.join(out) + '\n'

if __name__ == '__main__':
    if len(sys.argv) > 2 and sys.argv[2] == 'timing': gen.TIMING = True
    txt = build()
    dst = sys.argv[1] if len(sys.argv) > 1 else 'cdna_kernels/' + NAME + '.s'
    open(dst, 'w').write(txt)
    print('wrote', dst, len(txt), 'bytes')
```

```python
import sys
import gen
from gen import (Asm, vr, sr, NAME, S, D, F, H, WS_XA, WS_XB, WS_H, WS_X1, WS_XN, WS_H3, WS_PHIQ, WS_KV,
                 KV_STRIDE, KVZ_OFF, P_X, P_WQKV, P_WPHI, P_WO, P_BX, P_W1, P_W2, P_W3, P_W4, P_OUT, P_DBG, P_WS,
                 SRD_A, SRD_B, SRD_O, SRD_X1, SRD_X2, SRD_X3, S_RT, S_CT, S_W, S_LAYER, LOG2E, lit, prologue, srd,
                 srd_sel, decode_wg, tr_addrs128, tr_addrs64, setup_consts, xlane_sum, bf16r, GELU_C0, GELU_C1,
                 unpack2, row_voff, dpp_allreduce, stamp, dump_stamps, St)

WS_CS = 0x1480000
CS_QKV, CS_W1, CS_W3 = 0x0, 0x2000, 0x3000
CS_P1 = 0x8000
CS_SIZE = 0x10000
SRD_CS = 96

class VM:
    def __init__(self, a): self.a = a; self.q = []
    def issue(self, tag): self.q.append(tag)
    def wait(self, tag):
        idx = [i for i, t in enumerate(self.q) if t == tag]
        if not idx: return
        idx = idx[-1]
        n = len(self.q) - 1 - idx
        self.a(f"s_waitcnt vmcnt({min(n, 63)})")
        self.q = self.q[idx + 1:]
    def wait_all(self):
        self.a("s_waitcnt vmcnt(0)"); self.q = []

PEND = []
import os
def FL(n, d): return int(os.environ.get(n, str(d)))
H3S = FL('H3S', 2816)
def srd_sel(a, dst, base0, off0, base1, off1, size):
    a(f"s_add_u32 s{dst}, s{base0}, {off0}")
    a(f"s_addc_u32 s{dst+1}, s{base0+1}, 0")
    a(f"s_add_u32 s{dst+2}, s{base1}, {off1}")
    a(f"s_addc_u32 s{dst+3}, s{base1+1}, 0")
    a(f"s_cmp_eq_u32 s{S_LAYER}, 0")
    a(f"s_cselect_b32 s{dst}, s{dst}, s{dst+2}")
    a(f"s_cselect_b32 s{dst+1}, s{dst+1}, s{dst+3}")
    a(f"s_mov_b32 s{dst+2}, {size}")
    a(f"s_mov_b32 s{dst+3}, 0x00020000")
def kwait(a, code=None, st=True):
    a("s_waitcnt lgkmcnt(0)")
    if st: stamp(a)
    if code: code()
def prologue8(a, nwg):
    a(f"""
    s_cmp_ge_u32 s2, {nwg}
    s_cbranch_scc1 L_end
    """)
    stamp(a)
    a(f"""
    s_load_dwordx16 s[16:31], s[0:1], 0
    s_load_dwordx8 s[32:39], s[0:1], 64
    v_and_b32 v1, 63, v0
    v_lshrrev_b32 v4, 6, v0
    v_and_b32 v2, 15, v0
    v_readfirstlane_b32 s{S_W}, v4
    v_lshrrev_b32 v3, 4, v1
    """)
    a(f"s_mov_b32 s101, s{S_W}")
    a(f"s_and_b32 s{S_W}, s{S_W}, 3")
LDT = FL('LDT', 0)
def split(a):
    a("s_cmp_ge_u32 s101, 4")
    a("s_cbranch_scc1 L_loader")
    if LDT: gen.TIMING = False
def loader_begin(a):
    a("s_branch L_fin")
    a.label("L_loader")
    if LDT:
        gen.TIMING = True
        stamp(a)
def lstamp(a):
    if LDT: stamp(a)
PREFETCH = False
EPI8 = False
def loader_end(a, pf=None):
    if pf and PREFETCH:
        ptr, nbytes, n = pf
        srd(a, SRD_X3, ptr, 0, nbytes)
        a("s_lshr_b32 s6, s2, 3")
        a(f"s_lshl_b32 s6, s6, 2")
        a(f"s_add_u32 s6, s6, s{S_W}")
        a(f"s_mul_i32 s6, s6, {n*1024}")
        a("v_lshlrev_b32 v4, 4, v1")
        for i in range(n):
            if i and i % 4 == 0: a("s_add_u32 s6, s6, 4096")
            a(f"buffer_load_dwordx4 {vr(32+4*i,4)}, v4, s[{SRD_X3}:{SRD_X3+3}], s6 offen offset:{(i%4)*1024}")
        a("s_waitcnt vmcnt(0)")
    a("s_branch L_dump" if LDT else "s_branch L_end")

def pf(a, vm, sd, ptr, off, size, n0, n1, nw=128, mode=None, u0=0, va=250, vd=251):
    assert u0 == 0 or n0 == 0
    srd(a, sd, ptr, off, size)
    a(f"v_lshlrev_b32 v{va}, 7, v1")
    a("s_lshr_b32 s6, s2, 3")
    a(f"s_lshl_b32 s6, s6, 2")
    a(f"s_add_u32 s6, s6, s{S_W}")
    if n0 - u0: a(f"s_add_u32 s6, s6, {(n0 - u0) & 0xffffffff}")
    nj = -(-(n1 - n0 + u0) // nw)
    for j in range(nj):
        if j: a(f"s_add_u32 s6, s6, {nw}")
        if mode is None:
            a("s_lshl_b32 s7, s6, 13")
        elif mode[0] == 'pp':
            a(f"s_lshr_b32 s7, s6, {mode[1]}")
            a(f"s_mul_i32 s7, s7, {mode[2]}")
            a(f"s_and_b32 vcc_lo, s6, {(1 << mode[1]) - 1}")
            a("s_lshl_b32 vcc_lo, vcc_lo, 13")
            a("s_add_u32 s7, s7, vcc_lo")
        else:
            a(f"s_and_b32 s7, s6, {(1 << mode[1]) - 1}")
            a(f"s_mul_i32 s7, s7, {mode[2]}")
            a(f"s_lshr_b32 vcc_lo, s6, {mode[1]}")
            a("s_lshl_b32 vcc_lo, vcc_lo, 13")
            a("s_add_u32 s7, s7, vcc_lo")
        a(f"s_cmp_lt_u32 s6, {n1}")
        a(f"s_cselect_b32 s7, s7, {size}")
        a(f"buffer_load_dword v{vd}, v{va}, s[{sd}:{sd+3}], s7 offen")
        if vm is not None: vm.issue('pf')
def pf_wo(a, vm, sd, **k): pf(a, vm, sd, P_WO, 0, 512 * 1024, 0, 64, **k)
def pf_w1(a, vm, sd, **k): pf(a, vm, sd, P_W1, 0, 512 * 1024, 0, 64, **k)
def pf_w2(a, vm, sd, **k): pf(a, vm, sd, P_WS, WS_W2C, 8 * W2S, 0, 64, mode=('pp', 3, W2S), **k)
def pf_w3(a, vm, sd, n0=0, n1=172, **k): pf(a, vm, sd, P_W3, 0, 512 * F * 2, n0, n1, **k)
def pf_w4(a, vm, sd, n0=0, n1=176, **k): pf(a, vm, sd, P_WS, WS_W4C, 8 * W4C_STRIDE, n0, n1, mode=('ns', 3, W4C_STRIDE), **k)
def pf_wq(a, vm, sd, n0=0, n1=192, **k): pf(a, vm, sd, P_WS, WS_WQC, 48 * QS, n0, n1, mode=('pp', 2, QS), **k)
PF = FL('PF', 63)

class Rec:
    def __init__(self): self.l = []
    def __call__(self, text):
        for line in text.strip('\n').split('\n'):
            line = line.strip()
            if line: self.l.append(line)
def interleave(a, recs):
    n = max(len(r.l) for r in recs)
    for i in range(n):
        for r in recs:
            if i < len(r.l): a(r.l[i])

def handover_put(a, regs):
    a(f"s_lshl_b32 s6, s{S_W}, 13")
    a("v_lshlrev_b32 v24, 4, v1")
    a("v_add_u32 v24, s6, v24")
    for i, r in enumerate(regs):
        a(f"ds_write_b128 v24, {vr(r,4)} offset:{i*1024}")
    a("s_waitcnt lgkmcnt(0)")
    a("s_barrier")
def handover_get(a, regs):
    a(f"s_lshl_b32 s6, s{S_W}, 13")
    a("v_lshlrev_b32 v24, 4, v1")
    a("v_add_u32 v24, s6, v24")
    a("s_barrier")
    for i, r in enumerate(regs):
        a(f"ds_read_b128 {vr(r,4)}, v24 offset:{i*1024}")
    a("s_waitcnt vmcnt(0) lgkmcnt(0)")
    a("s_nop 7")

def barrier(a, st=True):
    if st: stamp(a)
    a("s_barrier")
    if st: stamp(a)

def a_voff256(a, dst, rs, rows_per_wg, rows_per_wave, t):
    a(f"s_mul_i32 s6, s{S_RT}, {rows_per_wg}")
    a(f"s_mul_i32 s7, s{S_W}, {rows_per_wave}")
    a(f"s_add_u32 s6, s6, s7")
    a(f"s_mov_b32 s7, {rs}")
    for t4 in range(4):
        a(f"v_add_u32 v{t}, {4*t4}, v3")
        a(f"v_xor_b32 v{t+1}, v{t}, v2")
        a(f"v_add_u32 v{t}, s6, v{t}")
        a(f"v_mul_lo_u32 v{t}, v{t}, s7")
        a(f"v_lshl_add_u32 v{dst+t4}, v{t+1}, 4, v{t}")

def a_voff128(a, dst, rs, rows_per_wg, rows_per_wave, t):
    a(f"s_mul_i32 s6, s{S_RT}, {rows_per_wg}")
    a(f"s_mul_i32 s7, s{S_W}, {rows_per_wave}")
    a(f"s_add_u32 s6, s6, s7")
    a(f"s_mov_b32 s7, {rs}")
    a(f"v_lshrrev_b32 v{t+2}, 3, v1")
    a(f"v_and_b32 v{t+3}, 7, v1")
    for t2 in range(2):
        a(f"v_add_u32 v{t}, {4*t2}, v3")
        a(f"v_xor_b32 v{t+1}, v{t}, v{t+3}")
        a(f"v_add_u32 v{t}, {8*t2}, v{t+2}")
        a(f"v_add_u32 v{t}, s6, v{t}")
        a(f"v_mul_lo_u32 v{t}, v{t}, s7")
        a(f"v_lshl_add_u32 v{dst+t2}, v{t+1}, 4, v{t}")

def a_rd256(a, dst, t, wave_bytes):
    a(f"v_xor_b32 v{t}, v3, v2")
    a(f"v_lshlrev_b32 v{t}, 4, v{t}")
    a(f"v_lshl_add_u32 v{t}, v2, 8, v{t}")
    a(f"s_mul_i32 s6, s{S_W}, {wave_bytes}")
    for j in range(4):
        a(f"v_xor_b32 v{dst+j}, {j << 6}, v{t}")
        a(f"v_add_u32 v{dst+j}, s6, v{dst+j}")

def a_rd128(a, dst, t, wave_bytes):
    a(f"v_lshrrev_b32 v{t}, 1, v2")
    a(f"v_xor_b32 v{t}, v3, v{t}")
    a(f"v_lshlrev_b32 v{t}, 4, v{t}")
    a(f"v_lshl_add_u32 v{t}, v2, 7, v{t}")
    a(f"s_mul_i32 s6, s{S_W}, {wave_bytes}")
    for j in range(2):
        a(f"v_xor_b32 v{dst+j}, {j << 6}, v{t}")
        a(f"v_add_u32 v{dst+j}, s6, v{dst+j}")

def dma(a, vm, tag, voff, srdx, soff, imm, m0_sgpr_expr):
    sg, c = m0_sgpr_expr
    if PEND:
        lstamp(a); f = PEND.pop(); kwait(a, f, bool(LDT))
    a(f"s_add_u32 m0, s{sg}, {c}")
    if imm:
        if soff == 0: a(f"s_mov_b32 s7, {imm}")
        else: a(f"s_add_u32 s7, {soff}, {imm}")
        soff = 's7'
    else:
        a("s_nop 0")
    a(f"buffer_load_dwordx4 v{voff}, s[{srdx}:{srdx+3}], {soff} offen lds")
    vm.issue(tag)

def res_rd(a, dst, t, base):
    a(f"v_lshrrev_b32 v{t}, 1, v2")
    a(f"v_lshrrev_b32 v{t+1}, 1, v3")
    a(f"v_xor_b32 v{t}, v{t}, v{t+1}")
    a(f"v_lshlrev_b32 v{t}, 4, v{t}")
    a(f"v_lshl_add_u32 v{t}, v2, 7, v{t}")
    a(f"v_and_b32 v{t+1}, 1, v3")
    a(f"v_lshl_add_u32 v{t}, v{t+1}, 3, v{t}")
    a(f"s_lshl_b32 s6, s{S_W}, 11")
    a(f"s_add_u32 s6, s6, {base}")
    for nt in range(4):
        a(f"v_xor_b32 v{dst+nt}, {nt << 5}, v{t}")
        a(f"v_add_u32 v{dst+nt}, s6, v{dst+nt}")
def res_dma(a, vm, tag, rv, srdx, soff, base):
    for t2 in range(2):
        dma(a, vm, tag, rv + t2, srdx, soff, 0, (11, base + t2 * 1024))

def b_voff128(a, voff, t, rs, swz):
    a(f"v_lshrrev_b32 v{t}, 3, v1")
    a(f"v_and_b32 v{voff}, 7, v1")
    if swz == 'std':
        a(f"v_and_b32 v{t+1}, 2, v{t}")
        a(f"s_and_b32 s6, s{S_W}, 1")
        a(f"s_lshl_b32 s6, s6, 2")
        a(f"v_or_b32 v{t+1}, s6, v{t+1}")
    else:
        a(f"v_and_b32 v{t+1}, 6, v{t}")
    a(f"v_xor_b32 v{voff}, v{voff}, v{t+1}")
    a(f"v_lshlrev_b32 v{voff}, 4, v{voff}")
    a(f"s_mov_b32 s6, {rs}")
    a(f"v_mul_lo_u32 v{t}, v{t}, s6")
    a(f"v_add_u32 v{voff}, v{voff}, v{t}")

def b_voff64(a, voff, t, rs):
    a(f"v_lshrrev_b32 v{t}, 2, v1")
    a(f"v_and_b32 v{voff}, 3, v1")
    a(f"v_lshrrev_b32 v{t+1}, 5, v1")
    a(f"v_lshlrev_b32 v{t+1}, 1, v{t+1}")
    a(f"v_xor_b32 v{voff}, v{voff}, v{t+1}")
    a(f"v_lshlrev_b32 v{voff}, 4, v{voff}")
    a(f"s_mov_b32 s6, {rs}")
    a(f"v_mul_lo_u32 v{t}, v{t}, s6")
    a(f"v_add_u32 v{voff}, v{voff}, v{t}")

def tr_addrs64s(a, dst, vt, sub_bytes):
    a(f"v_lshrrev_b32 v{vt}, 2, v2")
    a(f"v_and_b32 v{vt+1}, 3, v2")
    a(f"v_lshl_add_u32 v{vt+2}, v3, 3, v{vt}")
    a(f"v_and_b32 v{vt+3}, 1, v3")
    a(f"v_lshlrev_b32 v{vt+3}, 1, v{vt+3}")
    a(f"v_lshlrev_b32 v{vt+2}, 6, v{vt+2}")
    a(f"v_and_b32 v{vt+4}, 1, v{vt+1}")
    a(f"v_lshl_add_u32 v{vt+2}, v{vt+4}, 3, v{vt+2}")
    a(f"v_lshrrev_b32 v{vt+1}, 1, v{vt+1}")
    for n2 in range(2):
        a(f"v_or_b32 v{vt+4}, {2*n2}, v{vt+1}")
        a(f"v_xor_b32 v{vt+4}, v{vt+4}, v{vt+3}")
        a(f"v_lshl_add_u32 v{dst+n2}, v{vt+4}, 4, v{vt+2}")
    for j in (1, 2):
        for n2 in range(2):
            a(f"v_add_u32 v{dst+2*j+n2}, {j*sub_bytes}, v{dst+n2}")

def ln_finish(a, SUM, G, mb, rs, t):
    g = t; t0 = t + 1; mean = t + 3
    a(f"v_cndmask_b32 v{g}, 0, v{G}, s[64:65]")
    for r in range(1, 4):
        a(f"v_cndmask_b32 v{g}, v{g}, v{G+r}, s[{64+2*r}:{65+2*r}]")
    a(f"v_mul_f32 v{mean}, {lit(1.0/512)}, v{SUM}")
    xlane_sum(a, g, t0)
    bf16r(a, mb, mean, t0)
    a(f"v_mul_f32 v{g}, {lit(1.0/512)}, v{g}")
    a(f"v_fma_f32 v{g}, -v{mean}, v{mean}, v{g}")
    a(f"v_max_f32 v{g}, 0, v{g}")
    bf16r(a, g, g, t0)
    a(f"v_add_f32 v{g}, {lit(1e-5)}, v{g}")
    bf16r(a, g, g, t0)
    a(f"v_sqrt_f32 v{g}, v{g}")
    bf16r(a, g, g, t0)
    a(f"v_rcp_f32 v{rs}, v{g}")

def gelu4(a, c, t, vc0):
    for p in (0, 2):
        a(f"v_pk_mul_f32 {vr(t+p,2)}, {vr(c+p,2)}, {vr(c+p,2)}")
    for p in (0, 2):
        a(f"v_pk_fma_f32 {vr(t+p,2)}, {vr(t+p,2)}, {vr(vc0+2,2)}, {vr(vc0,2)}")
    for p in (0, 2):
        a(f"v_pk_mul_f32 {vr(t+p,2)}, {vr(t+p,2)}, {vr(c+p,2)}")
    for r in range(4): a(f"v_exp_f32 v{t+r}, v{t+r}")
    for p in (0, 2):
        a(f"v_pk_add_f32 {vr(t+p,2)}, {vr(t+p,2)}, 1.0 op_sel_hi:[1,0]")
    for r in range(4): a(f"v_rcp_f32 v{t+r}, v{t+r}")
    for p in (0, 2):
        a(f"v_pk_mul_f32 {vr(c+p,2)}, {vr(c+p,2)}, {vr(t+p,2)}")

def fold4(a, c, cs, nmb2, rs2):
    for p in (0, 2):
        a(f"v_pk_fma_f32 {vr(c+p,2)}, {vr(cs+p,2)}, {vr(nmb2,2)}, {vr(c+p,2)}")
    for p in (0, 2):
        a(f"v_pk_mul_f32 {vr(c+p,2)}, {vr(c+p,2)}, {vr(rs2,2)}")

def round4(a, c, t):
    a(f"v_cvt_pk_bf16_f32 v{t}, v{c}, v{c+1}")
    a(f"v_cvt_pk_bf16_f32 v{t+1}, v{c+2}, v{c+3}")
    unpack2(a, c, c + 1, t); unpack2(a, c + 2, c + 3, t + 1)

def row_voffw(a, dst, rows_per_wg, rows_per_wave, rs, t, st=0):
    a(f"s_mul_i32 s6, s{S_RT}, {rows_per_wg}")
    a(f"s_mul_i32 s7, s{S_W}, {rows_per_wave}")
    a(f"s_add_u32 s6, s6, s7")
    if st: a(f"s_add_u32 s6, s6, {st * 16}")
    a(f"v_add_u32 v{dst}, s6, v2")
    a(f"s_mov_b32 s7, {rs}")
    a(f"v_mul_lo_u32 v{dst}, v{dst}, s7")
    a(f"v_and_b32 v{t}, 1, v3")
    a(f"v_lshl_add_u32 v{dst}, v{t}, 5, v{dst}")
    a(f"v_lshrrev_b32 v{t}, 1, v3")
    a(f"v_lshl_add_u32 v{dst}, v{t}, 4, v{dst}")
def swap_wide(a, p):
    a(f"v_permlane16_swap_b32 v{p}, v{p+2}")
    a(f"v_permlane16_swap_b32 v{p+1}, v{p+3}")

def pack4(a, dst, c):
    a(f"v_cvt_pk_bf16_f32 v{dst}, v{c}, v{c+1}")
    a(f"v_cvt_pk_bf16_f32 v{dst+1}, v{c+2}, v{c+3}")

import os
PAD = int(os.environ.get('PAD', '4352'))
WS_WQC, WS_W2C, WS_W4C, WS_W3C = 0x1500000, 0x1700000, 0x1900000, 0x1b00000
W3C = FL('W3C', 1)
QS = 32768 + PAD
W2S = 65536 + PAD
W4C_STRIDE = 1536 * 128 + PAD
K0_WGS = 86
def k0_init(a):
    prologue(a, K0_WGS)
    srd(a, SRD_O, P_WS, WS_KV, 2 * KV_STRIDE)
    srd(a, SRD_CS, P_WS, WS_CS, 0x5000)
    a(f"""
    s_cmp_ge_u32 s2, 34
    s_cbranch_scc1 L_nozero
    s_cmp_ge_u32 s2, 17
    s_cselect_b32 s6, {KV_STRIDE - 17 * 4096}, 0
    s_lshl_b32 s7, s2, 12
    s_add_u32 s6, s6, s7
    v_lshlrev_b32 v4, 4, v0
    v_mov_b32 v8, 0
    v_mov_b32 v9, 0
    v_mov_b32 v10, 0
    v_mov_b32 v11, 0
    buffer_store_dwordx4 v[8:11], v4, s[{SRD_O}:{SRD_O+3}], s6 offen
    """)
    a.label("L_nozero")
    a(f"""
    s_mov_b32 s{SRD_B}, s{P_WQKV}
    s_mov_b32 s{SRD_B+1}, s{P_WQKV+1}
    s_mov_b32 s{SRD_B+2}, {512*3072}
    s_mov_b32 s{SRD_B+3}, 0x00020000
    s_mov_b32 s8, 3072
    s_mov_b32 s9, s2
    s_mov_b32 s10, {CS_QKV}
    s_mov_b32 s13, 0
    s_mul_i32 s14, s2, {2*QS}
    s_add_u32 s14, s14, {WS_WQC}
    s_mov_b32 s15, 1
    s_cmp_lt_u32 s2, 24
    s_cbranch_scc1 L_sel
    s_mov_b32 s15, 0
    s_mov_b32 s{SRD_B}, s{P_W1}
    s_mov_b32 s{SRD_B+1}, s{P_W1+1}
    s_mov_b32 s{SRD_B+2}, {512*1024}
    s_mov_b32 s8, 1024
    s_sub_u32 s9, s2, 24
    s_mov_b32 s10, {CS_W1}
    s_cmp_lt_u32 s2, 32
    s_cbranch_scc1 L_sel
    s_mov_b32 s{SRD_B}, s{P_W3}
    s_mov_b32 s{SRD_B+1}, s{P_W3+1}
    s_mov_b32 s{SRD_B+2}, {512*F*2}
    s_mov_b32 s8, {F*2}
    s_sub_u32 s9, s2, 32
    s_mov_b32 s10, {CS_W3}
    s_cmp_lt_u32 s2, 54
    s_cbranch_scc1 L_sel
    s_mov_b32 s15, 2
    s_mov_b32 s{SRD_B}, s{P_W2}
    s_mov_b32 s{SRD_B+1}, s{P_W2+1}
    s_mov_b32 s{SRD_B+2}, {512*1024}
    s_mov_b32 s8, 1024
    s_sub_u32 s9, s2, 54
    s_mul_i32 s14, s9, {W2S}
    s_add_u32 s14, s14, {WS_W2C}
    s_cmp_lt_u32 s2, 62
    s_cbranch_scc1 L_sel
    s_mov_b32 s{SRD_B}, s{P_W4}
    s_mov_b32 s{SRD_B+1}, s{P_W4+1}
    s_mov_b32 s{SRD_B+2}, {F*1024}
    s_sub_u32 s9, s2, 62
    s_lshr_b32 s6, s9, 3
    s_and_b32 s9, s9, 7
    s_lshl_b32 s13, s6, 19
    s_mul_i32 s14, s9, {W4C_STRIDE}
    s_lshl_b32 s6, s6, 16
    s_add_u32 s14, s14, s6
    s_add_u32 s14, s14, {WS_W4C}
    """)
    a.label("L_sel")
    a(f"""
    v_lshrrev_b32 v4, 3, v0
    v_and_b32 v5, 7, v0
    s_lshl_b32 s11, s8, 4
    v_mul_lo_u32 v6, v4, s11
    v_lshl_add_u32 v6, v5, 4, v6
    s_lshl_b32 s12, s9, 7
    s_add_u32 s12, s12, s13
    """)
    for i in range(16):
        a(f"buffer_load_dwordx4 {vr(32+4*i,4)}, v6, s[{SRD_B}:{SRD_B+3}], s12 offen")
        if i < 15: a("s_add_u32 s12, s12, s8")
    a(f"""
    s_add_u32 s{SRD_X1}, s{P_WS}, s14
    s_addc_u32 s{SRD_X1+1}, s{P_WS+1}, 0
    s_mov_b32 s{SRD_X1+2}, {2*QS}
    s_mov_b32 s{SRD_X1+3}, 0x00020000
    v_lshlrev_b32 v7, 11, v4
    v_lshl_add_u32 v7, v5, 4, v7
    v_lshrrev_b32 v12, 2, v5
    v_mul_u32_u24 v12, {QS}, v12
    v_lshl_add_u32 v12, v4, 10, v12
    v_and_b32 v13, 3, v5
    v_lshl_add_u32 v12, v13, 4, v12
    s_cmp_lg_u32 s15, 2
    s_cbranch_scc1 L_sum
    """)
    for i in range(16):
        a(f"s_waitcnt vmcnt({15})")
        a(f"buffer_store_dwordx4 {vr(32+4*i,4)}, v7, s[{SRD_X1}:{SRD_X1+3}], 0 offen offset:{i*128}")
    a("s_branch L_fin")
    a.label("L_sum")
    for r in range(8): a(f"v_mov_b32 v{16+r}, 0")
    for i in range(16):
        a(f"s_waitcnt vmcnt({15-i})")
        for p in range(4):
            unpack2(a, 24, 25, 32 + 4 * i + p)
            a(f"v_pk_add_f32 {vr(16+2*p,2)}, {vr(16+2*p,2)}, v[24:25]")
    a("s_cmp_lg_u32 s15, 1")
    a("s_cbranch_scc1 L_nocopy")
    for i in range(16):
        a(f"buffer_store_dwordx4 {vr(32+4*i,4)}, v12, s[{SRD_X1}:{SRD_X1+3}], 0 offen offset:{i*64}")
    a.label("L_nocopy")
    a("v_lshlrev_b32 v6, 5, v0")
    a("ds_write_b128 v6, v[16:19]")
    a("ds_write_b128 v6, v[20:23] offset:16")
    a("s_waitcnt lgkmcnt(0)")
    a("s_barrier")
    a(f"s_cmp_lg_u32 s{S_W}, 0")
    a("s_cbranch_scc1 L_fin")
    a("v_lshlrev_b32 v6, 2, v1")
    for i in range(32):
        a(f"ds_read_b32 v{100+i}, v6 offset:{i*256}")
    a("s_waitcnt lgkmcnt(0)")
    for st in (16, 8, 4, 2, 1):
        for i in range(st):
            a(f"v_add_f32 v{100+i}, v{100+i}, v{100+st+i}")
    a("s_lshl_b32 s12, s9, 8")
    a("s_add_u32 s12, s12, s10")
    a(f"buffer_store_dword v100, v6, s[{SRD_CS}:{SRD_CS+3}], s12 offen")

def gemm64_chunk(a, steps, ard, brd, aslot, bslot, acc, abuf, bbuf, first, xreg=None, stats=None):
    def lds_off(base_reg, off):
        return base_reg, off
    def reads(j):
        if xreg is None:
            a(f"ds_read_b128 {vr(abuf + (j % 2) * 4, 4)}, v{ard + j} offset:{aslot}")
        for nt in range(4):
            for hh in range(2):
                a(f"ds_read_b64_tr_b16 {vr(bbuf + (j % 2) * 16 + nt * 4 + hh * 2, 2)}, v{brd + nt} offset:{bslot + j * 4096 + hh * 512}")
    per = 8 + (1 if xreg is None else 0)
    reads(0)
    for j in range(steps):
        if j + 1 < steps:
            reads(j + 1); a(f"s_waitcnt lgkmcnt({per})")
        else:
            a("s_waitcnt lgkmcnt(0)")
        x = vr(abuf + (j % 2) * 4, 4) if xreg is None else vr(xreg(j), 4)
        z = first and j == 0
        for nt in range(4):
            c = vr(acc + 4 * nt, 4)
            a(f"v_mfma_f32_16x16x32_bf16 {c}, {vr(bbuf + (j % 2) * 16 + nt * 4, 4)}, {x}, {'0' if z else c}")
        if stats is not None:
            SU, G = stats
            a(f"v_mfma_f32_16x16x32_bf16 {vr(SU,4)}, v[8:11], {x}, {'0' if z else vr(SU,4)}")
            a(f"v_mfma_f32_16x16x32_bf16 {vr(G,4)}, {x}, {x}, {'0' if z else vr(G,4)}")

def gemm64_loop(a, chunks, acc, abuf, bbuf, stats=None, stamps=(), tail=None, hooks={}):
    steps = [(c, j) for c, ch in enumerate(chunks) for j in range(ch[0])]
    def reads(n):
        c, j = steps[n]; _, ar, ao, br, bo = chunks[c]; p = n % 2
        L = [f"ds_read_b128 {vr(abuf + p * 4, 4)}, v{ar + j} offset:{ao}"]
        for nt in range(4):
            for hh in range(2):
                L.append(f"ds_read_b64_tr_b16 {vr(bbuf + p * 16 + nt * 4 + hh * 2, 2)}, v{br + nt} offset:{bo + j * 4096 + hh * 512}")
        return L
    def step(n, nxt):
        z = n == 0; p = n % 2
        nxt = list(nxt); issued = 0
        def rd(k):
            nonlocal issued
            for _ in range(k):
                if nxt: a(nxt.pop(0)); issued += 1
        x = vr(abuf + p * 4, 4)
        per = (2, 2, 2, 1, 1, 1) if stats is not None else (3, 2, 2, 2)
        for nt in range(4):
            a(f"s_waitcnt lgkmcnt({6 - 2 * nt + issued})")
            c = vr(acc + 4 * nt, 4)
            a(f"v_mfma_f32_16x16x32_bf16 {c}, {vr(bbuf + p * 16 + nt * 4, 4)}, {x}, {'0' if z else c}")
            rd(per[nt])
        if stats is not None:
            SU, G = stats
            a(f"v_mfma_f32_16x16x32_bf16 {vr(SU,4)}, v[8:11], {x}, {'0' if z else vr(SU,4)}")
            rd(per[4])
            a(f"v_mfma_f32_16x16x32_bf16 {vr(G,4)}, {x}, {x}, {'0' if z else vr(G,4)}")
            rd(per[5])
        assert not nxt
    for n, (c, j) in enumerate(steps):
        if j == 0:
            barrier(a, c in stamps)
            if c in hooks: hooks[c]()
        if n == 0:
            for l in reads(0): a(l)
        else:
            step(n - 1, reads(n))
    step(len(steps) - 1, [])

class Banked:
    def __init__(self, a, base, n, extra):
        self.sets = [base] + extra
        for k, e in enumerate(extra):
            for i in range(n):
                a(f"v_add_u32 v{e+i}, {(k+1) << 16}, v{base+i}")
    def get(self, off):
        return self.sets[off >> 16], off & 0xffff

def k4_shift_w2(a):
    vm = VM(a)
    prologue8(a, 256); decode_wg(a, 4)
    def srds_ld():
        srd(a, SRD_A, P_WS, WS_H, 0x200000)
        srd(a, SRD_B, P_WS, WS_W2C, 8 * W2S)
        srd(a, SRD_X1, P_WS, WS_XB, 0x200000)
    def srds_cp():
        srd(a, SRD_O, P_WS, WS_X1, 0x200000)
    a(f"s_lshl_b32 s12, s{S_CT}, 7")
    split(a)
    row_voff(a, 21, 64, 16, 1024, with_g=8)
    a(f"v_add_u32 v21, s12, v21")
    kwait(a, srds_cp)
    XB = 80
    RES = 131072
    a_rd256(a, 4, 24, 4096)
    tr_addrs128(a, 12, 24, 'std')
    for nt in range(4): a(f"v_add_u32 v{12+nt}, 0x10000, v{12+nt}")
    res_rd(a, 16, 24, RES)
    gemm64_loop(a, [(4, 4, c * 16384, 12, c * 16384) for c in range(4)], 32, 24, 48, stamps=(0, 1, 2, 3))
    stamp(a)
    for nt in range(4):
        a(f"ds_read_b64 {vr(XB+2*nt,2)}, v{16+nt}")
    for nt in range(4):
        c = 32 + 4 * nt
        round4(a, c, 24)
        a(f"s_waitcnt lgkmcnt({3-nt})")
        unpack2(a, 26, 27, XB + 2 * nt); unpack2(a, 28, 29, XB + 2 * nt + 1)
        for p in (0, 2): a(f"v_pk_add_f32 {vr(c+p,2)}, {vr(c+p,2)}, {vr(26+p,2)}")
        pack4(a, c, c)
        a(f"buffer_store_dwordx2 {vr(c,2)}, v21, s[{SRD_O}:{SRD_O+3}], 0 offen offset:{nt*32}")
    loader_begin(a)
    PEND.append(srds_ld)
    AV, BV = 16, 20
    a_voff256(a, AV, 1024, 64, 16, 24)
    b_voff128(a, BV, 24, 128, 'std')
    a(f"s_lshl_b32 s13, s{S_W}, 12")
    a(f"s_lshl_b32 s14, s{S_W}, 10")
    a(f"s_mul_i32 s10, s{S_CT}, {W2S}")
    a(f"s_add_u32 s10, s10, s14")
    if FL('ROT4', 0): a(f"s_mov_b32 s15, s{S_RT}")
    else: a("s_mov_b32 s15, 0")
    def issue(c):
        a(f"s_add_u32 s8, s15, {c}")
        a(f"s_and_b32 s8, s8, 3")
        a(f"s_lshl_b32 s9, s8, 14")
        a(f"s_add_u32 s9, s9, s10")
        a(f"s_mov_b32 s60, {(-1024) & 0xffffffff}")
        for cc, sh in ((1, 1), (2, -2), (3, 2)):
            a(f"s_cmp_eq_u32 s8, {cc}")
            a(f"s_cselect_b32 s60, {(sh * 1024 + cc * 256) & 0xffffffff}, s60")
        for t4 in range(4):
            a(f"v_add_u32 v{88+4*(c%2)+t4}, s60, v{AV+t4}")
        for ab in ((1, 0) if FL('BF4', 0) else (0, 1)):
            if ab == 0:
                for t4 in range(4):
                    dma(a, vm, ('ch', c), 88 + 4 * (c % 2) + t4, SRD_A, 0, 0, (13, c * 16384 + t4 * 1024))
            else:
                for i in range(4):
                    dma(a, vm, ('ch', c), BV, SRD_B, 's9', i * 4096, (14, 65536 + c * 16384 + i * 4096))
    issue(0); lstamp(a); issue(1); lstamp(a)
    a_voff128(a, 22, 1024, 64, 16, 24)
    a(f"s_lshl_b32 s11, s{S_W}, 11")
    for c in range(4):
        vm.wait(('ch', c)); lstamp(a); a("s_barrier")
        if c + 2 < 4: issue(c + 2)
        if c == 1: res_dma(a, vm, ('ch', 3), 22, SRD_X1, 's12', RES)
    loader_end(a, (P_W3, 512*F*2, 11))

def pair_exchange(a, hf, send, recv, base, t):
    n = len(send)
    a(f"s_mul_i32 s6, s{S_W}, {2*n*1024}")
    a(f"v_lshlrev_b32 v{t}, 4, v1")
    a(f"v_add_u32 v{t}, s6, v{t}")
    if base: a(f"v_add_u32 v{t}, {base}, v{t}")
    for i, r in enumerate(send):
        a(f"ds_write_b128 v{t}, {vr(r,4)} offset:{(hf*n + i)*1024}")
    a("s_waitcnt lgkmcnt(0)")
    a("s_barrier")
    for i, r in enumerate(recv):
        a(f"ds_read_b128 {vr(r,4)}, v{t} offset:{((1-hf)*n + i)*1024}")

def ln_stats(a, SUM, G, mean, var, t):
    t0 = t
    a(f"v_cndmask_b32 v{var}, 0, v{G}, s[64:65]")
    for r in range(1, 4):
        a(f"v_cndmask_b32 v{var}, v{var}, v{G+r}, s[{64+2*r}:{65+2*r}]")
    a(f"v_mul_f32 v{mean}, {lit(1.0/512)}, v{SUM}")
    xlane_sum(a, var, t0)
    a(f"v_mul_f32 v{var}, {lit(1.0/512)}, v{var}")
    a(f"v_fma_f32 v{var}, -v{mean}, v{mean}, v{var}")
    a(f"v_max_f32 v{var}, 0, v{var}")
def ln_scale(a, var, rs, t):
    bf16r(a, rs, var, t)
    a(f"v_add_f32 v{rs}, {lit(1e-5)}, v{rs}")
    bf16r(a, rs, rs, t)
    a(f"v_sqrt_f32 v{rs}, v{rs}")
    bf16r(a, rs, rs, t)
    a(f"v_rcp_f32 v{rs}, v{rs}")

def rot3(a):
    ROT = os.environ.get('ROT', '3')
    if ROT == '1': a(f"s_add_u32 s15, s{S_CT}, s{S_RT}")
    elif ROT == '2': a(f"s_mov_b32 s15, s{S_CT}")
    elif ROT == '3': a(f"s_mov_b32 s15, s{S_RT}")
    else: a("s_mov_b32 s15, 0")
def k3_ln_w1(a):
    vm = VM(a)
    prologue8(a, 256); decode_wg(a, 4)
    def srds_ld():
        srd(a, SRD_A, P_WS, WS_XA, 0x200000)
        srd(a, SRD_B, P_W1, 0, 512 * 1024)
    def srds_cp():
        srd(a, SRD_O, P_WS, WS_H, 0x200000)
        srd(a, SRD_X1, P_WS, WS_XB, 0x200000)
    a(f"s_lshl_b32 s12, s{S_CT}, 7")
    split(a)
    CSR = 144; CSR2 = 200
    row_voff(a, 21, 64, 16, 1024, with_g=8)
    a(f"v_add_u32 v21, s12, v21")
    kwait(a, srds_cp)
    RX = 80
    CSL3 = 131072
    rot3(a)
    a(f"s_lshr_b32 s6, s{S_CT}, 1")
    a("s_sub_u32 s6, s6, s15")
    a("s_and_b32 s6, s6, 3")
    a("s_lshl_b32 s6, s6, 14")
    a(f"s_lshl_b32 s7, s{S_W}, 12")
    a("s_add_u32 s6, s6, s7")
    a(f"s_and_b32 s7, s{S_CT}, 1")
    a("s_lshl_b32 s7, s7, 3")
    a("v_lshrrev_b32 v24, 1, v3")
    a("v_or_b32 v24, s7, v24")
    a("v_xor_b32 v24, v24, v2")
    a("v_lshlrev_b32 v24, 4, v24")
    a("v_lshl_add_u32 v24, v2, 8, v24")
    a("v_and_b32 v25, 1, v3")
    a("v_lshl_add_u32 v24, v25, 3, v24")
    for nt in range(4):
        a(f"v_xor_b32 v{16+nt}, {nt << 5}, v24")
        a(f"v_add_u32 v{16+nt}, s6, v{16+nt}")
    a("v_lshlrev_b32 v22, 4, v3")
    a(f"v_add_u32 v22, {CSL3}, v22")
    def ldcs():
        for nt in range(4):
            a(f"ds_read_b128 {vr(CSR+4*nt,4)}, v22 offset:{nt*64}")
            a(f"ds_read_b128 {vr(CSR2+4*nt,4)}, v22 offset:{256+nt*64}")
        for nt in range(4):
            a(f"ds_read_b64 {vr(RX+2*nt,2)}, v{16+nt}")
    def addcs():
        a("s_waitcnt lgkmcnt(0)")
        for i in range(0, 16, 2): a(f"v_pk_add_f32 {vr(CSR+i,2)}, {vr(CSR+i,2)}, {vr(CSR2+i,2)}")
    setup_consts(a)
    a_rd256(a, 4, 24, 4096)
    tr_addrs128(a, 12, 24, 'std')
    for nt in range(4): a(f"v_add_u32 v{12+nt}, 0x10000, v{12+nt}")
    SU, G = 160, 164
    GC = 172
    a(f"v_mov_b32 v{GC}, {lit(GELU_C0)}"); a(f"v_mov_b32 v{GC+1}, {lit(GELU_C0)}")
    a(f"v_mov_b32 v{GC+2}, {lit(GELU_C1)}"); a(f"v_mov_b32 v{GC+3}, {lit(GELU_C1)}")
    gemm64_loop(a, [(4, 4, c * 16384, 12, c * 16384) for c in range(4)], 32, 24, 48, stats=(SU, G), stamps=(0, 1, 2, 3))
    stamp(a)
    ldcs()
    MEAN, VAR, MB1, RS1, M2, V2 = 176, 177, 178, 180, 182, 183
    MB, RS = 168, 170
    ln_stats(a, SU, G, MEAN, VAR, 24)
    bf16r(a, MB1, MEAN, 24)
    ln_scale(a, VAR, RS1, 24)
    a(f"v_sub_f32 v{M2}, v{MEAN}, v{MB1}")
    a(f"v_mul_f32 v{V2}, v{VAR}, v{RS1}")
    a(f"v_mul_f32 v{M2}, v{M2}, v{RS1}")
    a(f"v_mul_f32 v{V2}, v{V2}, v{RS1}")
    bf16r(a, M2, M2, 24)
    ln_scale(a, V2, RS, 25)
    a(f"v_mul_f32 v{MB1}, v{MB1}, v{RS1}")
    a(f"v_rcp_f32 v24, v{RS1}")
    a(f"v_add_f32 v{MB}, v{MB1}, v{M2}")
    a(f"v_sub_f32 v{MB1}, 0, v{MB1}")
    a(f"v_mul_f32 v{MB}, v{MB}, v24")
    a(f"v_mul_f32 v{RS}, v{RS}, v{RS1}")
    a(f"v_sub_f32 v{MB}, 0, v{MB}")
    a(f"v_mov_b32 v{RS+1}, v{RS}")
    a(f"v_mov_b32 v{MB+1}, v{MB}")
    a(f"v_mov_b32 v{RS1+1}, v{RS1}")
    a(f"v_mov_b32 v{MB1+1}, v{MB1}")
    addcs()
    for np_ in range(2):
        recs = []
        for q in range(2):
            nt = 2 * np_ + q
            r = Rec()
            c = 32 + 4 * nt
            fold4(r, c, CSR + 4 * nt, MB, RS)
            round4(r, c, 24 + 2 * q)
            gelu4(r, c, 184 + 4 * q, GC)
            pack4(r, c, c)
            r(f"buffer_store_dwordx2 {vr(c,2)}, v21, s[{SRD_O}:{SRD_O+3}], 0 offen offset:{nt*32}")
            recs.append(r)
        interleave(a, recs)
    recs = []
    for nt in range(4):
        r = Rec()
        t = 96 + 4 * nt
        unpack2(r, t, t + 1, RX + 2 * nt); unpack2(r, t + 2, t + 3, RX + 2 * nt + 1)
        for p in (0, 2): r(f"v_pk_fma_f32 {vr(t+p,2)}, {vr(t+p,2)}, {vr(RS1,2)}, {vr(MB1,2)}")
        pack4(r, t, t)
        r(f"buffer_store_dwordx2 {vr(t,2)}, v21, s[{SRD_X1}:{SRD_X1+3}], 0 offen offset:{nt*32}")
        recs.append(r)
    interleave(a, recs)
    loader_begin(a)
    PEND.append(srds_ld)
    AV, BV = 16, 20
    a_voff256(a, AV, 1024, 64, 16, 24)
    b_voff128(a, BV, 24, 1024, 'std')
    a(f"s_lshl_b32 s13, s{S_W}, 12")
    a(f"s_lshl_b32 s14, s{S_W}, 10")
    a(f"s_mul_i32 s10, s{S_W}, {8*1024}")
    a(f"s_add_u32 s10, s10, s12")
    rot3(a)
    def issue(c):
        a(f"s_add_u32 s8, s15, {c}")
        a(f"s_and_b32 s8, s8, 3")
        a(f"s_lshl_b32 s9, s8, 17")
        a(f"s_add_u32 s9, s9, s10")
        a(f"s_lshl_b32 s8, s8, 8")
        for ab in ((0, 1) if os.environ.get('BF', '1') == '0' else (1, 0)):
            if ab == 0:
                for t4 in range(4):
                    dma(a, vm, ('ch', c), AV + t4, SRD_A, 's8', 0, (13, c * 16384 + t4 * 1024))
            else:
                for i in range(4):
                    dma(a, vm, ('ch', c), BV, SRD_B, 's9', i * 32768, (14, 65536 + c * 16384 + i * 4096))
    issue(0); lstamp(a); issue(1); lstamp(a)
    srd(a, SRD_CS, P_WS, WS_CS, CS_SIZE)
    a("v_lshlrev_b32 v22, 2, v1")
    a(f"s_and_b32 s6, s{S_W}, 1")
    a(f"s_mul_i32 s11, s6, {CS_P1}")
    a(f"s_lshl_b32 s7, s{S_CT}, 8")
    a("s_add_u32 s11, s11, s7")
    a(f"s_add_u32 s11, s11, {CS_W1}")
    a("s_lshl_b32 s60, s6, 8")
    for c in range(4):
        vm.wait(('ch', c)); lstamp(a); a("s_barrier")
        if c == 1:
            a(f"s_cmp_ge_u32 s{S_W}, 2")
            a("s_cbranch_scc1 L_nocs")
            a(f"s_add_u32 m0, s60, {CSL3}")
            a("s_nop 0")
            a(f"buffer_load_dword v22, s[{SRD_CS}:{SRD_CS+3}], s11 offen lds")
            a.label("L_nocs")
        if c + 2 < 4: issue(c + 2)
    loader_end(a)

def k6_w4(a):
    vm = VM(a)
    prologue8(a, 256); decode_wg(a, 4)
    def srds_ld():
        srd(a, SRD_A, P_WS, WS_H3, S * H3S)
        srd(a, SRD_B, P_WS, WS_W4C, 8 * W4C_STRIDE)
    def srds_cp():
        srd_sel(a, SRD_O, P_WS, WS_XN, P_OUT, 0, 0x200000)
    NS, NCH, NI = 5, 11, 2
    a(f"s_lshl_b32 s12, s{S_CT}, 7")
    split(a)
    row_voff(a, 21, 64, 16, 1024, with_g=8)
    a(f"v_add_u32 v21, s12, v21")
    kwait(a, srds_cp)
    R1, R2 = 96, 104
    RES = 32768
    res_rd(a, 16, 24, RES)
    a_rd256(a, 4, 24, 4096)
    tr_addrs128(a, 12, 24, 'std')
    AB = Banked(a, 4, 4, [80, 84])
    BB = Banked(a, 12, 4, [88, 92])
    chs = []
    for c in range(NCH):
        slot = (c % NS) * 32768
        ar, ao = AB.get(slot); br, bo = BB.get(slot + 16384)
        chs.append((4 if c < 10 else 3, ar, ao, br, bo))
    gemm64_loop(a, chs, 32, 24, 48, stamps=(0, NCH - 1))
    stamp(a)
    for nt in range(4):
        a(f"ds_read_b64 {vr(R1+2*nt,2)}, v{16+nt}")
        a(f"ds_read_b64 {vr(R2+2*nt,2)}, v{16+nt} offset:8192")
    for nt in range(4):
        c = 32 + 4 * nt
        round4(a, c, 24)
        a(f"s_waitcnt lgkmcnt({6-2*nt})")
        unpack2(a, 26, 27, R1 + 2 * nt); unpack2(a, 28, 29, R1 + 2 * nt + 1)
        for p in (0, 2): a(f"v_pk_add_f32 {vr(c+p,2)}, {vr(c+p,2)}, {vr(26+p,2)}")
        round4(a, c, 24)
        unpack2(a, 26, 27, R2 + 2 * nt); unpack2(a, 28, 29, R2 + 2 * nt + 1)
        for p in (0, 2): a(f"v_pk_add_f32 {vr(c+p,2)}, {vr(c+p,2)}, {vr(26+p,2)}")
        pack4(a, c, c)
        a(f"buffer_store_dwordx2 {vr(c,2)}, v21, s[{SRD_O}:{SRD_O+3}], 0 offen offset:{nt*32}")
    loader_begin(a)
    PEND.append(srds_ld)
    AV, BV = 16, 20
    a_voff256(a, AV, H3S, 64, 16, 24)
    b_voff128(a, BV, 24, 128, 'std')
    a(f"s_lshl_b32 s13, s{S_W}, 12")
    a(f"s_lshl_b32 s14, s{S_W}, 10")
    a(f"s_mul_i32 s10, s{S_CT}, {W4C_STRIDE}")
    a(f"s_add_u32 s10, s10, s14")
    if FL('ROT6', 0):
        a(f"s_and_b32 s60, s{S_RT}, 3")
        a(f"s_mul_i32 s60, s60, {FL('ROT6', 0)}")
    else: a("s_mov_b32 s60, 0")
    def issue(c):
        slot = (c % NS) * 32768
        if c < 10:
            a(f"s_add_u32 s8, s60, {c}")
            a(f"s_sub_u32 s9, s8, 10")
            a(f"s_cmp_ge_u32 s8, 10")
            a(f"s_cselect_b32 s8, s9, s8")
        else: a(f"s_mov_b32 s8, 10")
        a(f"s_lshl_b32 s9, s8, 14")
        a(f"s_add_u32 s9, s9, s10")
        a(f"s_lshl_b32 s8, s8, 8")
        for ab in ((1, 0) if FL('BF6', 0) else (0, 1)):
            if ab == 0:
                for t4 in range(4):
                    dma(a, vm, ('ch', c), AV + t4, SRD_A, 's8', 0, (13, slot + t4 * 1024))
            else:
                for i in range(4 if c < 10 else 3):
                    dma(a, vm, ('ch', c), BV, SRD_B, 's9', i * 4096, (14, slot + 16384 + i * 4096))
    def per(c):
        if c == 0:
            srd(a, SRD_X1, P_WS, WS_X1, 0x200000)
            srd(a, SRD_X2, P_WS, WS_XA, 0x200000)
            a_voff128(a, 22, 1024, 64, 16, 24)
            a(f"s_lshl_b32 s11, s{S_W}, 11")
    def hook(vm):
        res_dma(a, vm, ('ch', NCH - 1), 22, SRD_X1, 's12', RES)
        res_dma(a, vm, ('ch', NCH - 1), 22, SRD_X2, 's12', RES + 8192)
    loader_ring(a, vm, issue, NCH, NS, NI, hook, per)
    loader_end(a, (P_WQKV, 512*3072, 12))

def loader_ring(a, vm, issue, NCH, NS, NI, hook=None, per=None):
    nxt = 0
    while nxt < min(NI, NCH): issue(nxt); nxt += 1; lstamp(a)
    for c in range(NCH):
        vm.wait(('ch', c))
        if c < 4: lstamp(a)
        a("s_barrier")
        k = 0
        while nxt < NCH and nxt <= c - 1 + NS and k < LOOKAHEAD_STEP:
            issue(nxt); nxt += 1; k += 1
            if nxt == NCH and hook: hook(vm)
        if per: per(c)

LOOKAHEAD_STEP = 1

SLOT96 = 28672
def gemm96_compute(a, orient, hooks={}):
    NS, NCH = 5, 8
    setup_consts(a)
    a_rd128(a, 4, 24, 4096)
    tr_addrs64s(a, 160, 24, 4096)
    AB = Banked(a, 4, 2, [166, 168])
    BB = Banked(a, 160, 6, [170, 176])
    acc = lambda st, nt: 32 + 24 * st + 4 * nt
    def reads(c, j):
        slot = (c % NS) * SLOT96
        L = []
        for st in range(2):
            r, o = AB.get(slot + st * 2048)
            L.append(f"ds_read_b128 {vr(96 + j * 8 + st * 4, 4)}, v{r + j} offset:{o}")
        for nt in range(6):
            for hh in range(2):
                r, o = BB.get(slot + 16384 + j * 2048 + hh * 256)
                L.append(f"ds_read_b64_tr_b16 {vr(112 + j * 24 + nt * 4 + hh * 2, 2)}, v{r + nt} offset:{o}")
        return L
    def step(c, j, nxt):
        z = c == 0 and j == 0
        nxt = list(nxt); issued = 0
        def rd():
            nonlocal issued
            if nxt: a(nxt.pop(0)); issued += 1
        for nt in range(6):
            a(f"s_waitcnt lgkmcnt({10 - 2 * nt + issued})")
            for st in range(2):
                cc = vr(acc(st, nt), 4); w = vr(112 + j * 24 + nt * 4, 4); x = vr(96 + j * 8 + st * 4, 4)
                if orient[nt] == 'T': a(f"v_mfma_f32_16x16x32_bf16 {cc}, {w}, {x}, {'0' if z else cc}")
                else: a(f"v_mfma_f32_16x16x32_bf16 {cc}, {x}, {w}, {'0' if z else cc}")
                rd()
        for st in range(2):
            x = vr(96 + j * 8 + st * 4, 4); SU = vr(80 + 8 * st, 4); G = vr(84 + 8 * st, 4)
            a(f"v_mfma_f32_16x16x32_bf16 {SU}, v[8:11], {x}, {'0' if z else SU}")
            rd()
            a(f"v_mfma_f32_16x16x32_bf16 {G}, {x}, {x}, {'0' if z else G}")
            rd()
        assert not nxt
    for c in range(NCH):
        barrier(a, c in (0, 3, 4, NCH - 1,))
        if c in hooks: hooks[c]()
        if c == 0:
            for l in reads(0, 0): a(l)
        else:
            step(c - 1, 1, reads(c, 0))
        step(c, 0, reads(c, 1))
    step(NCH - 1, 1, [])
    stamp(a)
    return acc

def gemm96_loader(a, rs_a, rs_b, col_sgprs, hook=None, per=None, pre=None, NI=2):
    vm = VM(a)
    NS, NCH = 5, 8
    AV, BV = 16, 18
    a_voff128(a, AV, rs_a, 128, 32, 24)
    b_voff64(a, BV, 24, rs_b)
    a(f"s_lshl_b32 s13, s{S_W}, 12")
    a(f"s_lshl_b32 s14, s{S_W}, 10")
    a(f"s_mul_i32 s10, s{S_W}, {16*rs_b}")
    a(f"s_mov_b32 s11, {16*rs_a}")
    if FL('ROT96', 0):
        a(f"s_and_b32 s60, s{S_RT}, 1")
        a(f"s_mul_i32 s60, s60, {FL('ROT96', 0)}")
    else: a("s_mov_b32 s60, 0")
    def issue(c):
        slot = (c % NS) * SLOT96
        a(f"s_add_u32 s61, s60, {c}")
        a(f"s_and_b32 s61, s61, 7")
        a(f"s_mul_i32 s62, s61, {64*rs_b}")
        a(f"s_add_u32 s62, s62, s10")
        a(f"s_lshl_b32 s61, s61, 7")
        a(f"s_add_u32 s63, s61, s11")
        for ab in ((1, 0) if FL('BF96', 0) else (0, 1)):
            if ab == 0:
                for t in range(4):
                    dma(a, vm, ('ch', c), AV + (t & 1), SRD_A, 's63' if t >= 2 else 's61', 0, (13, slot + t * 1024))
            else:
                for j in range(3):
                    a(f"s_add_u32 s48, s62, s{col_sgprs[j]}")
                    dma(a, vm, ('ch', c), BV, SRD_B, 's48', 0, (14, slot + 16384 + j * 4096))
    if pre:
        issue0 = issue
        def issue(c):
            issue0(c)
            if c == NI - 1: pre()
    loader_ring(a, vm, issue, NCH, NS, NI, hook, per)

def k5_ln_w3(a):
    vm = VM(a)
    prologue8(a, 240); decode_wg(a, 2)
    def srds_ld():
        srd(a, SRD_A, P_WS, WS_X1, 0x200000)
        if W3C: srd(a, SRD_B, P_WS, WS_W3C, 43 * QS)
        else: srd(a, SRD_B, P_W3, 0, 512 * F * 2)
    def srds_cp():
        srd(a, SRD_O, P_WS, WS_H3, S * H3S)
    a(f"s_mul_i32 s12, s{S_CT}, 192")
    a(f"s_add_u32 s8, s12, 64")
    a(f"s_add_u32 s9, s12, 128")
    CSR = 184; CSR2 = 208
    NST = 1 if EPI8 else 2
    CSL5 = 5 * SLOT96
    def addcs():
        a("s_waitcnt lgkmcnt(0)")
        for i in range(0, 24, 2): a(f"v_pk_add_f32 {vr(CSR+i,2)}, {vr(CSR+i,2)}, {vr(CSR2+i,2)}")
    def ldcs():
        for nt in range(6):
            a(f"ds_read_b128 {vr(CSR+4*nt,4)}, v22 offset:{nt*64}")
            a(f"ds_read_b128 {vr(CSR2+4*nt,4)}, v22 offset:{1024+nt*64}")
    def after(vm, sts):
        a("v_lshlrev_b32 v22, 4, v3")
        a(f"v_add_u32 v22, {CSL5}, v22")
        for i, st in enumerate(sts):
            row_voffw(a, 20 + i, 128, 32, H3S, 25, st=st)
            a(f"v_add_u32 v{20+i}, s12, v{20+i}")
    split(a)
    kwait(a, srds_cp)
    after(vm, (0,) if EPI8 else (0, 1))
    acc = gemm96_compute(a, 'TTTTTT')
    ldcs()
    if EPI8:
        handover_put(a, [56 + 4 * i for i in range(6)] + [88, 92])
        a.label("L_epi")
    MB = (96, 100); RS = (98, 102)
    for st in range(NST):
        ln_finish(a, 80 + 8 * st, 84 + 8 * st, MB[st], RS[st], 24)
        a(f"v_mov_b32 v{RS[st]+1}, v{RS[st]}")
        a(f"v_sub_f32 v{MB[st]}, 0, v{MB[st]}")
        a(f"v_mov_b32 v{MB[st]+1}, v{MB[st]}")
    GC = 104
    a(f"v_mov_b32 v{GC}, {lit(GELU_C0)}"); a(f"v_mov_b32 v{GC+1}, {lit(GELU_C0)}")
    a(f"v_mov_b32 v{GC+2}, {lit(GELU_C1)}"); a(f"v_mov_b32 v{GC+3}, {lit(GELU_C1)}")
    addcs()
    for np_ in range(3):
        if np_ == 1:
            a(f"s_cmp_eq_u32 s{S_CT}, 14")
            a("s_cbranch_scc1 L_fin")
        for st in range(NST):
            recs = []
            c0 = acc(st, 2 * np_)
            for q in range(2):
                nt = 2 * np_ + q
                r = Rec()
                c = acc(st, nt)
                fold4(r, c, CSR + 4 * nt, MB[st], RS[st])
                round4(r, c, 24 + 2 * q)
                gelu4(r, c, 108 + 4 * q, GC)
                pack4(r, 116 + 4 * st + 2 * q, c)
                recs.append(r)
            interleave(a, recs)
            swap_wide(a, 116 + 4 * st)
            a(f"buffer_store_dwordx4 {vr(116+4*st,4)}, v{20+st}, s[{SRD_O}:{SRD_O+3}], 0 offen offset:{np_*64}")
    loader_begin(a)
    PEND.append(srds_ld)
    def hook(vml):
        setup_consts(a)
        after(vml, (1,))
    def per5(c):
        if c == 2:
            a(f"s_cmp_ge_u32 s{S_W}, 2")
            a("s_cbranch_scc1 L_nocs")
            srd(a, SRD_CS, P_WS, WS_CS, CS_SIZE)
            a("v_lshlrev_b32 v22, 4, v1")
            a(f"s_mul_i32 s6, s{S_W}, {CS_P1}")
            a(f"s_mul_i32 s7, s{S_CT}, 384")
            a("s_add_u32 s6, s6, s7")
            a(f"s_add_u32 s6, s6, {CS_W3}")
            a(f"s_lshl_b32 s7, s{S_W}, 10")
            a(f"s_add_u32 m0, s7, {CSL5}")
            a("s_nop 0")
            a(f"buffer_load_dwordx4 v22, s[{SRD_CS}:{SRD_CS+3}], s6 offen lds")
            a.label("L_nocs")
    if W3C:
        a(f"s_mul_i32 s12, s{S_CT}, {3*QS}")
        a(f"s_add_u32 s8, s12, {QS}")
        a(f"s_add_u32 s9, s12, {2*QS}")
        gemm96_loader(a, 1024, 64, (12, 8, 9), None, per5)
    else:
        gemm96_loader(a, 1024, F * 2, (12, 8, 9), None, per5)
    if FL('ZK5', 1):
        a("s_cmp_ge_u32 s2, 17")
        a("s_cbranch_scc1 L_end")
        srd(a, SRD_X3, P_WS, WS_KV + KV_STRIDE, KV_STRIDE)
        for i in range(4): a(f"v_mov_b32 v{24+i}, 0")
        a("v_lshlrev_b32 v28, 4, v1")
        a("s_lshl_b32 s6, s2, 12")
        a(f"s_lshl_b32 s7, s{S_W}, 10")
        a("s_add_u32 s6, s6, s7")
        a(f"buffer_store_dwordx4 v[24:27], v28, s[{SRD_X3}:{SRD_X3+3}], s6 offen{' sc1' if FL('ZSC', 0) else ''}")
    loader_end(a)

CSL = 5 * SLOT96
WPL = CSL + 1024
JOBL = WPL + 1024
K1A_LDS = JOBL + 16384
SC = ' sc1' if FL('SC1', 1) else ''
JD = 212
def jobs_load0(a):
    S1, S2, SD = SRD_A, SRD_B, SRD_X3
    V = 228
    a("s_lshl_b32 s13, s2, 2")
    a(f"s_add_u32 s13, s13, s{S_W}")
    a(f"v_lshlrev_b32 v{V}, 4, v1")
    if FL('PFX', 1):
        srd(a, S1, P_X, 0, 0x200000)
        a(f"s_lshl_b32 s6, s{S_RT}, 17")
        a(f"s_lshl_b32 s7, s{S_CT}, 13")
        a("s_add_u32 s6, s6, s7")
        a(f"s_lshl_b32 s7, s{S_W}, 11")
        a("s_add_u32 s6, s6, s7")
        for i in range(2):
            a(f"buffer_load_dwordx4 {vr(V+6+4*i,4)}, v{V}, s[{S1}:{S1+3}], s6 offen offset:{i*1024}")
    srd(a, S2, P_WQKV, 0, 512 * 3072)
    a("v_lshrrev_b32 v24, 3, v1")
    a("v_and_b32 v25, 7, v1")
    a("v_lshlrev_b32 v26, 4, v25")
    a(f"v_mul_u32_u24 v{V+3}, 3072, v24")
    a(f"v_add_u32 v{V+3}, v{V+3}, v26")
    a("s_lshr_b32 s6, s13, 4"); a("s_and_b32 s7, s13, 15")
    a(f"s_mul_i32 s14, s6, {8*3072}"); a("s_lshl_b32 s15, s7, 7"); a("s_add_u32 s14, s14, s15")
    a(f"buffer_load_dwordx4 {vr(JD+4,4)}, v{V+3}, s[{S2}:{S2+3}], s14 offen")
    a(f"s_mul_i32 s9, s7, {2*QS}"); a("s_lshl_b32 s6, s6, 9"); a("s_add_u32 s9, s9, s6")
    a("s_cmp_ge_u32 s7, 8")
    a("s_cbranch_scc1 L_nob2")
    a(f"buffer_load_dwordx4 {vr(JD+8,4)}, v{V+3}, s[{S2}:{S2+3}], s14 offen offset:2048")
    a.label("L_nob2")
    a(f"v_lshl_add_u32 v{V+2}, v24, 10, v26")
    a(f"v_lshrrev_b32 v{V+1}, 2, v25")
    a(f"v_mul_u32_u24 v{V+1}, {QS}, v{V+1}")
    a(f"v_lshl_add_u32 v{V+1}, v24, 6, v{V+1}")
    a("v_and_b32 v27, 3, v1")
    a(f"v_lshl_add_u32 v{V+1}, v27, 4, v{V+1}")
def jobs_load(a):
    S1, S2, SD = SRD_A, SRD_B, SRD_X3
    V = 228
    srd(a, S1, P_W4, 0, F * 1024)
    a("s_lshr_b32 s6, s13, 3"); a("s_and_b32 s7, s13, 7")
    a("s_lshl_b32 s14, s6, 13"); a("s_lshl_b32 s15, s7, 7"); a("s_add_u32 s14, s14, s15")
    a(f"buffer_load_dwordx4 {vr(JD,4)}, v{V+2}, s[{S1}:{S1+3}], s14 offen")
    a(f"s_mul_i32 s8, s7, {W4C_STRIDE}"); a("s_lshl_b32 s6, s6, 10"); a("s_add_u32 s8, s8, s6")
    a(f"s_add_u32 s8, s8, {WS_W4C - WS_WQC}")
    if PF & 1:
        pf_wo(a, None, SD, va=248, vd=249); pf_w1(a, None, SD, u0=64, va=248, vd=249)
    else:
        srd(a, SD, P_WO, 0, 512 * 1024)
        a("s_lshl_b32 s6, s13, 9")
        a("v_lshlrev_b32 v27, 3, v1")
        a(f"buffer_load_dwordx2 {vr(V+4,2)}, v27, s[{SD}:{SD+3}], s6 offen")
    a("s_cmp_ge_u32 s13, 864")
    a("s_cbranch_scc1 L_noa2")
    a("s_add_u32 s12, s13, 1024")
    a(f"s_mov_b32 s10, {W4C_STRIDE}")
    a(f"s_mov_b32 s11, {WS_W4C - WS_WQC}")
    a("s_cmp_lt_u32 s13, 352")
    a("s_cbranch_scc1 L_a2w4")
    srd(a, S1, P_W2, 0, 512 * 1024)
    a("s_sub_u32 s12, s13, 352")
    a(f"s_mov_b32 s10, {W2S}")
    a(f"s_mov_b32 s11, {WS_W2C - WS_WQC}")
    a.label("L_a2w4")
    a("s_lshr_b32 s6, s12, 3"); a("s_and_b32 s7, s12, 7")
    a("s_lshl_b32 s14, s6, 13"); a("s_lshl_b32 s15, s7, 7"); a("s_add_u32 s14, s14, s15")
    a(f"buffer_load_dwordx4 {vr(JD+12,4)}, v{V+2}, s[{S1}:{S1+3}], s14 offen")
    a("s_mul_i32 s10, s7, s10"); a("s_lshl_b32 s6, s6, 10"); a("s_add_u32 s10, s10, s6")
    a("s_add_u32 s10, s10, s11")
    a.label("L_noa2")
    a(f"s_cmp_lg_u32 s{S_W}, 3")
    a("s_cbranch_scc1 L_noc")
    a("s_cmp_ge_u32 s2, 118")
    a("s_cbranch_scc1 L_noc")
    srd(a, S2, P_W1, 0, 512 * 1024)
    a("s_lshr_b32 s6, s2, 1")
    a("s_mov_b32 s14, 1024")
    a("s_cmp_lt_u32 s6, 16")
    a("s_cbranch_scc1 L_cw1")
    srd(a, S2, P_W3, 0, 512 * F * 2)
    a("s_sub_u32 s6, s6, 16")
    a(f"s_mov_b32 s14, {F*2}")
    a.label("L_cw1")
    a("s_and_b32 s7, s2, 1")
    a("s_lshl_b32 s15, s14, 8"); a("s_mul_i32 s15, s15, s7")
    a("s_lshl_b32 s6, s6, 6"); a("s_add_u32 s15, s15, s6")
    a("v_lshrrev_b32 v24, 2, v1")
    a("v_and_b32 v26, 3, v1")
    a("v_lshrrev_b32 v25, 5, v1")
    a("v_lshlrev_b32 v25, 1, v25")
    a("v_xor_b32 v26, v26, v25")
    a("v_lshlrev_b32 v26, 4, v26")
    a("v_mul_lo_u32 v24, v24, s14")
    a("v_add_u32 v26, v26, v24")
    a("s_lshl_b32 s14, s14, 4")
    for i in range(16):
        a(f"s_mov_b32 m0, {JOBL + i*1024}")
        a("s_nop 0")
        a(f"buffer_load_dwordx4 v26, s[{S2}:{S2+3}], s15 offen lds")
        if i < 15: a("s_add_u32 s15, s15, s14")
    a.label("L_noc")
    a(f"s_cmp_ge_u32 s13, {0 if FL('ZK5', 1) else 68}")
    a("s_cbranch_scc1 L_nod")
    srd(a, SD, P_WS, WS_KV + KV_STRIDE, KV_STRIDE)
    for i in range(4): a(f"v_mov_b32 v{24+i}, 0")
    a("s_lshl_b32 s6, s13, 10")
    a(f"buffer_store_dwordx4 v[24:27], v{V}, s[{SD}:{SD+3}], s6 offen{SC}")
    a("s_nop 1")
    a.label("L_nod")
    srd(a, SD, P_WS, WS_WQC, WS_W4C + 8 * W4C_STRIDE - WS_WQC)
def jobs_store(a):
    SD = SRD_X3; V = 228
    a("s_waitcnt vmcnt(0)")
    a(f"buffer_store_dwordx4 {vr(JD,4)}, v{V}, s[{SD}:{SD+3}], s8 offen{SC}")
    a(f"buffer_store_dwordx4 {vr(JD+4,4)}, v{V+1}, s[{SD}:{SD+3}], s9 offen{SC}")
    a("s_and_b32 s7, s13, 15")
    a("s_cmp_ge_u32 s7, 8")
    a("s_cbranch_scc1 L_nob2s")
    a(f"s_add_u32 s9, s9, {32*QS}")
    a(f"buffer_store_dwordx4 {vr(JD+8,4)}, v{V+1}, s[{SD}:{SD+3}], s9 offen{SC}")
    a.label("L_nob2s")
    a("s_cmp_ge_u32 s13, 864")
    a("s_cbranch_scc1 L_noa2s")
    a(f"buffer_store_dwordx4 {vr(JD+12,4)}, v{V}, s[{SD}:{SD+3}], s10 offen{SC}")
    a.label("L_noa2s")
def k1_l0_jobs(a):
    SQ = 76
    a(f"s_cmp_lg_u32 s{S_W}, 0")
    a("s_cbranch_scc1 L_noe")
    a(f"s_cmp_lg_u32 s{S_RT}, 0")
    a("s_cbranch_scc1 L_end")
    srd(a, SQ, P_WS, WS_CS, CS_SIZE)
    a("v_lshlrev_b32 v24, 4, v1")
    a(f"v_add_u32 v24, {CSL}, v24")
    a("ds_read_b128 v[60:63], v24")
    a("ds_read_b128 v[64:67], v24 offset:384")
    a("v_lshrrev_b32 v25, 3, v1")
    a("v_and_b32 v26, 7, v1")
    a("v_lshlrev_b32 v25, 11, v25")
    a("v_lshl_add_u32 v25, v26, 4, v25")
    a(f"s_lshl_b32 s6, s{S_CT}, 7")
    a("s_waitcnt lgkmcnt(0)")
    a("v_pk_add_f32 v[60:61], v[60:61], v[64:65]")
    a("v_pk_add_f32 v[62:63], v[62:63], v[66:67]")
    a("s_mov_b64 exec, 0xffffff")
    a(f"buffer_store_dwordx4 v[60:63], v25, s[{SQ}:{SQ+3}], s6 offen{SC}")
    a("s_branch L_end")
    a.label("L_noe")
    a(f"s_cmp_lg_u32 s{S_W}, 3")
    a("s_cbranch_scc1 L_end")
    a("s_cmp_ge_u32 s2, 118")
    a("s_cbranch_scc1 L_end")
    tr_addrs64s(a, 160, 24, 4096)
    for n2 in range(2): a(f"v_add_u32 v{160+n2}, {JOBL}, v{160+n2}")
    for j in range(8):
        for n2 in range(2):
            for hh in range(2):
                a(f"ds_read_b64_tr_b16 {vr(64 + j*8 + n2*4 + hh*2, 2)}, v{160+n2} offset:{j*2048 + hh*256}")
        if j >= 2:
            a(f"s_waitcnt lgkmcnt(8)")
            for n2 in range(2):
                c = vr(40 + 4*n2, 4)
                a(f"v_mfma_f32_16x16x32_bf16 {c}, {vr(64 + (j-2)*8 + n2*4, 4)}, v[8:11], {'0' if j == 2 else c}")
    a("s_lshr_b32 s6, s2, 1")
    a(f"s_mov_b32 s92, {WS_CS + CS_W1}")
    a("s_cmp_lt_u32 s6, 16")
    a(f"s_cselect_b32 s92, s92, {WS_CS + CS_W3 - 16*128}")
    a("s_lshl_b32 s7, s6, 7"); a("s_add_u32 s92, s92, s7")
    a("s_and_b32 s7, s2, 1")
    a(f"s_mul_i32 s7, s7, {CS_P1}"); a("s_add_u32 s92, s92, s7")
    for j in (6, 7):
        a(f"s_waitcnt lgkmcnt({4*(7-j)})")
        for n2 in range(2):
            c = vr(40 + 4*n2, 4)
            a(f"v_mfma_f32_16x16x32_bf16 {c}, {vr(64 + j*8 + n2*4, 4)}, v[8:11], {c}")
    srd(a, SQ, P_WS, 0, WS_CS + CS_SIZE)
    a("v_lshlrev_b32 v24, 4, v3")
    a("s_mov_b32 exec_lo, 0x00010001")
    a("s_mov_b32 exec_hi, 0x00010001")
    for n2 in range(2):
        a(f"buffer_store_dwordx4 {vr(40+4*n2,4)}, v24, s[{SQ}:{SQ+3}], s92 offen offset:{n2*64}{SC}")
    if W3C:
        a("s_mov_b64 exec, -1")
        a("s_cmp_lt_u32 s2, 32")
        a("s_cbranch_scc1 L_end")
        srd(a, SQ, P_WS, WS_W3C, 43 * QS)
        b_voff64(a, 26, 24, 64)
        a("v_lshlrev_b32 v27, 4, v1")
        a(f"v_add_u32 v27, {JOBL}, v27")
        a("s_lshr_b32 s6, s2, 1")
        a("s_sub_u32 s6, s6, 16")
        a(f"s_mul_i32 s6, s6, {QS}")
        a("s_and_b32 s7, s2, 1")
        a("s_lshl_b32 s7, s7, 14")
        a("s_add_u32 s6, s6, s7")
        for i in range(16):
            a(f"ds_read_b128 {vr(64+4*i,4)}, v27 offset:{i*1024}")
        for i in range(16):
            a(f"s_waitcnt lgkmcnt({15-i})")
            if i and i % 4 == 0: a("s_add_u32 s6, s6, 4096")
            a(f"buffer_store_dwordx4 {vr(64+4*i,4)}, v26, s[{SQ}:{SQ+3}], s6 offen offset:{(i%4)*1024}{SC}")
    a("s_branch L_end")

def k1_qkv(a, L0):
    vm = VM(a)
    prologue8(a, 256); decode_wg(a, 2)
    SRD_DBG = SRD_CS
    def srds_ld():
        if L0:
            srd(a, SRD_A, P_X, 0, 0x200000)
            srd(a, SRD_B, P_WQKV, 0, 512 * 3072)
        else:
            srd(a, SRD_A, P_WS, WS_XN, 0x200000)
            srd(a, SRD_B, P_WS, WS_WQC, 48 * QS)
    def srds_cp():
        srd(a, SRD_O, P_WS, WS_PHIQ, 0x400000)
        if L0: srd(a, SRD_DBG, P_DBG, 0, 256)
        srd(a, SRD_X2, P_WS, WS_KV + (0 if L0 else KV_STRIDE), KV_STRIDE)
    if L0:
        a(f"s_lshl_b32 s12, s{S_CT}, 6")
        a(f"s_add_u32 s8, s12, 1024")
        a(f"s_add_u32 s9, s12, 2048")
    else:
        a(f"s_mul_i32 s12, s{S_CT}, {QS}")
        a(f"s_add_u32 s8, s12, {16*QS}")
        a(f"s_add_u32 s9, s12, {32*QS}")
    CSQ = 184
    WP = 204
    TK = 250
    STK = 100
    def ticket():
        a(f"s_cmp_lg_u32 s{S_W}, 0")
        a("s_cbranch_scc1 L_tk0")
        a(f"v_mov_b32 v{TK}, 1")
        a(f"v_mov_b32 v{TK+1}, 0")
        a(f"s_lshl_b32 s6, s{S_CT}, 2")
        a("s_mov_b64 exec, 1")
        a(f"buffer_atomic_add v{TK}, v{TK+1}, s[{SRD_DBG}:{SRD_DBG+3}], s6 offen sc0")
        a("s_mov_b64 exec, -1")
        a.label("L_tk0")
    def h_zero():
        a(f"s_mov_b32 s{STK}, 1")
        a(f"s_cmp_lg_u32 s{S_W}, 0")
        a("s_cbranch_scc1 L_tk1")
        a(f"s_waitcnt vmcnt({2 if FL('JL', 2) < 0 else 0})")
        a(f"v_readfirstlane_b32 s{STK}, v{TK}")
        a(f"s_cmp_lg_u32 s{STK}, 0")
        a("s_cbranch_scc1 L_tk1")
        for i in range(4): a(f"v_mov_b32 v{TK+2+i}, 0")
        a(f"v_lshlrev_b32 v{TK+1}, 4, v1")
        a(f"s_lshl_b32 s6, s{S_CT}, 12")
        for i in range(4):
            a(f"buffer_store_dwordx4 {vr(TK+2,4)}, v{TK+1}, s[{SRD_X2}:{SRD_X2+3}], s6 offen offset:{i*1024} sc1")
        a(f"s_lshl_b32 s6, s{S_CT}, 8")
        a(f"s_add_u32 s6, s6, {KVZ_OFF}")
        a("s_mov_b64 exec, 0xffff")
        a(f"buffer_store_dwordx4 {vr(TK+2,4)}, v{TK+1}, s[{SRD_X2}:{SRD_X2+3}], s6 offen sc1")
        a("s_mov_b64 exec, -1")
        a.label("L_tk1")
    def h_flag():
        a(f"s_cmp_lg_u32 s{STK}, 0")
        a("s_cbranch_scc1 L_tk2")
        a("s_waitcnt vmcnt(0)")
        a(f"v_mov_b32 v{TK}, 1")
        a(f"v_mov_b32 v{TK+1}, 0")
        a(f"s_lshl_b32 s6, s{S_CT}, 2")
        a("s_mov_b64 exec, 1")
        a(f"buffer_store_dword v{TK}, v{TK+1}, s[{SRD_DBG}:{SRD_DBG+3}], s6 offen offset:64 sc1")
        a("s_mov_b64 exec, -1")
        a.label("L_tk2")
    def after(vm, st):
        if L0: ticket()
        for i, s_ in enumerate(st):
            row_voff(a, 20 + i, 128, 32, 2048, with_g=8, st=s_)
            a(f"s_lshl_b32 s6, s{S_CT}, 7")
            a(f"v_add_u32 v{20+i}, s6, v{20+i}")
    NST = 1 if EPI8 else 2
    split(a)
    kwait(a, srds_cp)
    if L0: jobs_load0(a)
    after(vm, (0, 1))
    JL = FL('JL', 2)
    hk = {}
    if L0:
        if JL < 0: jobs_load(a)
        def mk(fs):
            def f():
                for x in fs: x()
            return f
        tmp = {}
        tmp.setdefault(FL('HZ', 1), []).append(h_zero)
        if JL >= 0: tmp.setdefault(JL, []).append(lambda: jobs_load(a))
        tmp.setdefault(FL('HF', 3), []).append(h_flag)
        tmp.setdefault(FL('JS', 6), []).append(lambda: jobs_store(a))
        hk = {k: mk(v) for k, v in tmp.items()}
    accf = gemm96_compute(a, 'TTTTNN', hooks=hk)
    if EPI8:
        handover_put(a, [56 + 4 * i for i in range(6)] + [88, 92])
        a.label("L_epi")
    stamp(a)
    if L0: a("s_barrier")
    a("v_lshlrev_b32 v24, 4, v3")
    a("v_lshlrev_b32 v25, 2, v2")
    a(f"v_add_u32 v24, {CSL}, v24")
    a(f"v_add_u32 v25, {CSL}, v25")
    for pp, base in ((0, CSQ), (1, 212))[:2 if L0 else 1]:
        for nt in range(4):
            a(f"ds_read_b128 {vr(base+4*nt,4)}, v24 offset:{pp*384 + nt*64}")
        for h in range(2):
            a(f"ds_read_b32 v{base+16+h}, v25 offset:{pp*384 + (4+h)*64}")
    a("v_lshrrev_b32 v26, 2, v2")
    a("v_lshl_add_u32 v26, v3, 2, v26")
    a("v_and_b32 v27, 3, v2")
    a("v_lshlrev_b32 v27, 3, v27")
    a("v_lshl_add_u32 v26, v26, 5, v27")
    a(f"v_add_u32 v26, {WPL}, v26")
    for h in range(2):
        a(f"ds_read_b64_tr_b16 {vr(28+2*h,2)}, v26 offset:{h*512}")
    MB = (96, 100); RS = (98, 102)
    for st in range(NST):
        ln_finish(a, 80 + 8 * st, 84 + 8 * st, MB[st], RS[st], 24)
    RRS = (104, 112); RRM = (108, 116)
    a("v_lshlrev_b32 v23, 4, v3")
    for r in range(4): a(f"v_add_u32 v{24+r}, {4*r}, v23")
    for st in range(NST):
        for r in range(4):
            a(f"ds_bpermute_b32 v{RRS[st]+r}, v{24+r}, v{RS[st]}")
            a(f"ds_bpermute_b32 v{RRM[st]+r}, v{24+r}, v{MB[st]}")
    for st in range(NST):
        a(f"v_mov_b32 v{RS[st]+1}, v{RS[st]}")
        a(f"v_sub_f32 v{MB[st]}, 0, v{MB[st]}")
        a(f"v_mov_b32 v{MB[st]+1}, v{MB[st]}")
    if L0:
        a("s_waitcnt vmcnt(0)"); vm.q = []
        a(f"v_mov_b32 v{TK+1}, 0")
        a(f"s_cmp_lg_u32 s{S_W}, 0")
        a("s_cbranch_scc1 L_tk3")
        a(f"s_lshl_b32 s6, s{S_CT}, 2")
        a(f"buffer_load_dword v{TK}, v{TK+1}, s[{SRD_DBG}:{SRD_DBG+3}], s6 offen offset:64 sc1")
        a.label("L_tk3")
    a("s_waitcnt lgkmcnt(0)")
    if L0:
        for i in range(0, 18, 2): a(f"v_pk_add_f32 {vr(CSQ+i,2)}, {vr(CSQ+i,2)}, {vr(212+i,2)}")
    KV = 120; Z = 136
    T = 212
    L2P = 202
    IDN = 22
    a(f"v_mov_b32 v{L2P}, {lit(LOG2E)}"); a(f"v_mov_b32 v{L2P+1}, {lit(LOG2E)}")
    a("v_mov_b32 v24, 0x3f80"); a("v_mov_b32 v25, 0x3f800000")
    for p in range(2):
        a(f"v_cndmask_b32 v{IDN+p}, 0, v24, s[{64+4*p}:{65+4*p}]")
        a(f"v_cndmask_b32 v26, 0, v25, s[{66+4*p}:{67+4*p}]")
        a(f"v_or_b32 v{IDN+p}, v{IDN+p}, v26")
    def red4(r, A, B, C, D, op, mid):
        r(f"v_permlane16_swap_b32 v{A}, v{B}")
        r(f"v_permlane16_swap_b32 v{C}, v{D}")
        r(f"{op} v{A}, v{A}, v{B}")
        r(f"{op} v{C}, v{C}, v{D}")
        r(f"v_permlane32_swap_b32 v{A}, v{C}")
        r(f"{op} v{A}, v{A}, v{C}")
        r(mid)
        r(f"v_mov_b32 v{C}, v{A}")
        r(f"v_permlane32_swap_b32 v{A}, v{C}")
        r(f"v_mov_b32 v{B}, v{A}")
        r(f"v_mov_b32 v{D}, v{C}")
        r(f"v_permlane16_swap_b32 v{A}, v{B}")
        r(f"v_permlane16_swap_b32 v{C}, v{D}")
    def stream(st, h, Bq):
        r = Rec()
        wph = vr(28 + 2 * h, 2)
        c = accf(st, h); ck = accf(st, 2 + h); cv = accf(st, 4 + h)
        P, PK, ENQ, ENK, VB = Bq + 4, Bq + 8, Bq + 12, Bq + 16, Bq + 20
        A, B, C, D = Bq + 22, Bq + 24, Bq + 26, Bq + 28
        fold4(r, c, CSQ + 4 * h, MB[st], RS[st])
        fold4(r, ck, CSQ + 8 + 4 * h, MB[st], RS[st])
        pack4(r, Bq, c); pack4(r, Bq + 2, ck)
        r(f"v_mfma_f32_16x16x16_bf16 {vr(P,4)}, {wph}, {vr(Bq,2)}, 0")
        r(f"v_mfma_f32_16x16x16_bf16 {vr(PK,4)}, {wph}, {vr(Bq+2,2)}, 0")
        sel = "op_sel_hi:[1,0,1]" if h == 0 else "op_sel:[0,1,0] op_sel_hi:[1,1,1]"
        for p in (0, 2):
            r(f"v_pk_fma_f32 {vr(cv+p,2)}, {vr(RRM[st]+p,2)}, {vr(CSQ+16,2)}, {vr(cv+p,2)} {sel} neg_lo:[1,0,0] neg_hi:[1,0,0]")
        for p in (0, 2):
            r(f"v_pk_mul_f32 {vr(cv+p,2)}, {vr(cv+p,2)}, {vr(RRS[st]+p,2)}")
        pack4(r, VB, cv)
        round4(r, P, Bq); round4(r, PK, Bq + 2)
        for X, mx, mn in ((P, A, B), (PK, C, D)):
            r(f"v_max3_f32 v{mx}, v{X}, v{X+1}, v{X+2}")
            r(f"v_max3_f32 v{mn}, -v{X}, -v{X+1}, -v{X+2}")
            r(f"v_max_f32 v{mx}, v{mx}, v{X+3}")
            r(f"v_max_f32_e64 v{mn}, v{mn}, -v{X+3}")
        red4(r, A, B, C, D, 'v_max_f32', f"v_mul_f32 v{A}, {lit(-LOG2E)}, v{A}")
        for X, EN, mx, mn in ((P, ENQ, A, B), (PK, ENK, C, D)):
            for p in (0, 2):
                r(f"v_pk_fma_f32 {vr(EN+p,2)}, {vr(X+p,2)}, {vr(L2P,2)}, {vr(mn,2)} op_sel_hi:[1,1,0] neg_lo:[0,1,0] neg_hi:[0,1,0]")
            for p in (0, 2):
                r(f"v_pk_fma_f32 {vr(X+p,2)}, {vr(X+p,2)}, {vr(L2P,2)}, {vr(mx,2)} op_sel_hi:[1,1,0]")
        for X in (P, ENQ, PK, ENK):
            for q in range(4): r(f"v_exp_f32 v{X+q}, v{X+q}")
        for X, d in ((P, A), (ENQ, B), (PK, C), (ENK, D)):
            r(f"v_pk_add_f32 {vr(d,2)}, {vr(X,2)}, {vr(X+2,2)}")
        for d in (A, B, C, D):
            r(f"v_add_f32 v{d}, v{d}, v{d+1}")
        red4(r, A, B, C, D, 'v_add_f32', f"v_rcp_f32 v{A}, v{A}")
        for X, d in ((PK, C), (ENK, D), (P, A), (ENQ, B)):
            for p in (0, 2):
                r(f"v_pk_mul_f32 {vr(X+p,2)}, {vr(X+p,2)}, {vr(d,2)} op_sel_hi:[1,0]")
        pack4(r, PK, PK); pack4(r, ENK, ENK)
        r(f"v_mfma_f32_16x16x16_bf16 {vr(Bq,4)}, {vr(PK,2)}, {vr(IDN,2)}, 0")
        r(f"v_mfma_f32_16x16x16_bf16 {vr(Bq+24,4)}, {vr(ENK,2)}, {vr(IDN,2)}, 0")
        pack4(r, P, P); pack4(r, ENQ, ENQ)
        r(f"buffer_store_dwordx2 {vr(P,2)}, v{20+st}, s[{SRD_O}:{SRD_O+3}], 0 offen offset:{h*64}")
        r(f"buffer_store_dwordx2 {vr(ENQ,2)}, v{20+st}, s[{SRD_O}:{SRD_O+3}], 0 offen offset:{h*64+32}")
        pack4(r, Bq, Bq); pack4(r, Bq + 24, Bq + 24)
        for sg, ph in ((0, Bq), (1, Bq + 24)):
            kv = KV + (h * 2 + sg) * 4; z = Z + (h * 2 + sg) * 4
            r(f"v_mfma_f32_16x16x16_bf16 {vr(kv,4)}, {vr(VB,2)}, {vr(ph,2)}, {'0' if st == 0 else vr(kv,4)}")
            r(f"v_mfma_f32_16x16x16_bf16 {vr(z,4)}, v[8:9], {vr(ph,2)}, {'0' if st == 0 else vr(z,4)}")
        return r
    stamp(a)
    for st in range(NST):
        interleave(a, [stream(st, 0, 212), stream(st, 1, 152)])
    RED = 3 * SLOT96; REDZ = RED + 32768
    a(f"s_lshl_b32 s6, s101, 12")
    a(f"v_lshlrev_b32 v4, 4, v1")
    a(f"v_add_u32 v4, s6, v4")
    a(f"s_lshl_b32 s6, s101, 10")
    a(f"v_lshlrev_b32 v5, 2, v1")
    a(f"v_add_u32 v5, s6, v5")
    a(f"v_add_u32 v4, {RED}, v4")
    a(f"v_add_u32 v5, {REDZ}, v5")
    for i in range(4):
        a(f"ds_write_b128 v4, {vr(KV+4*i,4)} offset:{i*1024}")
        a(f"ds_write_b32 v5, v{Z+4*i} offset:{i*256}")
    if L0:
        a(f"s_cmp_lg_u32 s{S_W}, 0")
        a("s_cbranch_scc1 L_tk5")
        a("s_waitcnt vmcnt(8)")
        a(f"s_mov_b32 s7, 0x400000")
        a.label("L_tk4")
        a(f"v_readfirstlane_b32 s6, v{TK}")
        a("s_cmp_lg_u32 s6, 0")
        a("s_cbranch_scc1 L_tk5")
        a("s_sub_u32 s7, s7, 1")
        a("s_cmp_eq_u32 s7, 0")
        a("s_cbranch_scc1 L_tk5")
        a("s_sleep 8")
        a(f"s_lshl_b32 s6, s{S_CT}, 2")
        a(f"buffer_load_dword v{TK}, v{TK+1}, s[{SRD_DBG}:{SRD_DBG+3}], s6 offen offset:64 sc1")
        a("s_waitcnt vmcnt(0)")
        a("s_branch L_tk4")
        a.label("L_tk5")
    a("s_waitcnt lgkmcnt(0)")
    barrier(a)
    a("s_cmp_ge_u32 s101, 4")
    a("s_cbranch_scc1 L_end")
    a(f"v_lshlrev_b32 v4, 4, v0")
    a(f"v_add_u32 v4, {RED}, v4")
    NW = 8 if EPI8 else 4
    for w in range(NW):
        a(f"ds_read_b128 {vr(T+4*w,4)}, v4 offset:{w*4096}")
    a(f"v_lshrrev_b32 v5, 4, v0")
    a(f"v_lshlrev_b32 v5, 8, v5")
    a(f"v_lshl_add_u32 v5, v2, 2, v5")
    a(f"v_add_u32 v5, {REDZ}, v5")
    for w in range(NW):
        a(f"ds_read_b32 v{T+32+w}, v5 offset:{w*1024}")
    a(f"s_lshr_b32 s6, s{S_W}, 1")
    a(f"s_lshl_b32 s7, s{S_CT}, 1")
    a(f"s_add_u32 s6, s6, s7")
    a(f"s_lshl_b32 s6, s6, 11")
    a(f"s_and_b32 s7, s{S_W}, 1")
    a(f"s_lshl_b32 s7, s7, 6")
    a(f"s_add_u32 s6, s6, s7")
    a(f"v_lshlrev_b32 v6, 9, v3")
    a(f"v_lshl_add_u32 v6, v2, 2, v6")
    a(f"s_lshl_b32 s7, s{S_CT}, 8")
    a(f"s_add_u32 s7, s7, {KVZ_OFF}")
    a(f"v_lshlrev_b32 v7, 2, v0")
    a("s_waitcnt lgkmcnt(0)")
    for d in ((16, 8, 4) if EPI8 else (8, 4)):
        for w in range(0, d, 4):
            for p in (0, 2):
                a(f"v_pk_add_f32 {vr(T+w+p,2)}, {vr(T+w+p,2)}, {vr(T+w+d+p,2)}")
    for d in ((4, 2, 1) if EPI8 else (2, 1)):
        for w in range(d):
            a(f"v_add_f32 v{T+32+w}, v{T+32+w}, v{T+32+w+d}")
    for r in range(4):
        a(f"buffer_atomic_add_f32 v{T+r}, v6, s[{SRD_X2}:{SRD_X2+3}], s6 offen offset:{r*128}")
    a(f"s_cmp_lg_u32 s{S_W}, 0")
    a("s_cbranch_scc1 L_fin")
    a(f"buffer_atomic_add_f32 v{T+32}, v7, s[{SRD_X2}:{SRD_X2+3}], s7 offen")
    loader_begin(a)
    PEND.append(srds_ld)
    def hook(vml):
        setup_consts(a)
        after(vml, (1,))
    def small():
        a(f"s_cmp_ge_u32 s{S_W}, {1 if L0 else 2}")
        a("s_cbranch_scc1 L_nosm")
        srd(a, SRD_X1, P_WPHI, 0, 32 * 512)
        a("v_lshlrev_b32 v22, 4, v1")
        a(f"s_lshl_b32 s6, s{S_CT}, 10")
        a(f"s_mov_b32 m0, {WPL}")
        if not L0:
            a(f"s_cmp_eq_u32 s{S_W}, 0")
            a("s_cbranch_scc1 L_sm1")
            srd(a, SRD_X1, P_WS, WS_CS, CS_SIZE)
            a("v_lshrrev_b32 v23, 3, v1")
            a("v_min_u32 v23, 2, v23")
            a("v_and_b32 v22, 7, v1")
            a("v_lshlrev_b32 v22, 4, v22")
            a("v_lshl_add_u32 v22, v23, 11, v22")
            a(f"s_lshl_b32 s6, s{S_CT}, 7")
            a(f"s_mov_b32 m0, {CSL}")
            a.label("L_sm1")
        a("s_nop 0")
        a(f"buffer_load_dwordx4 v22, s[{SRD_X1}:{SRD_X1+3}], s6 offen lds")
        a.label("L_nosm")
    if L0:
        def pre():
            for i in range(4): a(f"v_mov_b32 v{8+i}, 0x3f803f80")
            tr_addrs64s(a, 160, 24, 4096)
            a(f"s_cmp_lt_u32 s{S_W}, 2")
            a("s_cbranch_scc1 L_lo3")
            for i in range(3): a(f"v_mov_b32 v{160+i}, v{163+i}")
            a.label("L_lo3")
            a(f"s_and_b32 s6, s{S_W}, 1")
            a("s_lshl_b32 s6, s6, 11")
            for i in range(3): a(f"v_add_u32 v{160+i}, s6, v{160+i}")
            pre.BB = Banked(a, 160, 3, [164, 168])
        def per(c):
            if c == 2: small()
            slot = (c % 5) * SLOT96
            for i in range(3):
                for hh in range(2):
                    r, o = pre.BB.get(slot + 16384 + hh * 256)
                    a(f"ds_read_b64_tr_b16 {vr(112 + i*4 + hh*2, 2)}, v{r+i} offset:{o}")
            for i in range(3):
                a(f"s_waitcnt lgkmcnt({4-2*i})")
                cc = vr(128 + 4*i, 4)
                a(f"v_mfma_f32_16x16x32_bf16 {cc}, {vr(112+4*i,4)}, v[8:11], {'0' if c == 0 else cc}")
        gemm96_loader(a, 1024, 3072, (12, 8, 9), None, per, pre, NI=FL('NI0', 2))
        a(f"s_and_b32 s6, s{S_W}, 1")
        a("s_mul_i32 s6, s6, 384")
        a(f"s_lshr_b32 s7, s{S_W}, 1")
        a("s_mul_i32 s7, s7, 192")
        a("s_add_u32 s6, s6, s7")
        a(f"s_add_u32 s6, s6, {CSL}")
        a("v_lshlrev_b32 v24, 4, v3")
        a("v_add_u32 v24, s6, v24")
        a("s_mov_b32 exec_lo, 0x00010001")
        a("s_mov_b32 exec_hi, 0x00010001")
        for i in range(3):
            a(f"ds_write_b128 v24, {vr(128+4*i,4)} offset:{i*64}")
        a("s_mov_b64 exec, -1")
        a("s_waitcnt lgkmcnt(0)")
        a("s_barrier")
        k1_l0_jobs(a)
    else:
        gemm96_loader(a, 1024, 64, (12, 8, 9), None, lambda c: small() if c == 2 else None)
        loader_end(a)

import os
_V = os.environ.get('K2V', '0')
K2_KV = {c: (c + 2,) for c in range(6)}
K2_CH = {c: (c + 2,) for c in range(6)}
if _V == '1':
    K2_CH = {0: (2, 3), 1: (4,), 2: (5,), 3: (6,), 4: (7,)}
if _V == '2':
    K2_CH = {0: (2, 3), 1: (4,), 2: (5,), 3: (6,), 4: (7,)}
    K2_KV = {0: (2, 3), 1: (4,), 2: (5,), 3: (6,), 4: (7,)}
if _V == '3':
    K2_CH = {0: (2,), 1: (3, 4), 2: (5,), 3: (6,), 4: (7,)}
def k2_attn_wo(a):
    prologue8(a, 256); decode_wg(a, 4)
    def srds():
        a(f"s_mul_i32 s6, s{S_LAYER}, {KV_STRIDE}")
        a(f"s_add_u32 s6, s6, {WS_KV}")
        a(f"s_add_u32 s{SRD_X2}, s{P_WS}, s6")
        a(f"s_addc_u32 s{SRD_X2+1}, s{P_WS+1}, 0")
        a(f"s_mov_b32 s{SRD_X2+2}, {KV_STRIDE}")
        a(f"s_mov_b32 s{SRD_X2+3}, 0x00020000")
        srd(a, SRD_A, P_WS, WS_PHIQ, 0x400000)
        srd(a, SRD_B, P_WO, 0, 512 * 1024)
        srd(a, SRD_O, P_WS, WS_XA, 0x200000)
        srd_sel(a, SRD_X1, P_X, 0, P_WS, WS_XN, 0x200000)
    NS, NCH, SL = 5, 8, 24576
    KVL = NS * SL; ZL = KVL + 32768
    a(f"s_lshl_b32 s12, s{S_CT}, 7")
    a("v_lshlrev_b32 v8, 4, v0")
    a("v_lshlrev_b32 v9, 3, v0")
    split(a)
    PHB = 80
    KVB = 96
    NUB = 128
    OBS = (64, 68)
    BFS = (160, 176)
    KR = [192 + 4 * i for i in range(8)]; ZR = 224
    RX = 240
    def body(hf):
        vm = VM(a)
        tm = gen.TIMING
        if hf: gen.TIMING = False
        AV, BV = 16, 20
        def ldkv(c):
            a(f"s_mov_b32 s6, {c*8192}")
            a(f"buffer_load_dwordx4 {vr(KR[c],4)}, v8, s[{SRD_X2}:{SRD_X2+3}], s6 offen")
            vm.issue(('kv', c))
        def issue(c):
            slot = (c % NS) * SL
            for t4 in range(4):
                dma(a, vm, ('ch', c), AV + t4, SRD_A, 0, c * 256, (13, slot + t4 * 1024))
            for i in range(2):
                dma(a, vm, ('ch', c), BV, SRD_B, 's10', 0, (14, slot + 16384 + i * 4096))
                a(f"s_add_u32 s10, s10, {32*1024}")
        if hf:
            a_voff256(a, AV, 2048, 64, 16, 24)
            b_voff128(a, BV, 24, 1024, 'k2')
            a(f"s_lshl_b32 s13, s{S_W}, 12")
            a(f"s_lshl_b32 s14, s{S_W}, 10")
            a(f"s_mul_i32 s10, s{S_W}, {8*1024}")
            a(f"s_add_u32 s10, s10, s12")
        row_voff(a, 21, 64, 16, 1024, with_g=8)
        a(f"v_add_u32 v21, s12, v21")
        kwait(a, srds)
        ldkv(0)
        a(f"s_mov_b32 s6, {KVZ_OFF}")
        a(f"buffer_load_dwordx2 {vr(ZR,2)}, v9, s[{SRD_X2}:{SRD_X2+3}], s6 offen")
        vm.issue('z')
        if hf: issue(0)
        ldkv(1)
        if hf: issue(1)
        RES = 3 * SL + 16384
        if hf:
            a_voff128(a, 248, 1024, 64, 16, 24)
            a(f"s_lshl_b32 s11, s{S_W}, 11")
        res_rd(a, 244, 24, RES)
        a_rd256(a, 4, 24, 4096)
        tr_addrs128(a, 12, 24, 'k2')
        AB = Banked(a, 4, 4, [232])
        BB = Banked(a, 12, 4, [236])
        a(f"v_add_u32 v9, {KVL}, v9")
        a("v_lshlrev_b32 v10, 2, v0")
        a(f"v_add_u32 v10, {ZL}, v10")
        a("v_lshlrev_b32 v22, 6, v2")
        a("v_lshl_add_u32 v22, v3, 4, v22")
        a(f"v_add_u32 v22, {KVL}, v22")
        a("v_lshlrev_b32 v23, 4, v3")
        a(f"v_add_u32 v23, {ZL}, v23")
        def stage(c):
            vm.wait(('kv', c))
            q = KR[c]
            pack4(a, q, q)
            a(f"ds_write_b64 v9, {vr(q,2)} offset:{c*4096}")
        vm.wait('z')
        a(f"v_cvt_pk_bf16_f32 v{ZR}, v{ZR}, v{ZR+1}")
        a(f"ds_write_b32 v10, v{ZR}")
        stage(0)
        def wo_mfma(c):
            OB = OBS[c % 2]; BF = BFS[c % 2]
            for nt in range(4):
                cc = vr(32 + 4 * nt, 4)
                a(f"v_mfma_f32_16x16x32_bf16 {cc}, {vr(BF + nt*4, 4)}, {vr(OB,4)}, {'0' if c == 0 else cc}")
        for c in range(NCH):
            slot = (c % NS) * SL
            OB = OBS[c % 2]; BF = BFS[c % 2]
            if hf: vm.wait(('ch', c))
            a("s_waitcnt lgkmcnt(0)")
            barrier(a, c in (0, 3, 4))
            ar, ao = AB.get(slot)
            br, bo = BB.get(slot + 16384)
            for q in range(2):
                hh = 2 * hf + q; h = 4 * c + hh
                a(f"ds_read_b128 {vr(PHB+4*q,4)}, v{ar+hh} offset:{ao}")
                a(f"ds_read_b128 {vr(KVB+8*q,4)}, v22 offset:{h*1024}")
                a(f"ds_read_b128 {vr(KVB+8*q+4,4)}, v23 offset:{h*64}")
            for n_ in K2_KV.get(c, ()): ldkv(n_)
            if c == 5 and hf == 0 and PF & 2: pf_w2(a, vm, SRD_X3)
            if hf:
                for n_ in K2_CH.get(c, ()): issue(n_)
                if c == 5: res_dma(a, vm, ('ch', 7), 248, SRD_X1, 's12', RES)
            if c: wo_mfma(c - 1)
            for q in range(2):
                a(f"s_waitcnt lgkmcnt({3-3*q})")
                n = NUB + 8 * q
                a(f"v_mfma_f32_16x16x32_bf16 {vr(n,4)}, {vr(KVB+8*q,4)}, {vr(PHB+4*q,4)}, 0")
                a(f"v_mfma_f32_16x16x32_bf16 {vr(n+4,4)}, {vr(KVB+8*q+4,4)}, {vr(PHB+4*q,4)}, 0")
            for nt in range(4):
                for hh in range(2):
                    a(f"ds_read_b64_tr_b16 {vr(BF + nt*4 + hh*2, 2)}, v{br+nt} offset:{bo + hf*4096 + hh*2048}")
            recs = []
            for q in range(2):
                r = Rec()
                n = NUB + 8 * q; t = 24 + 2 * q
                bf16r(r, n + 4, n + 4, t)
                r(f"v_add_f32 v{n+4}, {lit(1e-6)}, v{n+4}")
                bf16r(r, n + 4, n + 4, t)
                r(f"v_rcp_f32 v{n+4}, v{n+4}")
                round4(r, n, t)
                for p in (0, 2): r(f"v_pk_mul_f32 {vr(n+p,2)}, {vr(n+p,2)}, {vr(n+4,2)} op_sel_hi:[1,0]")
                pack4(r, OB + 2 * q, n)
                recs.append(r)
            interleave(a, recs)
            if c + 1 < NCH: stage(c + 1)
        a("s_waitcnt lgkmcnt(0)")
        wo_mfma(NCH - 1)
        stamp(a)
        keep = [32 + 4 * (2 * hf + q) for q in range(2)]
        send = [32 + 4 * (2 * (1 - hf) + q) for q in range(2)]
        pair_exchange(a, hf, send, [48, 52], 3 * SL, 24)
        for q in range(2):
            a(f"ds_read_b64 {vr(RX+2*q,2)}, v{244+2*hf+q}")
        a("s_waitcnt lgkmcnt(0)")
        recs = []
        for q in range(2):
            r = Rec()
            c = keep[q]; t = 112 + 8 * q
            for p in (0, 2): r(f"v_pk_add_f32 {vr(c+p,2)}, {vr(c+p,2)}, {vr(48+4*q+p,2)}")
            round4(r, c, t)
            unpack2(r, t + 2, t + 3, RX + 2 * q); unpack2(r, t + 4, t + 5, RX + 2 * q + 1)
            for p in (0, 2): r(f"v_pk_add_f32 {vr(c+p,2)}, {vr(c+p,2)}, {vr(t+2+p,2)}")
            pack4(r, c, c)
            r(f"buffer_store_dwordx2 {vr(c,2)}, v21, s[{SRD_O}:{SRD_O+3}], 0 offen offset:{(2*hf+q)*32}")
            recs.append(r)
        interleave(a, recs)
        gen.TIMING = tm
    body(0)
    loader_begin(a)
    body(1)
    loader_end(a)

KERNELS = [
    ('k1a', lambda a: k1_qkv(a, True), 256, K1A_LDS, False),
    ('k1b', lambda a: k1_qkv(a, False), 256, JOBL, False),
    ('k2', k2_attn_wo, 256, 5 * 24576 + 32768 + 2048, True),
    ('k3', k3_ln_w1, 256, 131072 + 1024, False),
    ('k4', k4_shift_w2, 256, 131072 + 8192, False),
    ('k5', k5_ln_w3, 240, 5 * SLOT96 + 2048, False),
    ('k6', k6_w4, 256, 163840, True),
]

def build():
    header = open('cdna_kernels/' + NAME + '.s.ref').read().split('; Override launch')[0]
    launches = []
    for L in range(2):
        for k in [KERNELS[L]] + KERNELS[2:]:
            launches.append((k[0], L if k[4] else None))
    info = {k[0]: k for k in KERNELS}
    out = [header.rstrip('\n')]
    def lab(n, L): return f"hh_{n}{'' if L is None else '_l%d' % L}_kernel"
    for n, L in launches:
        k = info[n]
        out.append(f"; @launch kernel={lab(n, L)} grid=({k[2]},1,1) block=({256 if n == 'k0' else 512},1,1) lds={k[3]}")
    out.append('.amdgcn_target "amdgcn-amd-amdhsa--gfx950"')
    out.append('.text')
    descs = []
    for n, fn, nwg, lds, layered in KERNELS:
        a = Asm(); St.n = 0
        fn(a)
        a.label("L_fin")
        if LDT:
            a("s_branch L_end")
            a.label("L_dump")
        elif gen.TIMING and n != 'k0':
            a("s_cmp_ge_u32 s101, 4")
            a("s_cbranch_scc1 L_end")
        dump_stamps(a, [k[0] for k in KERNELS].index(n))
        body = a.text().replace('L_', f'L{n}_')
        entries = [(lab(n, 0), 0), (lab(n, 1), 1)] if layered else [(lab(n, None), None)]
        if layered:
            for nm, L in entries:
                out.append(f".globl {nm}\n.p2align 8\n.type {nm},@function\n{nm}:")
                out.append(f"  s_mov_b32 s{S_LAYER}, {L}\n  s_branch L{n}_body")
            out.append(f".p2align 8\nL{n}_body:")
        else:
            nm = entries[0][0]
            out.append(f".globl {nm}\n.p2align 8\n.type {nm},@function\n{nm}:")
        out.append(body.rstrip('\n'))
        out.append(f"L{n}_end:\n  s_endpgm")
        for nm, L in entries: descs.append(nm)
    out.append('.section .rodata,"a"')
    for nm in descs:
        out.append(f""".p2align 6
.amdhsa_kernel {nm}
  .amdhsa_next_free_vgpr 256
  .amdhsa_next_free_sgpr 102
  .amdhsa_accum_offset 256
  .amdhsa_group_segment_fixed_size 0
  .amdhsa_kernarg_size 96
  .amdhsa_user_sgpr_count 2
  .amdhsa_user_sgpr_kernarg_segment_ptr 1
  .amdhsa_system_sgpr_workgroup_id_x 1
.end_amdhsa_kernel""")
    return '\n'.join(out) + '\n'

if __name__ == '__main__':
    if len(sys.argv) > 2 and sys.argv[2] == 'timing': gen.TIMING = True
    txt = build()
    dst = sys.argv[1] if len(sys.argv) > 1 else 'cdna_kernels/' + NAME + '.s'
    open(dst, 'w').write(txt)
    print('wrote', dst, len(txt), 'bytes')
```
